```python
import torch

def _softmax(x, axis=-1):
    return torch.softmax(x, dim=axis)

def _gelu(x):
    return torch.nn.functional.gelu(x, approximate='tanh')

def _silu(x):
    return torch.nn.functional.silu(x)

def _sigmoid(x):
    return torch.sigmoid(x)

def _layernorm(x, axis=-1, eps=1e-05):
    m = x.mean(dim=axis, keepdim=True)
    v = x.var(dim=axis, keepdim=True, unbiased=False)
    return (x - m) / torch.sqrt(v + eps)

def _scatter_add(tgt, idx, src, axis=0):
    return tgt.clone().index_add_(axis, idx, src)

def _segment_sum(src, seg, n):
    out = torch.zeros((n,) + src.shape[1:], dtype=src.dtype)
    return out.index_add_(0, seg, src)

def _pad(x, pw):
    flat = tuple((v for pair in reversed(pw) for v in pair))
    return torch.nn.functional.pad(x, flat)
kernel_name = 'adaLN_cond__sliding_block_cached__moe_arch_mod__prompt'

def setup_inputs():

    _w = lambda a: (lambda t: t.to(torch.bfloat16) if t.is_floating_point() else t)(torch.as_tensor(a))

    def _A_setup():
        B, Sq, D = (1, 2048, 1024)
        Hq, Hkv, Sk, Dh = (32, 4, 2048, 128)
        assert Hq % Hkv == 0, (Hq, Hkv)
        return {'x': _w((lambda *s: torch.randn(*s, dtype=torch.bfloat16) * 0.05)(B, Sq, D)), 'k_cache': _w((lambda *s: torch.randn(*s, dtype=torch.bfloat16) * 3.2)(B, Hkv, Sk, Dh)), 'v_cache': _w((lambda *s: torch.randn(*s, dtype=torch.bfloat16) * 0.4)(B, Hkv, Sk, Dh)), 'wq': _w((lambda *s: torch.randn(*s, dtype=torch.bfloat16) * 3.2)(D, Hq * Dh) * D ** (-0.5)), 'wo': _w((lambda *s: torch.randn(*s, dtype=torch.bfloat16) * 0.4)(Hq * Dh, D) * (Hq * Dh) ** (-0.5))}
    _A_in = _A_setup()

    def _B_setup():
        B, S, D, F, C = (1, 2048, 1024, 3584, 1)
        return {'x': _w((lambda *s: torch.randn(*s, dtype=torch.bfloat16) * 0.05)(B, S, D)), 'w_r': _w((lambda *s: torch.randn(*s, dtype=torch.bfloat16) * 0.05)(D)), 'w_gate': _w((lambda *s: torch.randn(*s, dtype=torch.bfloat16) * 0.05)(D, F)), 'w_up': _w((lambda *s: torch.randn(*s, dtype=torch.bfloat16) * 0.05)(D, F)), 'w_down': _w((lambda *s: torch.randn(*s, dtype=torch.bfloat16) * 0.05)(F, D))}
    _B_in = _B_setup()
    return {'A_x': _A_in['x'], 'A_k_cache': _A_in['k_cache'], 'A_v_cache': _A_in['v_cache'], 'A_wq': _A_in['wq'], 'A_wo': _A_in['wo'], 'B_x': _B_in['x'], 'B_w_r': _B_in['w_r'], 'B_w_gate': _B_in['w_gate'], 'B_w_up': _B_in['w_up'], 'B_w_down': _B_in['w_down'], 'c': _w((lambda *s: torch.randn(*s, dtype=torch.bfloat16) * 0.1)(1, 1024) * 8.0), 'w_mod': _w((lambda *s: torch.randn(*s, dtype=torch.bfloat16) * 0.1)(1024, 6 * 1024) * 1024 ** (-0.5) * 8.0)}

def reference(A_x, A_k_cache, A_v_cache, A_wq, A_wo, B_x, B_w_r, B_w_gate, B_w_up, B_w_down, c, w_mod):

    def _A_ref(x, k_cache, v_cache, wq, wo):
        B, Sq, D = x.shape
        Hq, Dh = (32, 128)
        Hkv, Sk = (k_cache.shape[1], k_cache.shape[2])
        W = min(4096, max(256, Sk // 4))
        rep = Hq // Hkv
        q = (lambda x, *d: x.permute(*d))((x @ wq).reshape(B, Sq, Hq, Dh), 0, 2, 1, 3)
        k = (lambda x, n, axis: torch.repeat_interleave(x, n, dim=axis))(k_cache[:, :, Sk - W:, :], rep, axis=1)
        v = (lambda x, n, axis: torch.repeat_interleave(x, n, dim=axis))(v_cache[:, :, Sk - W:, :], rep, axis=1)
        scores = torch.einsum('bhqd,bhkd->bhqk', q, k) * Dh ** (-0.5)
        p = _softmax(scores, axis=-1)
        o = torch.einsum('bhqk,bhkd->bhqd', p, v)
        return (lambda x, *d: x.permute(*d))(o, 0, 2, 1, 3).reshape(B, Sq, Hq * Dh) @ wo

    def _B_ref(x, w_r, w_gate, w_up, w_down):
        B, S, D = x.shape
        C = 1
        r = x @ w_r
        idx = torch.argsort(-r, axis=-1)[:, :C]
        idx_e = (lambda x, n, axis: torch.repeat_interleave(x, n, dim=axis))(idx.reshape(B, C, 1), D, axis=2)
        x_sel = (lambda x, i, axis: torch.take_along_dim(x, i, dim=axis))(x, idx_e, axis=1)
        g = _silu(x_sel @ w_gate)
        u = x_sel @ w_up
        y = g * u @ w_down
        r_sel = _sigmoid((lambda x, i, axis: torch.take_along_dim(x, i, dim=axis))(r, idx, axis=1))
        y = y * r_sel.reshape(B, C, 1)
        b_off = (torch.arange(B) * S).reshape(B, 1)
        flat_idx = (idx + b_off).reshape(B * C)
        zero = (x * 0.0).reshape(B * S, D)
        upd = _scatter_add(zero, flat_idx, y.reshape(B * C, D), axis=0)
        return x + upd.reshape(B, S, D)
    x = A_x
    mod = (_silu(c) @ w_mod).reshape(c.shape[0], 6, 1, -1)
    sa, ca, ga, sb, cb, gb = (mod[:, 0].clone(), mod[:, 1].clone(), mod[:, 2].clone(), mod[:, 3].clone(), mod[:, 4].clone(), mod[:, 5].clone())
    h = _layernorm(x, axis=-1) * (1 + ca) + sa
    x = x + ga * _A_ref(h, A_k_cache, A_v_cache, A_wq, A_wo)
    h = _layernorm(x, axis=-1) * (1 + cb) + sb
    x = x + gb * _B_ref(h, B_w_r, B_w_gate, B_w_up, B_w_down)
    return x
```

```python
import re

REG_RE = re.compile(r'\b([vas])(\d+)\b|\b([vas])\[(\d+):(\d+)\]|\b(vcc|exec|m0|scc|vcc_lo|vcc_hi|exec_lo|exec_hi)\b')

def regs_of(op):
    out = []
    for m in REG_RE.finditer(op):
        if m.group(1):
            out.append(m.group(1) + m.group(2))
        elif m.group(3):
            out += [m.group(3) + str(i) for i in range(int(m.group(4)), int(m.group(5)) + 1)]
        else:
            n = m.group(6)
            if n.startswith('vcc'): n = 'vcc'
            if n.startswith('exec'): n = 'exec'
            out.append(n)
    return out

def split_ops(s):
    ops, depth, cur = [], 0, ''
    for ch in s:
        if ch == '[': depth += 1
        if ch == ']': depth -= 1
        if ch == ',' and depth == 0:
            ops.append(cur.strip()); cur = ''
        else:
            cur += ch
    if cur.strip(): ops.append(cur.strip())
    return ops

TRANS = ('v_exp_', 'v_log_', 'v_rcp_', 'v_rsq_', 'v_sqrt_', 'v_sin_', 'v_cos_')

class Inst:
    __slots__ = ('text', 'mn', 'kind', 'reads', 'writes', 'tag', 'passes', 'srcc', 'srcab', 'wide_store',
                 'pre_wait', 'pre_nop', 'wait_tag', 'comment', 'dpp', 'sgpr_vmem')
    def __init__(self, text, tag=None):
        self.text = text.strip()
        self.tag = tag
        self.pre_wait = [None, None]
        self.pre_nop = 0
        self.wait_tag = None
        self.passes = 0
        self.srcc = set(); self.srcab = set()
        self.wide_store = set()
        self.dpp = False
        self.sgpr_vmem = set()
        self.parse()

    def parse(self):
        t = self.text.split(';')[0].strip()
        if t.endswith(':') or t.startswith('.') or t == '':
            self.mn = ''; self.kind = 'label'; self.reads = set(); self.writes = set(); return
        parts = t.split(None, 1)
        mn = parts[0]; rest = parts[1] if len(parts) > 1 else ''
        self.mn = mn
        ops = split_ops(rest)
        R = [regs_of(o) for o in ops]
        allr = set(r for x in R for r in x)
        reads, writes = set(), set()
        kind = None
        if mn.startswith('v_mfma') or mn.startswith('v_smfmac'):
            kind = 'mfma'
            writes = set(R[0]); reads = set(R[1]) | set(R[2]) | set(R[3])
            self.srcc = set(R[3]); self.srcab = set(R[1]) | set(R[2])
            if '32x32x16' in mn or '32x32x8' in mn: self.passes = 8
            elif '16x16x32' in mn or '16x16x16' in mn: self.passes = 4
            else: raise ValueError('unknown mfma ' + mn)
        elif mn.startswith('v_'):
            kind = 'trans' if mn.startswith(TRANS) else 'valu'
            if mn.startswith('v_cmpx'):
                writes = set(R[0]) | {'exec'}; reads = set(r for x in R[1:] for r in x)
            elif mn.startswith('v_permlane32_swap') or mn.startswith('v_permlane16_swap') or mn.startswith('v_swap'):
                writes = set(R[0]) | set(R[1]); reads = set(writes)
            elif mn.startswith(('v_add_co', 'v_sub_co', 'v_subrev_co', 'v_addc_co', 'v_subb_co', 'v_div_scale', 'v_mad_u64_u32')):
                writes = set(R[0]) | set(R[1]); reads = set(r for x in R[2:] for r in x)
            elif mn == 'v_nop':
                pass
            else:
                writes = set(R[0]); reads = set(r for x in R[1:] for r in x)
                if mn.startswith(('v_fmac', 'v_dot2c', 'v_pk_fmac', 'v_writelane', 'v_mac')):
                    reads |= writes
                if mn.startswith('v_div_fmas'): reads.add('vcc')
            if 'dpp' in mn or 'row_' in t or 'quad_perm' in t or 'wave_' in t:
                self.dpp = True
                reads |= writes
            reads.add('exec')
        elif mn.startswith(('buffer_load', 'global_load')):
            lds = (' lds' in (' ' + rest)) or ('_lds_' in mn)
            if lds:
                kind = 'dma'; reads = allr | {'m0'}
            else:
                kind = 'vload'; writes = set(R[0]); reads = set(r for x in R[1:] for r in x)
            self.sgpr_vmem = set(r for r in reads if r[0] == 's' and r != 'scc')
        elif mn.startswith(('buffer_store', 'global_store')):
            kind = 'vstore'; reads = allr
            data = R[0] if mn.startswith('buffer') else R[1]
            if 'x4' in mn or 'x3' in mn: self.wide_store = set(data)
            self.sgpr_vmem = set(r for r in reads if r[0] == 's' and r != 'scc')
        elif mn.startswith(('buffer_atomic', 'global_atomic')):
            ret = ' sc0' in (' ' + rest)
            kind = 'vload' if ret else 'vstore'
            if ret:
                writes = set(R[0])
                reads = allr if mn.startswith('buffer') else set(r for x in R[1:] for r in x)
            else:
                reads = allr
            self.sgpr_vmem = set(r for r in reads if r[0] == 's' and r != 'scc')
        elif mn.startswith(('buffer_wbl2', 'buffer_inv')):
            kind = 'vstore'
        elif mn.startswith('ds_'):
            if mn.startswith('ds_write') or (mn.startswith(('ds_add', 'ds_max', 'ds_min', 'ds_or')) and 'rtn' not in mn):
                kind = 'dswrite'; reads = allr
            else:
                kind = 'dsread'; writes = set(R[0]); reads = set(r for x in R[1:] for r in x)
        elif mn.startswith(('s_load', 's_buffer_load', 's_memtime', 's_memrealtime')):
            kind = 'smem'; writes = set(R[0]); reads = set(r for x in R[1:] for r in x)
        elif mn in ('s_waitcnt',):
            kind = 'wait'
        elif mn in ('s_barrier',):
            kind = 'barrier'
        elif mn in ('s_nop',):
            kind = 'nop'
        elif mn.startswith(('s_cbranch', 's_branch', 's_endpgm', 's_setprio', 's_sleep', 's_sethalt')):
            kind = 'ctrl'
            if 'scc' in mn: reads = {'scc'}
            if 'vcc' in mn: reads = {'vcc'}
            if 'exec' in mn: reads = {'exec'}
        elif mn.startswith('s_cmp') or mn.startswith('s_bitcmp'):
            kind = 'salu'; reads = allr; writes = {'scc'}
        elif mn.startswith('s_'):
            kind = 'salu'; writes = set(R[0]) | {'scc'}; reads = set(r for x in R[1:] for r in x)
            if 'saveexec' in mn: writes.add('exec'); reads.add('exec')
            if mn.startswith(('s_cselect', 's_addc', 's_subb', 's_cmov')): reads.add('scc')
            if mn.startswith(('s_mov', 's_movk', 's_cselect', 's_mul', 's_getreg', 's_cmov', 's_bfm', 's_brev', 's_pack', 's_ff1', 's_flbit')): writes.discard('scc')
            if mn.startswith(('s_addk', 's_mulk', 's_cmov', 's_bitset')): reads |= set(R[0])
        else:
            raise ValueError('unknown instruction: ' + t)
        self.kind = kind; self.reads = reads; self.writes = writes

    def states(self):
        if self.kind == 'label': return 0
        if self.kind == 'nop':
            return int(self.text.split()[1], 0) + 1
        return 1


class Prog:
    def __init__(self):
        self.items = []
        self.cur = self.items
        self._stack = []

    def __call__(self, text, tag=None):
        for line in text.split('\n'):
            line = line.strip()
            if not line: continue
            if line.startswith(';'):
                i = Inst(''); i.text = line; self.cur.append(i); continue
            self.cur.append(Inst(line, tag))

    def add(self, inst):
        self.cur.append(inst)

    def label(self, name):
        self.cur.append(Inst(name + ':'))

    def wait_tag(self, tag, extra_lgkm0=False):
        i = Inst(''); i.text = '; wait tag %s' % (tag,); i.wait_tag = tag
        self.cur.append(i)

    def raw(self, text):
        i = Inst('s_setprio 0'); i.text = text; self.cur.append(i)

    def stamp(self, i):
        self('; STAMP %d' % i)

    def flush(self):
        self('s_waitcnt vmcnt(0) lgkmcnt(0)')
        self('s_nop 15'); self('s_nop 3')

    def loop_begin(self):
        body = []
        self.cur.append(('loop', body))
        self._stack.append(self.cur)
        self.cur = body

    def loop_end(self):
        self.cur = self._stack.pop()

    def alt_begin(self):
        alts = [[]]
        self.cur.append(('alt', alts))
        self._stack.append((self.cur, alts))
        self.cur = alts[0]

    def alt_next(self):
        _, alts = self._stack[-1]
        alts.append([]); self.cur = alts[-1]

    def alt_end(self):
        self.cur, _ = self._stack.pop()

    def _linear(self, items, reps=3):
        outs = [[]]
        for it in items:
            if isinstance(it, tuple) and it[0] == 'loop':
                bs = self._linear(it[1], reps)
                assert len(bs) == 1
                for o in outs: o += bs[0] * reps
            elif isinstance(it, tuple) and it[0] == 'alt':
                new = []
                for a in it[1]:
                    for b in self._linear(a, reps):
                        for o in outs: new.append(o + b)
                outs = new
            else:
                for o in outs: o.append(it)
        return outs

    def analyse(self):
        for _ in range(6):
            changed = False
            for seq in self._linear(self.items):
                changed |= self._pass(seq)
            if not changed: break
        else:
            raise RuntimeError('analysis did not converge')

    def _pass(self, seq):
        changed = False
        vmq = []
        lgq = []
        hist = []
        pos = 0
        for ins in seq:
            if ins.kind == 'label' and ins.wait_tag is None:
                continue
            touch = ins.reads | ins.writes
            need_vm = None; need_lg = None
            if ins.wait_tag is not None:
                tags = ins.wait_tag if isinstance(ins.wait_tag, (list, tuple, set)) else [ins.wait_tag]
                for k in range(len(vmq) - 1, -1, -1):
                    if vmq[k][1] in tags:
                        need_vm = len(vmq) - 1 - k; break
            else:
                for k in range(len(vmq) - 1, -1, -1):
                    if vmq[k][0] & touch:
                        need_vm = len(vmq) - 1 - k; break
                for k in range(len(lgq) - 1, -1, -1):
                    if lgq[k][0] & touch:
                        need_lg = len(lgq) - 1 - k
                        if any(e[1] for e in lgq): need_lg = 0
                        break
            if need_vm is not None and need_vm > 63: need_vm = None
            if need_lg is not None and need_lg > 15: need_lg = None
            if need_vm is not None and (ins.pre_wait[0] is None or need_vm < ins.pre_wait[0]):
                ins.pre_wait[0] = need_vm; changed = True
            if need_lg is not None and (ins.pre_wait[1] is None or need_lg < ins.pre_wait[1]):
                ins.pre_wait[1] = need_lg; changed = True
            has_wait = ins.pre_wait[0] is not None or ins.pre_wait[1] is not None
            if ins.pre_wait[0] is not None:
                n = ins.pre_wait[0]; vmq = vmq[len(vmq) - n:] if n < len(vmq) else vmq
                if n == 0: vmq = []
            if ins.pre_wait[1] is not None:
                n = ins.pre_wait[1]
                if n == 0: lgq = []
                elif n < len(lgq) and not any(e[1] for e in lgq): lgq = lgq[len(lgq) - n:]
            if ins.kind == 'wait':
                m = re.search(r'vmcnt\((\d+)\)', ins.text)
                if m:
                    n = int(m.group(1)); vmq = vmq[len(vmq) - n:] if 0 < n < len(vmq) else ([] if n == 0 else vmq)
                m = re.search(r'lgkmcnt\((\d+)\)', ins.text)
                if m:
                    n = int(m.group(1))
                    if n == 0: lgq = []
                    elif n < len(lgq) and not any(e[1] for e in lgq): lgq = lgq[len(lgq) - n:]
            if has_wait: pos += 1
            if ins.wait_tag is not None:
                continue
            need = 0
            for (p, ppos) in hist:
                d = pos + ins.pre_nop - ppos - 1 + 0
                req = hazard(p, ins)
                gap = pos - ppos - 1
                if req > gap: need = max(need, req - gap)
            if need > ins.pre_nop:
                ins.pre_nop = need; changed = True
            pos += ins.pre_nop
            hist.append((ins, pos))
            pos += ins.states()
            while hist and pos - hist[0][1] > 24: hist.pop(0)
            if ins.kind in ('vload', 'vstore', 'dma'):
                vmq.append((set() if ins.tag == 'pf' else set(ins.writes), ins.tag))
            elif ins.kind in ('dsread', 'dswrite'):
                lgq.append((set(ins.writes), False))
            elif ins.kind == 'smem':
                lgq.append((set(ins.writes), True)); lgq.append((set(), True))
        return changed

    def emit(self):
        self.analyse()
        out = []
        def rec(items):
            for it in items:
                if isinstance(it, tuple):
                    if it[0] == 'loop': rec(it[1])
                    else:
                        for a in it[1]: rec(a)
                    continue
                w = []
                if it.pre_wait[0] is not None: w.append('vmcnt(%d)' % it.pre_wait[0])
                if it.pre_wait[1] is not None: w.append('lgkmcnt(%d)' % it.pre_wait[1])
                if w: out.append('    s_waitcnt ' + ' '.join(w))
                n = it.pre_nop
                while n > 0:
                    k = min(n, 16); out.append('    s_nop %d' % (k - 1)); n -= k
                if it.kind == 'label' and it.text.endswith(':'):
                    out.append(it.text)
                else:
                    out.append('    ' + it.text)
        rec(self.items)
        return '\n'.join(out) + '\n'


def isv(r): return r[0] in 'va' and r not in ('vcc',)
def iss(r): return (r[0] == 's' and r != 'scc') or r == 'vcc'

def hazard(p, c):
    req = 0
    pk, ck = p.kind, c.kind
    pvalu = pk in ('valu', 'trans')
    cvalu = ck in ('valu', 'trans')
    cmem = ck in ('vload', 'vstore', 'dma', 'dsread', 'dswrite')
    if pvalu:
        vw = set(r for r in p.writes if isv(r))
        sw = set(r for r in p.writes if iss(r))
        if ck == 'mfma' and vw & c.reads: req = max(req, 2)
        if pk == 'trans' and cvalu and ck != 'trans' and vw & c.reads: req = max(req, 1)
        if pk == 'trans' and ck == 'trans' and vw & c.reads: req = max(req, 1)
        if pk == 'trans' and cmem and vw & c.reads: req = max(req, 1)
        if cvalu and c.mn.startswith('v_permlane') and vw & c.reads: req = max(req, 2)
        if cvalu and c.dpp and vw & c.reads: req = max(req, 2)
        if cvalu and c.mn.startswith(('v_readlane', 'v_readfirstlane')) and vw & c.reads: req = max(req, 1)
        if cvalu and sw & c.reads:
            req = max(req, 4 if c.mn.startswith(('v_readlane', 'v_writelane', 'v_div_fmas')) else 2)
        if ck in ('vload', 'vstore', 'dma') and sw & c.reads: req = max(req, 5)
        if 'exec' in p.writes:
            if ck == 'mfma': req = max(req, 4)
            if cvalu and c.dpp: req = max(req, 5)
            if cvalu and c.mn.startswith(('v_readlane', 'v_readfirstlane', 'v_writelane', 'v_permlane')): req = max(req, 4)
        if ('op_sel' in p.text or 'sdwa' in p.mn or 'dst_sel' in p.text) and cvalu and vw & (c.reads | c.writes): req = max(req, 1)
        if p.mn.startswith('v_dot'):
            if cvalu and vw & (c.reads | c.writes):
                if c.mn == p.mn and not (vw & (c.reads - c.writes)): pass
                else: req = max(req, 3)
            elif (cmem or ck == 'mfma') and vw & c.reads: req = max(req, 3)
    if pk == 'salu':
        if 'm0' in p.writes and (ck == 'dma' or 'addtid' in c.mn or c.mn.startswith('s_movrel')): req = max(req, 1)
    if pk == 'mfma':
        n = {4: (0, 6, 8, 8, 3), 8: (0, 10, 12, 12, 7)}[p.passes]
        D = p.writes
        if ck == 'mfma':
            if c.srcc & D:
                exact = (c.srcc == D and c.passes == p.passes)
                req = max(req, n[0] if exact else n[1])
            if c.srcab & D: req = max(req, n[2])
            if (c.writes & D) and not (c.srcc == D):
                req = max(req, n[1])
        elif cvalu:
            if D & (c.reads | c.writes): req = max(req, n[3])
            if p.srcc & c.writes: req = max(req, n[4])
        elif cmem:
            if D & (c.reads | c.writes): req = max(req, n[3])
            if p.srcc & c.writes: req = max(req, n[4])
    if pk == 'vstore' and p.wide_store:
        if p.wide_store & c.writes: req = max(req, 2)
    if pk == 'dswrite' and ('b128' in p.mn or 'b96' in p.mn):
        pass
    return req
```

```python
import sys
HEADER = open('adaLN_cond__sliding_block_cached__moe_arch_mod__prompt.s.ref').read().split('; Override')[0]
WS_PROF = 0x3800000
NSTAMP = 16
def add_prof(k, name, body, info):
    pre = """    s_memrealtime s[90:91]
    s_memtime s[92:93]
    v_readfirstlane_b32 s95, v0
    s_lshr_b32 s95, s95, 6
    s_mov_b32 s94, s2
    s_waitcnt lgkmcnt(0)
""" + ''.join('    s_mov_b32 s%d, s92\n' % (72 + i) for i in range(NSTAMP))
    post = """    s_waitcnt vmcnt(0) lgkmcnt(0)
    s_memrealtime s[4:5]
    s_memtime s[6:7]
    s_load_dwordx2 s[8:9], s[0:1], 112
    s_mov_b32 s10, 0x5000000
    s_mov_b32 s11, 0x20000
    s_mov_b64 exec, 1
    s_lshl_b32 s94, s94, 4
    s_add_u32 s94, s94, s95
    s_lshl_b32 s94, s94, 4
    s_add_u32 s94, s94, 0x%x
    s_waitcnt lgkmcnt(0)
    s_sub_u32 s6, s6, s92
    v_mov_b32 v0, s90
    v_mov_b32 v1, s4
    v_mov_b32 v2, s6
    v_mov_b32 v3, 0x1234
    v_mov_b32 v4, 0
    buffer_store_dwordx4 v[0:3], v4, s[8:11], s94 offen
""" % (WS_PROF + k * 0x40000)
    for q in range(NSTAMP // 4):
        post += '    s_add_u32 s94, s94, 0x400000\n    s_nop 4\n'
        for i in range(4):
            post += '    s_sub_u32 s%d, s%d, s92\n' % (72 + 4 * q + i, 72 + 4 * q + i)
            post += '    v_mov_b32 v%d, s%d\n' % (i, 72 + 4 * q + i)
        post += '    buffer_store_dwordx4 v[0:3], v4, s[8:11], s94 offen\n'
    post += '    s_endpgm\n'
    assert body.rstrip().endswith('s_endpgm')
    import re
    body = re.sub(r'; STAMP (\d+)', lambda m: 's_memtime s[88:89]\n    s_waitcnt lgkmcnt(0)\n    s_mov_b32 s%d, s88' % (72 + int(m.group(1))), body)
    body = pre + body.rstrip()[:-len('s_endpgm')].rstrip() + '\n' + post
    info = dict(info); info['sgpr'] = 102
    return name, body, info

def assemble(kernels, path, prof=False):
    if prof:
        kernels = [add_prof(k, *x) for k, x in enumerate(kernels)]
    out = HEADER
    for name, body, info in kernels:
        out += '; @launch kernel=%s grid=(%d,1,1) block=(%d,1,1) lds=%d\n' % (name, info['grid'], info['block'], info['lds'])
    out += '.amdgcn_target "amdgcn-amd-amdhsa--gfx950"\n.text\n'
    seen = set()
    for name, body, info in kernels:
        if name in seen: continue
        seen.add(name)
        out += '.globl %s\n.p2align 8\n.type %s,@function\n%s:\n' % (name, name, name)
        out += body
    out += '.section .rodata,"a"\n'
    seen = set()
    for name, body, info in kernels:
        if name in seen: continue
        seen.add(name)
        out += '.p2align 6\n.amdhsa_kernel %s\n' % name
        out += '  .amdhsa_next_free_vgpr %d\n  .amdhsa_next_free_sgpr %d\n  .amdhsa_accum_offset %d\n' % (info['vgpr'], info['sgpr'], info['accum'])
        out += '  .amdhsa_group_segment_fixed_size 0\n  .amdhsa_kernarg_size 120\n  .amdhsa_user_sgpr_count 2\n'
        out += '  .amdhsa_user_sgpr_kernarg_segment_ptr 1\n  .amdhsa_system_sgpr_workgroup_id_x 1\n'
        out += '  .amdhsa_float_denorm_mode_32 3\n'
        out += '.end_amdhsa_kernel\n'
    open(path, 'w').write(out)

def add_dbgtime(kernels):
    out = []
    for k, (name, body, info) in enumerate(kernels):
        pre = """    s_cmp_lg_u32 s2, 0
    s_cbranch_scc1 %s_dbgskip
    s_memrealtime s[80:81]
    s_load_dwordx2 s[84:85], s[0:1], 112
    s_mov_b32 s86, 0x5000000
    s_mov_b32 s87, 0x20000
    s_mov_b32 s78, 0x%x
    s_waitcnt lgkmcnt(0)
    v_mov_b32 v1, s80
    v_mov_b32 v2, 0
    buffer_store_dword v1, v2, s[84:87], s78 offen
    s_waitcnt vmcnt(0)
%s_dbgskip:
""" % (name, WS_PROF + 4 * k, name)
        info = dict(info); info['sgpr'] = 100
        out.append((name, pre + body, info))
    body = """    s_memrealtime s[80:81]
    s_load_dwordx2 s[84:85], s[0:1], 112
    s_load_dwordx2 s[88:89], s[0:1], 104
    s_mov_b32 s86, 0x5000000
    s_mov_b32 s87, 0x20000
    s_mov_b32 s90, 64
    s_mov_b32 s91, 0x20000
    s_mov_b32 s78, 0x%x
    v_lshlrev_b32 v1, 2, v0
    v_mov_b32 v4, 0
    s_waitcnt lgkmcnt(0)
    buffer_load_dword v2, v1, s[84:87], s78 offen
    buffer_load_dword v3, v4, s[84:87], s78 offen
    v_mov_b32 v5, s80
    v_cmp_eq_u32 vcc, %d, v0
    s_waitcnt vmcnt(0)
    v_cndmask_b32 v2, v2, v5, vcc
    v_sub_u32 v2, v2, v3
    v_cmp_ge_u32 vcc, %d, v0
    s_and_saveexec_b64 s[4:5], vcc
    buffer_store_dword v2, v1, s[88:91], 0 offen
    s_endpgm
""" % (WS_PROF, len(kernels), len(kernels))
    out.append(('dbg_kernel', body, dict(vgpr=8, accum=8, sgpr=100, lds=0, block=64, grid=1)))
    return out

def add_dbgrt(name, body, info, wave, stamps):
    import re
    pre = """    s_memrealtime s[90:91]
    v_readfirstlane_b32 s95, v0
    s_lshr_b32 s95, s95, 6
    s_waitcnt lgkmcnt(0)
""" + ''.join('    s_mov_b32 s%d, s90\n' % (72 + i) for i in range(16))
    post = """    s_waitcnt vmcnt(0) lgkmcnt(0)
    s_cmp_lg_u32 s95, %d
    s_cbranch_scc1 %s_dbgx
    s_memrealtime s[4:5]
    s_load_dwordx2 s[8:9], s[0:1], 104
    s_mov_b32 s10, 256
    s_mov_b32 s11, 0x20000
    s_mov_b64 exec, 1
    s_waitcnt lgkmcnt(0)
    s_not_b32 s90, s90
    v_mov_b32 v0, s90
    buffer_atomic_umax v0, off, s[8:11], 0
    v_mov_b32 v1, s4
    buffer_atomic_umax v1, off, s[8:11], 0 offset:60
""" % (wave, name)
    for i, st in enumerate(stamps):
        post += '    v_mov_b32 v%d, s%d\n    buffer_atomic_umax v%d, off, s[8:11], 0 offset:%d\n' % (2 + i, 72 + st, 2 + i, 4 + 4 * i)
    post += '%s_dbgx:\n    s_endpgm\n' % name
    body = re.sub(r'; STAMP (\d+)', lambda m: 's_memrealtime s[88:89]\n    s_waitcnt lgkmcnt(0)\n    s_mov_b32 s%d, s88' % (72 + int(m.group(1))), body)
    assert body.rstrip().endswith('s_endpgm')
    body = pre + body.rstrip()[:-len('s_endpgm')].rstrip() + '\n' + post
    info = dict(info); info['sgpr'] = 102
    return name, body, info
```

```python
from asmdsl import Prog, Inst
from layout2 import *
from k2 import RA, R, Sched
from small import silu, rb1, rb2, unpack, ror_add, f2u, xor16_add, xor32_add, ln_scalars
import math
SPIN_MAX = 1 << 16
S_HEAD, S_QB, S_NON, S_MARK = 's12', 's13', 's14', 's15'
S_ROW, S_LDS, S_KV = 's16', 's17', 's18'
PTR = dict(x=32, k=34, v=36, wq=38, wo=40, bx=42, wr=44, wg=46, wu=48, wd=50, c=52, wmod=54, out=56, dbg=58, ws=60)
QX, QY, QZ = 64, 68, 28
def mksrd(p, q, ptr, size):
    return ['s_mov_b64 s[%d:%d], s[%d:%d]' % (q, q + 1, PTR[ptr], PTR[ptr] + 1), 's_mov_b32 s%d, 0x%x' % (q + 2, size), 's_mov_b32 s%d, 0x20000' % (q + 3)]
def SR(q): return 's[%d:%d]' % (q, q + 3)

def gen_fz(name='fz_kernel', D1=4, D2=4, NH=3, ost='sc1', pf_list=('wg', 'wu'), endprio=('A', 2), burst=7, pf_lo=7,
           stage=1, hsleep=1, gsleep=1, wqpf=True, wq_early=3, wqpos=3, b0=True, zfirst=True, mimic=1, kvpos=(33, 97, 161)):
    p = Prog()
    V = RA('v', 0, 256)
    v_tid = V.alloc(1); v_l16 = V.alloc(1); v_wqoff = V.alloc(1); v_tr = V.alloc(1); v_hoff = V.alloc(1)
    v_kvoff = V.alloc(1); v_pf = V.alloc(1); v_pfd = V.alloc(1); v_id = V.alloc(1)
    v_t = [V.alloc(1) for _ in range(6)]
    v_l = [V.alloc(1) for _ in range(2)]
    v_wt = [V.alloc(1) for _ in range(3)]
    v_tr2 = v_l[0]; v_wq2 = v_l[1]
    BASE = V.n
    acc = [V.alloc(16, 4) for _ in range(4)]
    NRA = max(D1, D2) + 2
    fr = [V.alloc(4, 4) for _ in range(NRA)]
    qf = [V.alloc(4, 4) for _ in range(8)]
    S = [V.alloc(16, 4) for _ in range(2)]
    negm = V.alloc(16, 4)
    Pb = V.alloc(16, 4)
    P = [[(Pb[0], Pb[1] + 8 * b + 4 * u) for u in range(2)] for b in range(2)]
    Hx = [V.alloc(16, 4) for _ in range(2)]
    mx = V.alloc(16, 4)
    ones = V.alloc(4, 4)
    nv = V.n
    pool = [Hx[0], Hx[1], S[0], S[1], negm, Pb][:NH]
    H = [[(b[0], b[1] + 4 * t) for t in range(4)] for b in pool]
    WQ_RING = 0; KV_RING = 65536; NKV = 6
    lane = R(v_tid); vid = R(v_id)
    L_GP = KV_RING; L_ST = KV_RING + 1024; L_MOD = KV_RING + 4096

    p('s_cmp_ge_u32 s2, 256')
    p('s_cbranch_scc1 %s_end' % name)
    p('s_load_dwordx16 s[32:47], s[0:1], 0')
    p('s_load_dwordx8 s[48:55], s[0:1], 64')
    p('s_load_dwordx4 s[56:59], s[0:1], 96')
    p('s_load_dwordx2 s[60:61], s[0:1], 112')
    p('s_and_b32 s12, s2, 3')
    p('s_lshl_b32 s12, s12, 3')
    p('s_bfe_u32 s13, s2, 0x30003')
    p('s_add_u32 s12, s12, s13')
    p('s_bfe_u32 s13, s2, 0x10002')
    p('s_lshl_b32 s13, s13, 2')
    p('s_lshr_b32 s19, s2, 6')
    p('s_add_u32 s13, s13, s19')
    p('s_mov_b32 s15, 0')
    p('v_and_b32 %s, 255, v0' % vid)
    p('v_lshrrev_b32 %s, 6, v0' % R(v_t[0]))
    p('v_and_b32 %s, 63, v0' % lane)
    p('v_readfirstlane_b32 s3, %s' % R(v_t[0]))
    p('v_lshlrev_b32 %s, 4, %s' % (R(v_l16), lane))
    p('s_mov_b32 s10, 0x%x' % WS_SIZE)
    p('s_mov_b32 s11, 0x20000')
    p('s_lshl_b32 s19, s13, 3')
    p('s_add_u32 s19, s19, s3')
    p('s_lshl_b32 s20, s19, 16')
    p('v_add_u32 %s, s20, %s' % (R(v_hoff), R(v_l16)))
    p('v_bfe_u32 %s, %s, 2, 2' % (R(v_t[0]), lane))
    p('v_lshrrev_b32 %s, 4, %s' % (R(v_t[1]), lane))
    p('v_and_b32 %s, 3, %s' % (R(v_t[2]), lane))
    p('v_bfe_u32 %s, %s, 4, 1' % (R(v_t[4]), lane))
    p('v_lshlrev_b32 %s, 11, %s' % (R(v_tr), R(v_t[1])))
    p('v_lshl_add_u32 %s, %s, 6, %s' % (R(v_tr), R(v_t[0]), R(v_tr)))
    p('v_lshl_add_u32 %s, %s, 3, %s' % (R(v_tr), R(v_t[2]), R(v_tr)))
    p('v_lshlrev_b32 %s, 5, %s' % (R(v_wq2), R(v_t[4])))
    p('v_sub_u32 %s, %s, %s' % (R(v_tr2), R(v_tr), R(v_wq2)))
    p('v_add_u32 %s, %s, %s' % (R(v_tr), R(v_tr), R(v_wq2)))
    p('v_lshlrev_b32 %s, 6, %s' % (R(v_wqoff), R(v_t[1])))
    p('v_lshl_add_u32 %s, %s, 4, %s' % (R(v_wqoff), R(v_t[2]), R(v_wqoff)))
    p('v_lshl_add_u32 %s, %s, 13, %s' % (R(v_wqoff), R(v_t[0]), R(v_wqoff)))
    p('v_xor_b32 %s, 32, %s' % (R(v_wq2), R(v_wqoff)))
    p('s_lshr_b32 s18, s12, 3')
    p('s_lshl_b32 s18, s18, 18')
    p('s_add_u32 s18, s18, 0x%x' % WS_KV)
    p('v_add_u32 %s, s18, %s' % (R(v_kvoff), R(v_l16)))
    p('s_lshl_b32 s16, s3, 17')
    p('s_lshl_b32 s17, s3, 12')

    def dma_wq(s):
        out = []
        for i in range(4):
            out.append(('s_add_u32 s22, s16, 0x%x' % (s * 64 * 8192 + i * 32768), None))
            out.append(('s_add_u32 m0, s17, 0x%x' % (WQ_RING + (s % 4) * 16384 + i * 1024), None))
            out.append(('buffer_load_dwordx4 %s, s[4:7], s22 offen lds' % R(v_wq2 if i >= 2 else v_wqoff), 'wq%d' % s))
        return out
    def dma_kv(j):
        out = []
        for i in range(4):
            out.append(('s_add_u32 s22, s17, 0x%x' % (j * 16384 + i * 1024), None))
            out.append(('s_add_u32 m0, s17, 0x%x' % (KV_RING + (j % NKV) * 16384 + i * 1024), None))
            out.append(('buffer_load_dwordx4 %s, s[8:11], s22 offen sc1 lds' % R(v_kvoff), 'kv%d' % j))
        return out
    def hload(s, t):
        return [('s_mov_b32 s23, 0x%x' % (WS_H + s * 2048 + (t % 2) * 32768), None),
                ('buffer_load_dwordx4 %s, %s, s[8:11], s23 offen offset:%d sc1' % (R(H[s % NH][t], 0, 4), R(v_hoff), (t // 2) * 1024), None)]
    def trread(f):
        r = fr[f % NRA]
        s, T, n = f // 16, (f // 8) % 2, f % 8
        base = WQ_RING + (s % 4) * 16384 + T * 8192 + (n // 2) * 256 + (n % 2) * 32
        va = R(v_tr2 if n % 2 else v_tr)
        return ['ds_read_b64_tr_b16 %s, %s offset:%d' % (R(r, 0, 2), va, base),
                'ds_read_b64_tr_b16 %s, %s offset:%d' % (R(r, 2, 2), va, base + 1024)]
    class L:
        def __init__(self): self.l = []
        def __call__(self, t, tag=None): self.l.append(t)
    def poll(tag, loads, test, sleep=0):
        p('s_mov_b32 s27, 0')
        p.label('%s_%sp' % (name, tag))
        loads(); test()
        p('s_add_u32 s27, s27, 1')
        p('s_cmp_ge_u32 s27, %d' % SPIN_MAX)
        p('s_cbranch_scc1 %s_%sg' % (name, tag))
        p('s_cbranch_vccz %s_%sg' % (name, tag))
        if sleep: p('s_sleep %d' % sleep)
        p('s_branch %s_%sp' % (name, tag))
        p.label('%s_%sg' % (name, tag))

    def epoch_load(dst, zero):
        p('s_mov_b32 s27, 0x%x' % WS_EPOCH)
        p('buffer_load_dword %s, %s, s[8:11], s27 offen sc1' % (dst, zero))
    def nonce_from(src):
        p('v_readfirstlane_b32 s14, %s' % src)
        p('s_add_u32 s14, s14, 1')

    L_CNT = L_GP + 512
    def early():
        for s in range(wq_early):
            for it, tag in dma_wq(s): p(it, tag)
    def front_A():
        F = RA('v', BASE, 256)
        v_r = F.alloc(1); v_xo = F.alloc(1); v_mo = F.alloc(1); v_so = F.alloc(1); v_e = F.alloc(1); zero = F.alloc(1)
        t = [F.alloc(1, 2 if i in (0, 2) else 1) for i in range(10)]
        xr = [F.alloc(4, 4) for _ in range(4)]
        x = F.alloc(32, 4); c1 = F.alloc(32, 4); sh = F.alloc(32, 4)
        red = F.alloc(8, 4)
        p('v_and_b32 %s, 7, %s' % (R(v_r), vid))
        p('v_bfe_u32 %s, %s, 3, 3' % (R(t[0]), vid))
        p('v_lshlrev_b32 %s, 4, %s' % (R(v_mo), R(t[0])))
        p('s_lshl_b32 s19, s3, 9')
        p('v_add_u32 %s, s19, %s' % (R(v_mo), R(v_mo)))
        p('v_lshl_add_u32 %s, %s, 11, %s' % (R(v_xo), R(v_r), R(v_mo)))
        p('v_mov_b32 %s, 0' % R(zero))
        p('s_lshl_b32 s25, s2, 14')
        p('s_waitcnt lgkmcnt(0)')
        p.stamp(0)
        p('s_mov_b64 s[8:9], s[60:61]')
        for l in mksrd(p, QZ, 'x', 4194304): p(l)
        if b0: p('s_barrier')
        for i in range(4):
            p('buffer_load_dwordx4 %s, %s, %s, s25 offen offset:%d' % (R(xr[i], 0, 4), R(v_xo), SR(QZ), i * 128))
        epoch_load(R(v_e), R(zero))
        if not b0: p('s_barrier')
        p('s_lshl_b32 s19, s12, 8')
        p('s_add_u32 s4, s38, s19')
        p('s_addc_u32 s5, s39, 0')
        p('s_sub_u32 s6, 0x800000, s19')
        p('s_mov_b32 s7, 0x20000')
        for i in range(4):
            for d in range(4): unpack(p, R(x, 8 * i + 2 * d), R(x, 8 * i + 2 * d + 1), R(xr[i], d))
        nonce_from(R(v_e))
        p.stamp(1)
        if wqpos == 0: early()
        X = [R(x, i) for i in range(32)]
        p('v_lshlrev_b32 %s, 5, %s' % (R(t[4]), R(v_r)))
        p('s_lshl_b32 s19, s3, 3')
        p('v_add_u32 %s, s19, %s' % (R(v_so), R(t[4])))
        mean, var, sd, rcp = R(t[0]), R(t[1]), R(t[2]), R(t[3])
        a0, a1 = R(t[5]), R(t[6])
        tmp = R(red, 0)
        p('v_add_f32 %s, %s, %s' % (a0, X[0], X[1])); p('v_add_f32 %s, %s, %s' % (a1, X[2], X[3]))
        for i in range(4, 32, 2):
            p('v_add_f32 %s, %s, %s' % (a0, a0, X[i])); p('v_add_f32 %s, %s, %s' % (a1, a1, X[i + 1]))
        p('v_add_f32 %s, %s, %s' % (mean, a0, a1))
        ror_add(p, mean, 8); xor16_add(p, mean, tmp); xor32_add(p, mean, tmp)
        p('v_mul_f32 %s, 0x%x, %s' % (mean, f2u(1.0 / 256), mean))
        p('v_sub_f32 %s, %s, %s' % (sd, X[0], mean)); p('v_mul_f32 %s, %s, %s' % (a0, sd, sd))
        p('v_sub_f32 %s, %s, %s' % (rcp, X[1], mean)); p('v_mul_f32 %s, %s, %s' % (a1, rcp, rcp))
        for i in range(2, 32, 2):
            p('v_sub_f32 %s, %s, %s' % (sd, X[i], mean)); p('v_sub_f32 %s, %s, %s' % (rcp, X[i + 1], mean))
            p('v_fmac_f32 %s, %s, %s' % (a0, sd, sd)); p('v_fmac_f32 %s, %s, %s' % (a1, rcp, rcp))
        p('v_add_f32 %s, %s, %s' % (var, a0, a1))
        ror_add(p, var, 8); xor16_add(p, var, tmp); xor32_add(p, var, tmp)
        p('v_add_u32 %s, 0x%x, %s' % (R(v_so), L_ST, R(v_so)))
        p('ds_write_b64 %s, %s' % (R(v_so), R(t[0], 0, 2)))
        p('v_add_u32 %s, 0x%x, %s' % (R(t[4]), L_ST, R(t[4])))
        p('s_waitcnt lgkmcnt(0)')
        p.stamp(13)
        p('s_barrier')
        p.stamp(2)
        if wqpos == 1: early()
        p('ds_read_b128 %s, %s' % (R(red, 0, 4), R(t[4])))
        p('ds_read_b128 %s, %s offset:16' % (R(red, 4, 4), R(t[4])))
        m = [R(red, 2 * k) for k in range(4)]; q = [R(red, 2 * k + 1) for k in range(4)]
        p('v_add_f32 %s, %s, %s' % (a0, m[0], m[1])); p('v_add_f32 %s, %s, %s' % (a1, m[2], m[3]))
        p('v_add_f32 %s, %s, %s' % (mean, a0, a1)); p('v_mul_f32 %s, 0x%x, %s' % (mean, f2u(0.25), mean))
        p('v_add_f32 %s, %s, %s' % (a0, q[0], q[1])); p('v_add_f32 %s, %s, %s' % (a1, q[2], q[3]))
        p('v_add_f32 %s, %s, %s' % (var, a0, a1))
        for k in range(4): p('v_sub_f32 %s, %s, %s' % (m[k], m[k], mean))
        p('v_mul_f32 %s, %s, %s' % (a0, m[0], m[0]))
        for k in range(1, 4): p('v_fmac_f32 %s, %s, %s' % (a0, m[k], m[k]))
        p('v_fmamk_f32 %s, %s, 0x%x, %s' % (var, a0, f2u(256.0), var))
        p('v_mul_f32 %s, 0x%x, %s' % (var, f2u(1.0 / 1024), var))
        if mimic == 0:
            p('v_add_f32 %s, 0x%x, %s' % (var, f2u(1e-5), var))
            p('v_rsq_f32 %s, %s' % (sd, var))
        else:
            ln_scalars(p, mean, var, sd, rcp)
            if mimic < 3: p('v_mov_b32 %s, %s' % (sd, rcp))
        for i in range(0, 32, 2): p('v_pk_add_f32 %s, %s, %s op_sel_hi:[1,0] neg_lo:[0,1] neg_hi:[0,1]' % (R(x, i, 2), R(x, i, 2), R(t[0], 0, 2)))
        if mimic >= 2:
            for i in range(0, 32, 2): rb2(p, X[i], X[i + 1], a0)
        if mimic < 3:
            for i in range(0, 32, 2): p('v_pk_mul_f32 %s, %s, %s op_sel_hi:[1,0]' % (R(x, i, 2), R(x, i, 2), R(t[2], 0, 2)))
        else:
            for i in range(32):
                tt = R(red, i % 4)
                p('v_mul_f32 %s, %s, %s' % (tt, X[i], rcp))
                p('v_fma_f32 %s, -%s, %s, %s' % (X[i], tt, sd, X[i]))
                p('v_fma_f32 %s, %s, %s, %s' % (X[i], X[i], rcp, tt))
        if mimic >= 2:
            for i in range(0, 32, 2): rb2(p, X[i], X[i + 1], a0)
        v16 = R(t[7])
        p('v_lshlrev_b32 %s, 1, %s' % (v16, R(v_mo)))
        p('v_add_u32 %s, 0x%x, %s' % (v16, L_MOD, v16))
        p('v_lshlrev_b32 %s, 4, %s' % (R(v_so), R(v_mo)))
        p('v_lshl_add_u32 %s, %s, 4, %s' % (R(v_so), R(v_r), R(v_so)))
        p('s_lshr_b32 s23, s2, 1'); p('s_lshl_b32 s23, s23, 15')
        p('s_and_b32 s24, s2, 1'); p('s_lshl_b32 s24, s24, 7')
        p('s_add_u32 s23, s23, s24')
        if WS_H: p('s_add_u32 s23, s23, 0x%x' % WS_H)
        if wqpos == 2: early()
        p.stamp(3)
        p('s_barrier')
        p.stamp(4)
        for i in range(4):
            for hf in range(2):
                p('ds_read_b128 %s, %s offset:%d' % (R(c1, 8 * i + 4 * hf, 4), v16, 4096 + i * 256 + hf * 16))
                p('ds_read_b128 %s, %s offset:%d' % (R(sh, 8 * i + 4 * hf, 4), v16, i * 256 + hf * 16))
        for i in range(4):
            if mimic >= 2:
                for k in range(0, 8, 2): p('v_pk_mul_f32 %s, %s, %s' % (R(x, 8 * i + k, 2), R(x, 8 * i + k, 2), R(c1, 8 * i + k, 2)))
                for k in range(0, 8, 2): rb2(p, X[8 * i + k], X[8 * i + k + 1], a0)
                for k in range(0, 8, 2): p('v_pk_add_f32 %s, %s, %s' % (R(x, 8 * i + k, 2), R(x, 8 * i + k, 2), R(sh, 8 * i + k, 2)))
            else:
                for k in range(0, 8, 2): p('v_pk_fma_f32 %s, %s, %s, %s' % (R(x, 8 * i + k, 2), R(x, 8 * i + k, 2), R(c1, 8 * i + k, 2), R(sh, 8 * i + k, 2)))
            for d in range(4):
                p('v_cvt_pk_bf16_f32 %s, %s, %s' % (R(xr[i], d), X[8 * i + 2 * d], X[8 * i + 2 * d + 1]))
            p('s_add_u32 s24, s23, %d' % (i * 2048))
            p('buffer_store_dwordx4 %s, %s, s[8:11], s24 offen sc1' % (R(xr[i], 0, 4), R(v_so)), 'hst')
        p.stamp(5)
        if wqpos == 3: early()
        p('s_lshl_b32 s26, s2, 7'); p('s_lshl_b32 s27, s3, 2'); p('s_add_u32 s26, s26, s27'); p('s_add_u32 s26, s26, 0x%x' % WS_HF)
        p('v_mov_b32 %s, s14' % R(v_e))
        p.wait_tag('hst')
        p('s_mov_b64 exec, 1')
        p('buffer_store_dword %s, %s, s[8:11], s26 offen sc1' % (R(v_e), R(zero)))
        p('s_mov_b64 exec, -1')
        p.stamp(6)

    def front_B():
        F = RA('v', BASE, 256)
        v_e = F.alloc(1); zero = F.alloc(2, 2); v_wo = F.alloc(1); v_co = F.alloc(1); v_m = F.alloc(1)
        t = [F.alloc(1) for _ in range(10)]
        w = [F.alloc(4, 4) for _ in range(4)]
        cs = F.alloc(4, 4); ac = F.alloc(8, 4); u = F.alloc(8, 4)
        g = [F.alloc(4, 4) for _ in range(4)]
        mp = F.alloc(32, 4)
        p('s_and_b32 s20, s2, 7'); p('s_lshl_b32 s20, s20, 3'); p('s_bfe_u32 s21, s2, 0x30003'); p('s_add_u32 s20, s20, s21')
        p('s_lshr_b32 s21, s2, 6')
        p('v_lshrrev_b32 %s, 2, %s' % (R(t[0]), vid))
        p('v_mul_u32_u24 %s, %d, %s' % (R(v_wo), 4 * 12288, R(t[0])))
        p('v_and_b32 %s, 3, %s' % (R(t[1]), vid))
        p('v_lshl_add_u32 %s, %s, 4, %s' % (R(v_wo), R(t[1]), R(v_wo)))
        p('v_lshlrev_b32 %s, 3, %s' % (R(v_co), R(t[0])))
        p('s_mul_i32 s22, s21, %d' % (256 * 12288))
        p('s_lshl_b32 s23, s20, 6')
        p('s_add_u32 s22, s22, s23')
        p('s_lshl_b32 s24, s21, 9')
        p('v_mov_b32 %s, 0' % R(zero, 0)); p('v_mov_b32 %s, 0' % R(zero, 1))
        p('v_lshlrev_b32 %s, 3, %s' % (R(t[2]), vid))
        p('s_lshl_b32 s26, s2, 11')
        p('s_add_u32 s26, s26, 0x%x' % WS_YP2)
        p('s_sub_u32 s19, s3, 4')
        p('v_mov_b32 %s, 0x%x' % (R(t[8]), L_CNT))
        p('ds_write_b32 %s, %s' % (R(t[8]), R(zero)))
        p('s_waitcnt lgkmcnt(0)')
        p.stamp(0)
        p('s_mov_b64 s[8:9], s[60:61]')
        for l in mksrd(p, QX, 'c', 2048): p(l)
        for l in mksrd(p, QY, 'wmod', 1024 * 6144 * 2): p(l)
        if zfirst: p('buffer_store_dwordx2 %s, %s, s[8:11], s26 offen sc1' % (R(zero, 0, 2), R(t[2])))
        p('buffer_load_dwordx2 %s, %s, %s, s24 offen' % (R(cs, 0, 2), R(v_co), SR(QX)))
        for i in range(4):
            p('s_add_u32 s25, s22, %d' % (i * 12288))
            p('buffer_load_dwordx4 %s, %s, %s, s25 offen' % (R(w[i], 0, 4), R(v_wo), SR(QY)))
        epoch_load(R(v_e), R(zero))
        if not zfirst: p('buffer_store_dwordx2 %s, %s, s[8:11], s26 offen sc1' % (R(zero, 0, 2), R(t[2])))
        p('s_barrier')
        p('v_lshrrev_b32 %s, 4, %s' % (R(t[3]), lane))
        p.stamp(1)
        unpack(p, R(cs, 2), R(cs, 3), R(cs, 1))
        unpack(p, R(cs, 0), R(cs, 1), R(cs, 0))
        for i in range(4): silu(p, R(cs, i), R(u, i))
        rb2(p, R(cs, 0), R(cs, 1), R(u, 0)); rb2(p, R(cs, 2), R(cs, 3), R(u, 1))
        p.stamp(12)
        for i in range(4):
            for d in range(4): unpack(p, R(u, 2 * d), R(u, 2 * d + 1), R(w[i], d))
            for e in range(8):
                if i == 0: p('v_mul_f32 %s, %s, %s' % (R(ac, e), R(cs, i), R(u, e)))
                else: p('v_fmac_f32 %s, %s, %s' % (R(ac, e), R(cs, i), R(u, e)))
        for e in range(4): p('v_permlane32_swap_b32 %s, %s' % (R(ac, e), R(ac, 4 + e)))
        for e in range(4): p('v_add_f32 %s, %s, %s' % (R(ac, e), R(ac, e), R(ac, 4 + e)))
        for e in range(2): p('v_permlane16_swap_b32 %s, %s' % (R(ac, e), R(ac, 2 + e)))
        for e in range(2): p('v_add_f32 %s, %s, %s' % (R(ac, e), R(ac, e), R(ac, 2 + e)))
        for n in (8, 4):
            for e in range(2): ror_add(p, R(ac, e), n)
        p('v_lshlrev_b32 %s, 5, %s' % (R(t[5]), R(t[1])))
        p('v_lshl_add_u32 %s, %s, 3, %s' % (R(t[5]), R(t[3]), R(t[5])))
        p('s_lshl_b32 s26, s19, 7'); p('s_add_u32 s26, s26, 0x%x' % L_GP)
        p('v_add_u32 %s, s26, %s' % (R(t[5]), R(t[5])))
        p('ds_write_b64 %s, %s' % (R(t[5]), R(ac, 0, 2)))
        p('v_mov_b32 %s, 1' % R(t[9]))
        p('s_mov_b64 exec, 1')
        p('ds_add_rtn_u32 %s, %s, %s' % (R(t[9]), R(t[8]), R(t[9])))
        p('s_mov_b64 exec, -1')
        nonce_from(R(v_e))
        p('v_add_u32 %s, 0x%x, %s' % (R(t[6]), L_GP, R(v_l16)))
        p('v_readfirstlane_b32 s26, %s' % R(t[9]))
        p.stamp(13)
        p('s_cmp_lg_u32 s26, 3')
        p('s_cbranch_scc1 %s_np' % name)
        for k in range(4): p('ds_read_b128 %s, %s offset:%d' % (R(g[k], 0, 4), R(t[6]), k * 128))
        p('v_mov_b32 %s, 0xff' % R(v_m))
        p('s_lshl_b32 s26, s21, 13'); p('s_lshl_b32 s27, s20, 7'); p('s_add_u32 s26, s26, s27')
        p('s_add_u32 s26, s26, 0x%x' % WS_MG)
        for a, b in ((0, 1), (2, 3), (0, 2)):
            for h in range(2): p('v_pk_add_f32 %s, %s, %s' % (R(g[a], 2 * h, 2), R(g[a], 2 * h, 2), R(g[b], 2 * h, 2)))
        for k in range(4):
            if k: p('s_lshr_b32 s27, s14, %d' % (8 * k))
            p('v_bfi_b32 %s, %s, %s, %s' % (R(g[0], k), R(v_m), 's27' if k else 's14', R(g[0], k)))
        p('s_mov_b64 exec, 0xff')
        p('buffer_store_dwordx4 %s, %s, s[8:11], s26 offen sc1' % (R(g[0], 0, 4), R(v_l16)))
        p('s_mov_b64 exec, -1')
        p.stamp(14)
        p('s_waitcnt vmcnt(0)')
        p.label('%s_np' % name)
        p('s_waitcnt vmcnt(0) lgkmcnt(0)')
        p.stamp(2)
        p('s_barrier')
        p.stamp(3)
        v16 = R(t[7]); bad = R(t[4]); pa, pb = R(t[5]), R(t[6]); tmp = R(t[0])
        p('v_lshlrev_b32 %s, 4, %s' % (v16, vid))
        p('s_mov_b32 s24, 0x0c0c0400'); p('s_mov_b32 s25, 0x04000c0c')
        def gl():
            for k in range(4):
                for hf in range(2):
                    p('s_mov_b32 s21, 0x%x' % (WS_MG + k * 8192 + hf * 4096))
                    p('buffer_load_dwordx4 %s, %s, s[8:11], s21 offen sc1' % (R(mp, (k * 2 + hf) * 4, 4), v16))
        def gt():
            for g in range(8):
                p('v_perm_b32 %s, %s, %s, s24' % (pa, R(mp, 4 * g + 1), R(mp, 4 * g)))
                p('v_perm_b32 %s, %s, %s, s25' % (pb, R(mp, 4 * g + 3), R(mp, 4 * g + 2)))
                p('v_or_b32 %s, %s, %s' % (pa, pa, pb))
                if g == 0: p('v_xor_b32 %s, s14, %s' % (bad, pa))
                else:
                    p('v_xor_b32 %s, s14, %s' % (pa, pa))
                    p('v_or_b32 %s, %s, %s' % (bad, bad, pa))
            p('v_cmp_ne_u32 vcc, 0, %s' % bad)
        poll('g', gl, gt, gsleep)
        p.stamp(4)
        for i in range(32): p('v_and_b32 %s, 0xffffff00, %s' % (R(mp, i), R(mp, i)))
        for step in (16, 8):
            for i in range(0, step, 2): p('v_pk_add_f32 %s, %s, %s' % (R(mp, i, 2), R(mp, i, 2), R(mp, step + i, 2)))
        for i in range(0, 8, 2): rb2(p, R(mp, i), R(mp, i + 1), tmp)
        for i in range(4, 8): p('v_add_f32 %s, 1.0, %s' % (R(mp, i), R(mp, i)))
        for i in range(4, 8, 2): rb2(p, R(mp, i), R(mp, i + 1), tmp)
        p('v_add_u32 %s, 0x%x, %s' % (v16, L_MOD, v16))
        p('ds_write_b128 %s, %s' % (v16, R(mp, 0, 4)))
        p('ds_write_b128 %s, %s offset:4096' % (v16, R(mp, 4, 4)))
        p('s_waitcnt lgkmcnt(0)')
        p.stamp(5)
        p('s_barrier')

    def add_kv(sc):
        kd = (S[1][0], S[1][1]); ke = (S[1][0], S[1][1] + 4); tt = [R(S[1], 12 + i) for i in range(4)]
        def issue(p):
            p('s_sub_u32 s19, s3, 4')
            p('s_lshl_b32 s25, s2, 2'); p('s_add_u32 s63, s25, s19')
            p('s_lshr_b32 s20, s63, 8')
            p('s_bfe_u32 s21, s63, 0x40004')
            p('s_and_b32 s24, s63, 15')
            p('s_lshl_b32 s20, s20, 19'); p('s_lshl_b32 s21, s21, 13'); p('s_add_u32 s20, s20, s21')
            p('s_add_u32 s20, s20, %d' % (1536 * 256))
            p('v_and_b32 %s, 15, %s' % (tt[0], lane))
            p('v_lshrrev_b32 %s, 4, %s' % (tt[1], lane))
            for l in mksrd(p, QZ, 'k', 2097152): p(l)
            p('s_cmp_lt_u32 s24, 8'); p('s_cselect_b32 s%d, s%d, 0' % (QZ + 2, QZ + 2))
            p('v_lshlrev_b32 %s, 8, %s' % (tt[2], tt[0]))
            p('v_lshl_add_u32 %s, %s, 3, %s' % (tt[2], tt[1], tt[2]))
            p('s_and_b32 s26, s24, 1'); p('s_lshl_b32 s26, s26, 12'); p('s_add_u32 s21, s20, s26')
            p('s_bfe_u32 s26, s24, 0x20001'); p('s_lshl_b32 s26, s26, 6'); p('s_add_u32 s21, s21, s26')
            p('buffer_load_dwordx2 %s, %s, %s, s21 offen' % (R(kd, 0, 2), tt[2], SR(QZ)))
            p('buffer_load_dwordx2 %s, %s, %s, s21 offen offset:32' % (R(kd, 2, 2), tt[2], SR(QZ)))
            for l in mksrd(p, QX, 'v', 2097152): p(l)
            p('s_cmp_ge_u32 s24, 8'); p('s_cselect_b32 s%d, s%d, 0' % (QX + 2, QX + 2))
            p('s_and_b32 s26, s24, 7'); p('s_lshl_b32 s26, s26, 5'); p('s_add_u32 s20, s20, s26')
            p('s_add_u32 s26, s20, 4096')
            p('v_lshlrev_b32 %s, 10, %s' % (tt[3], tt[1]))
            p('v_lshl_add_u32 %s, %s, 1, %s' % (tt[3], tt[0], tt[3]))
            for e in range(8):
                p('buffer_load_ushort %s, %s, %s, %s offen offset:%d' % (R(ke, e), tt[3], SR(QX), 's26' if e >= 4 else 's20', (e % 4) * 256))
        def store(p):
            for d in range(4):
                p('v_lshl_or_b32 %s, %s, 16, %s' % (R(ke, 2 * d), R(ke, 2 * d + 1), R(ke, 2 * d)))
                p('v_or_b32 %s, %s, %s' % (R(kd, d), R(kd, d), R(ke, 2 * d)))
            p('s_lshl_b32 s27, s63, 10'); p('s_add_u32 s27, s27, 0x%x' % WS_KV)
            p('buffer_store_dwordx4 %s, %s, s[8:11], s27 offen sc1' % (R(kd, 0, 4), R(v_l16)), 'kvst')
        def flag(p):
            p('s_lshl_b32 s26, s63, 2'); p('s_add_u32 s26, s26, 0x%x' % WS_KVF)
            p('v_mov_b32 %s, s14' % tt[0]); p('v_mov_b32 %s, 0' % tt[1])
            p.wait_tag('kvst')
            p('s_mov_b64 exec, 1')
            p('buffer_store_dword %s, %s, s[8:11], s26 offen sc1' % (tt[0], tt[1]))
            p('s_mov_b64 exec, -1')
            p('s_nop 3')
        sc.place(kvpos[0], issue); sc.place(kvpos[1], store); sc.place(kvpos[2], flag)

    def wait_h(role):
        a, b = R(v_t[0]), R(v_t[1])
        p('v_bfe_u32 %s, %s, 2, 2' % (a, lane)); p('v_lshlrev_b32 %s, 7, %s' % (a, a))
        p('v_and_b32 %s, 3, %s' % (b, lane)); p('v_lshl_add_u32 %s, %s, 2, %s' % (a, b, a))
        p('s_lshl_b32 s26, s13, 5'); p('s_lshl_b32 s25, s3, 2'); p('s_add_u32 s26, s26, s25')
        p('s_lshl_b32 s26, s26, 7'); p('s_add_u32 s26, s26, 0x%x' % WS_HF)
        poll('h' + role, lambda: p('buffer_load_dword %s, %s, s[8:11], s26 offen sc1' % (b, a)),
             lambda: p('v_cmp_ne_u32 vcc, s14, %s' % b), hsleep)
    kva = [R(v_wt[0]), R(v_wt[1]), R(v_wt[2]), R(v_pf)]
    def kv_flag_loads(p_):
        p('s_lshr_b32 s26, s12, 3'); p('s_lshl_b32 s26, s26, 10'); p('s_add_u32 s62, s26, 0x%x' % WS_KVF)
        for k in range(4): p('buffer_load_dword %s, %s, s[8:11], s62 offen offset:%d sc1' % (kva[k], R(v_l16), 4 * k))
    def kv_flag_check(p_):
        a = kva
        def ts(q):
            for k in range(4): q('v_xor_b32 %s, s14, %s' % (a[k], a[k]))
            q('v_or3_b32 %s, %s, %s, %s' % (a[0], a[0], a[1], a[2])); q('v_or_b32 %s, %s, %s' % (a[0], a[0], a[3]))
            q('v_cmp_ne_u32 vcc, 0, %s' % a[0])
        ts(p)
        p('s_cbranch_vccz %s_kvg' % name)
        q = p.raw
        q('s_mov_b32 s27, 0')
        p.label('%s_kvp' % name)
        for k in range(4): q('buffer_load_dword %s, %s, s[8:11], s62 offen offset:%d sc1' % (a[k], R(v_l16), 4 * k))
        q('s_waitcnt vmcnt(0)')
        ts(q)
        q('s_add_u32 s27, s27, 1'); q('s_cmp_ge_u32 s27, %d' % SPIN_MAX)
        q('s_nop 4')
        q('s_cbranch_scc1 %s_kvg' % name)
        q('s_cbranch_vccnz %s_kvp' % name)
        p.label('%s_kvg' % name)

    XR = [(Hx[i // 4][0], Hx[i // 4][1] + 4 * (i % 4)) for i in range(8)]
    SB_W, SB_SRC, SB_LDS, SB_DST, SB_STRIP, SB_KQ = 's96', 's97', 's98', 's99', 's100', 's101'
    def add_wot(sc):
        va, vb = R(v_wt[0]), R(v_wt[1])
        for i in range(8):
            at = 3 + 8 * burst + burst * i
            if i == 0:
                for l in mksrd(p, QZ, 'wo', 0x800000): sc.place(at, l)
            sc.place(at, 's_add_u32 s26, %s, %d' % (SB_SRC, i * 4 * 2048))
            sc.place(at, 's_add_u32 m0, %s, %d' % (SB_LDS, i * 1024))
            sc.place(at, 'buffer_load_dwordx4 %s, %s, s26 offen lds' % (va, SR(QZ)), 'wot')
        at0 = 16 * 12 + 1
        sc.place(at0, lambda p: p.wait_tag('wot'))
        for N in range(8):
            reg = XR[N]
            at = at0 + 4 * N
            for e in range(2):
                off = e * 4096 + (N // 2) * 256 + (N % 2) * 8
                sc.place(at, 'ds_read_b64_tr_b16 %s, %s offset:%d' % (R(reg, 2 * e, 2), vb, off))
            sc.place(at + 5, 's_add_u32 s26, %s, 0x%x' % (SB_DST, (N // 4) * 4096))
            sc.place(at + 5, 'buffer_store_dwordx4 %s, %s, s[8:11], s26 offen offset:%d %s' % (R(reg, 0, 4), R(v_l16), (N % 4) * 1024, ost))
    def setup_B():
        va, vb = R(v_wt[0]), R(v_wt[1])
        LB = 4096
        r_, g_, c_ = R(v_t[0]), R(v_t[1]), R(v_t[2])
        p('v_bfe_u32 %s, %s, 2, 2' % (r_, lane)); p('v_lshrrev_b32 %s, 4, %s' % (g_, lane)); p('v_and_b32 %s, 3, %s' % (c_, lane))
        p('v_lshlrev_b32 %s, 6, %s' % (va, g_)); p('v_lshl_add_u32 %s, %s, 4, %s' % (va, c_, va)); p('v_lshl_add_u32 %s, %s, 11, %s' % (va, r_, va))
        p('s_sub_u32 %s, s3, 4' % SB_W)
        p('s_lshr_b32 %s, s2, 1' % SB_SRC); p('s_lshl_b32 s27, %s, 13' % SB_SRC); p('s_lshl_b32 %s, %s, 16' % (SB_SRC, SB_SRC))
        p('s_and_b32 %s, s2, 1' % SB_DST); p('s_lshl_b32 %s, %s, 2' % (SB_DST, SB_DST)); p('s_add_u32 %s, %s, %s' % (SB_DST, SB_DST, SB_W))
        p('s_lshl_b32 %s, %s, 8' % (SB_LDS, SB_DST)); p('s_add_u32 %s, %s, %s' % (SB_SRC, SB_SRC, SB_LDS))
        p('s_mul_i32 %s, %s, %d' % (SB_DST, SB_DST, W_STRIDE)); p('s_add_u32 %s, %s, s27' % (SB_DST, SB_DST)); p('s_add_u32 %s, %s, 0x%x' % (SB_DST, SB_DST, WS_WOF))
        p('s_lshl_b32 %s, %s, 13' % (SB_LDS, SB_W))
        p('s_add_u32 %s, %s, %d' % (SB_LDS, SB_LDS, LB))
        p('v_lshlrev_b32 %s, 6, %s' % (vb, r_))
        p('v_lshl_add_u32 %s, %s, 4, %s' % (vb, c_, vb))
        p('v_lshl_add_u32 %s, %s, 10, %s' % (vb, g_, vb))
        p('v_add_u32 %s, %s, %s' % (vb, SB_LDS, vb))
        p('s_and_b32 %s, s2, 63' % SB_STRIP); p('s_lshr_b32 %s, s2, 6' % SB_KQ)
    def add_modcols(sc):
        w = XR
        cs = (mx[0], mx[1]); ma = (mx[0], mx[1] + 8)
        mu = [R(v_hoff), R(v_t[1]), R(v_kvoff), R(v_t[3])]
        ta, tb = R(v_t[4]), R(v_t[5])
        def issue(p):
            for l in mksrd(p, QX, 'c', 2048): p(l)
            for l in mksrd(p, QY, 'wmod', 1024 * 6144 * 2): p(l)
            p('v_lshrrev_b32 %s, 3, %s' % (ta, vid))
            p('v_lshlrev_b32 %s, 4, %s' % (tb, ta))
            p('s_lshl_b32 s26, %s, 9' % SB_KQ)
            p('buffer_load_dwordx4 %s, %s, %s, s26 offen' % (R(ma, 0, 4), tb, SR(QX)))
            p('s_mov_b32 s26, %d' % (8 * 12288))
            p('v_mul_lo_u32 %s, s26, %s' % (ta, ta))
            p('v_and_b32 %s, 7, %s' % (tb, vid))
            p('v_lshl_add_u32 %s, %s, 4, %s' % (ta, tb, ta))
            p('s_mul_i32 s27, %s, %d' % (SB_KQ, 256 * 12288))
            p('s_lshl_b32 s26, %s, 7' % SB_STRIP)
            p('s_add_u32 s27, s27, s26')
            p('s_add_u32 s25, s27, 4096')
        sc.place(1, issue)
        for i in range(8):
            at = 3 + burst * i
            sc.place(at, 's_add_u32 s26, s25, %d' % (i * 12288))
            sc.place(at, 'buffer_load_dwordx4 %s, %s, %s, s26 offen' % (R(w[i], 0, 4), ta, SR(QY)))
        q = L()
        for d in range(4): unpack(q, R(cs, 2 * d), R(cs, 2 * d + 1), R(ma, d))
        for i in range(8): silu(q, R(cs, i), mu[i % 4])
        for i in range(0, 8, 2): rb2(q, R(cs, i), R(cs, i + 1), mu[0])
        for i in range(8):
            for hf in range(2):
                for d in range(2): unpack(q, mu[2 * d], mu[2 * d + 1], R(w[i], 2 * hf + d))
                for e in range(4):
                    if i == 0: q('v_mul_f32 %s, %s, %s' % (R(ma, 4 * hf + e), R(cs, i), mu[e]))
                    else: q('v_fmac_f32 %s, %s, %s' % (R(ma, 4 * hf + e), R(cs, i), mu[e]))
        for e in range(4): q('v_permlane32_swap_b32 %s, %s' % (R(ma, e), R(ma, 4 + e)))
        for e in range(4): q('v_add_f32 %s, %s, %s' % (R(ma, e), R(ma, e), R(ma, 4 + e)))
        for e in range(2): q('v_permlane16_swap_b32 %s, %s' % (R(ma, e), R(ma, 2 + e)))
        for e in range(2): q('v_add_f32 %s, %s, %s' % (R(ma, e), R(ma, e), R(ma, 2 + e)))
        for e in range(2): ror_add(q, R(ma, e), 8)
        q('v_lshrrev_b32 %s, 6, %s' % (ta, vid))
        q('v_lshlrev_b32 %s, 8, %s' % (ta, ta))
        q('v_lshl_add_u32 %s, %s, 5, %s' % (ta, tb, ta))
        q('v_bfe_u32 %s, %s, 4, 2' % (tb, vid))
        q('v_lshl_add_u32 %s, %s, 3, %s' % (ta, tb, ta))
        q('ds_write_b64 %s, %s' % (ta, R(ma, 0, 2)))
        lo, hi = 16 * 9, 16 * 12 - 1
        for i, o in enumerate(q.l): sc.place(lo + (i * (hi - lo)) // len(q.l), o)
        sc.place(hi + 4, 's_waitcnt lgkmcnt(0)')
        def fin(p):
            p('v_lshlrev_b32 %s, 2, %s' % (ta, lane))
            for i in range(4): p('ds_read_b32 %s, %s offset:%d' % (R(ma, i), ta, i * 256))
        sc.place(16 * 13 + 2, fin)
        def fin2(p):
            for i in range(2): p('v_add_f32 %s, %s, %s' % (R(ma, i), R(ma, i), R(ma, 2 + i)))
            p('v_add_f32 %s, %s, %s' % (R(ma, 0), R(ma, 0), R(ma, 1)))
            p('s_lshl_b32 s26, %s, 14' % SB_KQ)
            p('s_lshl_b32 s27, %s, 8' % SB_STRIP)
            p('s_add_u32 s26, s26, s27')
            p('s_add_u32 s26, s26, 0x%x' % WS_MODP2)
            p('s_cmp_eq_u32 s3, 4'); p('s_cselect_b32 s26, s26, 0x7ffffff0')
            p('buffer_store_dword %s, %s, s[8:11], s26 offen sc1' % (R(ma, 0), ta))
        sc.place(16 * 13 + 8, fin2)

    def phase1(role):
        A_ = role == 'A'
        p('s_barrier')
        p.stamp(7)
        wait_h(role)
        p.stamp(8)
        for s in range(2):
            for t in range(4):
                for it, tag in hload(s, t): p(it, tag)
        if A_:
            for s in range(wq_early, 3):
                for it, tag in dma_wq(s): p(it, tag)
        else:
            setup_B()
        if A_: p.wait_tag('wq0')
        p('s_barrier')
        p.stamp(9)
        for f in range(D1):
            for x in trread(f): p(x)
        sc = Sched()
        hnext = [8]
        for f in range(256):
            s, t, dt = f // 16, (f // 4) % 4, f % 4
            T, n = (f // 8) % 2, f % 8
            for qs in range(2):
                d = R(acc[n // 2], (n % 2) * 8 + qs * 4, 4)
                idx = sc.mfma('v_mfma_f32_16x16x32_bf16 %s, %s, %s, %s' % (d, R(fr[f % NRA], 0, 4), R(H[s % NH][T * 2 + qs], 0, 4), '0' if f < 8 else d))
            g = f + D1
            if g < 256:
                if g % 16 == 0:
                    sn = g // 16
                    if A_: sc.place(idx, lambda p, sn=sn: p.wait_tag('wq%d' % sn))
                    sc.place(idx, 's_barrier')
                    if A_:
                        if sn == 11: sc.place(idx + 1, kv_flag_loads)
                        if sn + 2 == 16: sc.place(idx, kv_flag_check)
                        nxt = dma_wq(sn + 2) if sn + 2 < 16 else dma_kv(sn + 2 - 16)
                        for i in range(4):
                            for it, tag in nxt[3 * i:3 * i + 3]: sc.place(idx + (1 + 2 * i) * 2, it, tag)
                tr = trread(g)
                if g % 16 != 0:
                    sc.place(idx - 1, tr[0]); sc.place(idx, tr[1])
                else:
                    for x in tr: sc.place(idx, x)
            if dt in (1, 3):
                lim = min(64, (s + NH - 1) * 4 + t + 1)
                if hnext[0] < lim:
                    for it, tag in hload(hnext[0] // 4, hnext[0] % 4): sc.place(idx, it, tag)
                    hnext[0] += 1
            if A_ and s >= 14 and t >= 2:
                j = 2 + (s - 14) * 2 + (t - 2)
                for it, tag in dma_kv(j)[3 * dt:3 * dt + 3]: sc.place(idx, it, tag)
        if not A_: add_kv(sc)
        sc.emit(p)
        p.stamp(10)
        p('s_mov_b32 s24, 0x%x' % f2u((128 ** -0.5) * math.log2(math.e)))
        for dt in range(4):
            for r in range(0, 16, 2):
                ta, tb = R(v_t[(r // 2 % 2) * 2]), R(v_t[(r // 2 % 2) * 2 + 1])
                p('v_mul_f32 %s, s24, %s' % (ta, R(acc[dt], r)))
                p('v_mul_f32 %s, s24, %s' % (tb, R(acc[dt], r + 1)))
                dst = R(qf[((r // 4) % 2) * 4 + dt], (r // 8) * 2 + (r % 4) // 2)
                p('v_cvt_pk_bf16_f32 %s, %s, %s' % (dst, ta, tb))
        p('v_add_u32 %s, 0x10000, %s' % (R(v_l16b), R(v_l16)))
        p('v_add_u32 %s, 0x20000, %s' % (R(v_l16c), R(v_l16)))

    v_l16b = v_wqoff; v_l16c = v_tr
    def kaddr(j, t): return KV_RING + (j % NKV) * 16384 + t * 1024
    def vaddr(j, n): return KV_RING + (j % NKV) * 16384 + 8192 + n * 1024
    def lds_read(dst, addr):
        if addr >= 0x20000: return 'ds_read_b128 %s, %s offset:%d' % (R(dst, 0, 4), R(v_l16c), addr - 0x20000)
        return 'ds_read_b128 %s, %s offset:%d' % (R(dst, 0, 4), R(v_l16b), addr - 0x10000)
    def softmax_ops(j, sub, first):
        ops = []
        s = S[j % 2]
        for r in range(0, 16, 2):
            a, qs = r // 8, (r // 4) % 2
            if sub:
                ops.append('v_add_f32 %s, %s, %s' % (R(s, r), R(s, r), R(negm, 4 * qs)))
                ops.append('v_add_f32 %s, %s, %s' % (R(s, r + 1), R(s, r + 1), R(negm, 4 * qs)))
            ops.append('v_exp_f32 %s, %s' % (R(s, r), R(s, r)))
            ops.append('v_exp_f32 %s, %s' % (R(s, r + 1), R(s, r + 1)))
            if first and r % 4 == 0 and a == 0:
                ops.append('v_add_f32 %s, %s, %s' % (R(v_l[qs]), R(s, r), R(s, r + 1)))
            else:
                ops.append('v_add_f32 %s, %s, %s' % (R(v_l[qs]), R(v_l[qs]), R(s, r)))
                ops.append('v_add_f32 %s, %s, %s' % (R(v_l[qs]), R(v_l[qs]), R(s, r + 1)))
            ops.append('v_cvt_pk_bf16_f32 %s, %s, %s' % (R(P[j % 2][qs], a * 2 + (r % 4) // 2), R(s, r), R(s, r + 1)))
        return ops
    def xl_red(m, m2, op):
        return ['v_mov_b32 %s, %s' % (m2, m), 'v_permlane16_swap_b32 %s, %s' % (m, m2), '%s %s, %s, %s' % (op, m, m, m2),
                'v_mov_b32 %s, %s' % (m2, m), 'v_permlane32_swap_b32 %s, %s' % (m, m2), '%s %s, %s, %s' % (op, m, m, m2)]
    def finish_max(ms, m2s):
        ops = []
        a, b = xl_red(ms[0], m2s[0], 'v_max_f32'), xl_red(ms[1], m2s[1], 'v_max_f32')
        for x, y in zip(a, b): ops += [x, y]
        for r in range(8): ops.append('v_sub_f32 %s, 0, %s' % (R(negm, r), ms[r // 4]))
        return ops
    def mf_k(j, i, f, cz):
        T, a = i // 2, i % 2
        out = []
        for qs in range(2):
            d = R(S[j % 2], (a * 2 + qs) * 4, 4)
            c = d if T > 0 else ('0' if cz else R(negm, 4 * qs, 4))
            out.append('v_mfma_f32_16x16x32_bf16 %s, %s, %s, %s' % (d, f, R(qf[qs * 4 + T], 0, 4), c))
        return out
    def mf_v(j, n, f, cz):
        out = []
        for qs in range(2):
            d = R(acc[n // 2], (n % 2) * 8 + qs * 4, 4)
            out.append('v_mfma_f32_16x16x32_bf16 %s, %s, %s, %s' % (d, f, R(P[j % 2][qs], 0, 4), '0' if cz else d))
        return out

    def phase2(role):
        seq = [('k', 0, t) for t in range(8)] + [('k', 1, t) for t in range(8)]
        marks = {}
        for j in range(1, 17):
            marks[j] = len(seq)
            if j + 1 < 16: seq += [('k', j + 1, t) for t in range(8)]
            seq += [('v', j - 1, i) for i in range(8)]
        marks[17] = len(seq)
        sc0 = Sched()
        for n, (k, j, i) in enumerate(seq):
            f = R(fr[n % NRA], 0, 4)
            for m_ in (mf_k(j, i, f, j < 2) if k == 'k' else mf_v(j, i, f, j == 0)): sc0.mfma(m_)
        class SC:
            def place(self, at, item, tag=None): sc0.place(2 * at + 1 if at >= 0 else -1, item, tag)
            def emit(self, p): sc0.emit(p)
        sc = SC()
        ready = set()
        for n, (k, j, i) in enumerate(seq):
            at = n - D2 if n - D2 >= 0 else -1
            if k == 'k' and j not in ready:
                ready.add(j)
                if role == 'A': sc.place(at, lambda p, j=j: p.wait_tag('kv%d' % j))
                sc.place(at, 's_barrier')
                if endprio and role == endprio[0] and j == endprio[1]: sc.place(at, 's_setprio 3')
                jn = j + 2
                if role == 'A' and j >= 4 and jn < 16:
                    nxt = dma_kv(jn)
                    for q in range(4):
                        for it, tag in nxt[3 * q:3 * q + 3]: sc.place(at + 1 + 2 * q, it, tag)
            sc.place(at, lds_read(fr[n % NRA], kaddr(j, i) if k == 'k' else vaddr(j, i)))
        ms, m2s = [R(v_t[0]), R(v_t[1])], [R(v_t[2]), R(v_t[3])]
        ops = []
        for qs in range(2):
            rg = [R(S[0], (a * 2 + qs) * 4 + k) for a in range(2) for k in range(4)]
            ops.append('v_max3_f32 %s, %s, %s, %s' % (ms[qs], rg[0], rg[1], rg[2]))
            for i in range(3, 7, 2): ops.append('v_max3_f32 %s, %s, %s, %s' % (ms[qs], ms[qs], rg[i], rg[i + 1]))
            ops.append('v_max_f32 %s, %s, %s' % (ms[qs], ms[qs], rg[7]))
        for i, o in enumerate(ops): sc0.place(22 + i, o)
        ops = []
        for qs in range(2):
            rg = [R(S[1], (a * 2 + qs) * 4 + k) for a in range(2) for k in range(4)]
            for i in range(0, 8, 2): ops.append('v_max3_f32 %s, %s, %s, %s' % (ms[qs], ms[qs], rg[i], rg[i + 1]))
        ops += finish_max(ms, m2s) + softmax_ops(0, True, True)
        for o in ops: sc.place(15, o)
        for j in range(1, 16):
            lo, hi = 2 * marks[j], 2 * marks[j + 1] - 1
            ops = softmax_ops(j, j < 2, False)
            nm = hi - lo + 1
            for i, o in enumerate(ops): sc0.place(lo + min(nm - 1, (i * nm) // len(ops)), o)
        if role == 'B':
            add_modcols(sc)
            add_wot(sc)
            def pfsetup(p):
                p('s_lshl_b32 s27, s2, 12')
                p('v_lshrrev_b32 %s, 6, %s' % (R(v_pf), vid))
                p('v_lshlrev_b32 %s, 10, %s' % (R(v_pf), R(v_pf)))
                p('v_lshl_add_u32 %s, %s, 7, %s' % (R(v_pf), lane, R(v_pf)))
                p('v_add_u32 %s, s27, %s' % (R(v_pf), R(v_pf)))
                p('v_cmp_gt_u32 vcc, 8, %s' % lane)
                p('v_bfrev_b32 %s, -2' % R(v_pfd))
                p('v_cndmask_b32 %s, %s, %s, vcc' % (R(v_pf), R(v_pfd), R(v_pf)))
            sc.place(2, pfsetup)
            items = [(b, i * 0x100000) for b in pf_list for i in range(7)]
            lo, hi = marks[max(1, pf_lo)], marks[15]
            last = None
            for i, (b, off) in enumerate(items):
                at = lo + (i * (hi - lo)) // len(items)
                if b != last:
                    for l in mksrd(p, QX, b, 7340032): sc.place(at, l)
                    last = b
                sc.place(at, 's_mov_b32 s26, 0x%x' % off)
                sc.place(at, 'buffer_load_dword %s, %s, %s, s26 offen' % (R(v_pfd), R(v_pf), SR(QX)), 'pf')
        sc.emit(p)

    p('s_cmp_ge_u32 s3, 4')
    p('s_cbranch_scc1 %s_roleB' % name)
    p.alt_begin()
    front_A(); phase1('A'); phase2('A')
    p('s_branch %s_chk' % name)
    p.alt_next()
    p.label('%s_roleB' % name)
    front_B(); phase1('B'); phase2('B')
    p.alt_end()
    p.label('%s_chk' % name)
    p.stamp(11)
    l0, l1 = R(v_l[0]), R(v_l[1])
    for x, y in zip(xl_red(l0, R(v_t[0]), 'v_add_f32'), xl_red(l1, R(v_t[2]), 'v_add_f32')): p(x); p(y)
    mo = [R(v_t[1]), R(v_t[3])]
    regs = [R(acc[dt], r) for dt in range(4) for r in range(16)]
    p('v_max3_f32 %s, |%s|, |%s|, %s' % (mo[0], regs[0], regs[1], l0))
    p('v_max3_f32 %s, |%s|, |%s|, %s' % (mo[1], regs[2], regs[3], l1))
    for i in range(4, 64, 2): p('v_max3_f32 %s, |%s|, |%s|, %s' % (mo[i // 2 % 2], regs[i], regs[i + 1], mo[i // 2 % 2]))
    p('v_max_f32 %s, %s, %s' % (mo[0], mo[0], mo[1]))
    p('s_mov_b32 s26, 0x%x' % f2u(2.0 ** 120))
    p('v_cmp_ngt_f32 vcc, s26, %s' % mo[0])
    p('v_cmp_u_f32 s[26:27], %s, %s' % (l0, l1))
    p('s_or_b64 vcc, vcc, s[26:27]')
    p('s_cbranch_vccnz %s_slow' % name)
    p.label('%s_epi' % name)
    rl = [R(v_t[0]), R(v_t[2])]
    p('v_rcp_f32 %s, %s' % (rl[0], l0)); p('v_rcp_f32 %s, %s' % (rl[1], l1))
    p('s_lshl_b32 s19, s13, 3'); p('s_add_u32 s19, s19, s3')
    p('s_mul_i32 s20, s19, %d' % (2 * O_STRIDE))
    p('s_lshl_b32 s25, s12, 12')
    p('s_add_u32 s20, s20, s25')
    p('s_add_u32 s20, s20, 0x%x' % WS_O)
    p('s_add_u32 s25, s20, %d' % O_STRIDE)
    for T in range(4):
        for qs in range(2):
            o = S[qs]
            for b in range(2):
                for k in range(4): p('v_mul_f32 %s, %s, %s' % (R(o, 8 + 4 * b + k), R(acc[T], b * 8 + qs * 4 + k), rl[qs]))
            for r in range(0, 8, 2): p('v_cvt_pk_bf16_f32 %s, %s, %s' % (R(o, r // 2), R(o, 8 + r), R(o, 8 + r + 1)))
            p('buffer_store_dwordx4 %s, %s, s[8:11], %s offen offset:%d %s' % (R(o, 0, 4), R(v_l16), 's25' if qs else 's20', T * 1024, ost))
    if stage == 1:
        p('s_or_b32 s26, s2, s3')
        p('s_cmp_eq_u32 s26, 0'); p('s_mov_b32 s26, 0x%x' % WS_EPOCH); p('s_cselect_b32 s26, s26, 0x7ffffff0')
        p('v_mov_b32 %s, s14' % R(v_t[0])); p('v_mov_b32 %s, 0' % R(v_t[1]))
        p('s_mov_b64 exec, 1')
        p('buffer_store_dword %s, %s, s[8:11], s26 offen sc1' % (R(v_t[0]), R(v_t[1])))
        p('s_mov_b64 exec, -1')
    p('s_branch %s_end' % name)

    p.label('%s_slow' % name)
    p.flush()
    p('s_cmp_eq_u32 s15, 0x7777')
    p('s_cbranch_scc1 %s_epi' % name)
    p('s_mov_b32 s15, 0x7777')
    p('v_add_u32 %s, s18, %s' % (R(v_kvoff), R(v_l16)))
    ms, m2s = [R(v_t[0]), R(v_t[1])], [R(v_t[2]), R(v_t[3])]
    p('v_mov_b32 %s, 0xff7fffff' % ms[0]); p('v_mov_b32 %s, 0xff7fffff' % ms[1])
    p('s_mov_b32 s22, 0')
    KF = XR
    p.loop_begin()
    p.label('%s_s1' % name)
    p('s_add_u32 s23, s22, 4096')
    for t in range(8):
        p('buffer_load_dwordx4 %s, %s, s[8:11], %s offen offset:%d sc1' % (R(KF[t], 0, 4), R(v_kvoff), 's22' if t < 4 else 's23', (t % 4) * 1024))
    for t in range(8):
        for m_ in mf_k(0, t, R(KF[t], 0, 4), True): p(m_)
    for r in range(0, 16, 2): p('v_max3_f32 %s, %s, %s, %s' % (ms[(r // 4) % 2], ms[(r // 4) % 2], R(S[0], r), R(S[0], r + 1)))
    p('s_add_u32 s22, s22, 16384')
    p('s_cmp_lt_u32 s22, 0x40000')
    p('s_cbranch_scc1 %s_s1' % name)
    p.loop_end()
    for o in finish_max(ms, m2s): p(o)
    for dt in range(4):
        for r in range(16): p('v_mov_b32 %s, 0' % R(acc[dt], r))
    p('v_mov_b32 %s, 0' % l0); p('v_mov_b32 %s, 0' % l1)
    p('s_mov_b32 s22, 0')
    p.loop_begin()
    p.label('%s_s2' % name)
    p('s_add_u32 s23, s22, 4096')
    for t in range(8):
        p('buffer_load_dwordx4 %s, %s, s[8:11], %s offen offset:%d sc1' % (R(KF[t], 0, 4), R(v_kvoff), 's22' if t < 4 else 's23', (t % 4) * 1024))
    for t in range(8):
        for m_ in mf_k(0, t, R(KF[t], 0, 4), False): p(m_)
    p('s_add_u32 s26, s22, 8192')
    p('s_add_u32 s23, s22, 12288')
    for t in range(8):
        p('buffer_load_dwordx4 %s, %s, s[8:11], %s offen offset:%d sc1' % (R(KF[t], 0, 4), R(v_kvoff), 's26' if t < 4 else 's23', (t % 4) * 1024))
    for o in softmax_ops(0, False, False): p(o)
    for i in range(8):
        for m_ in mf_v(0, i, R(KF[i], 0, 4), False): p(m_)
    p('s_add_u32 s22, s22, 16384')
    p('s_cmp_lt_u32 s22, 0x40000')
    p('s_cbranch_scc1 %s_s2' % name)
    p.loop_end()
    p.flush()
    p('s_branch %s_chk' % name)
    p.label('%s_end' % name)
    p('s_endpgm')
    body = p.emit()
    return body, dict(vgpr=nv, accum=(nv + 3) // 4 * 4, sgpr=102, lds=163840, block=512, grid=256)
```

```python
from asmdsl import Prog, Inst
from layout import *
import math

class RA:
    def __init__(self, kind, start, limit):
        self.kind, self.n, self.limit = kind, start, limit
    def alloc(self, n, align=1):
        self.n = (self.n + align - 1) // align * align
        b = self.n; self.n += n
        assert self.n <= self.limit, (self.kind, self.n)
        return (self.kind, b)

def R(reg, off=0, n=1):
    k, b = reg
    if n == 1: return '%s%d' % (k, b + off)
    return '%s[%d:%d]' % (k, b + off, b + off + n - 1)

class Sched:
    def __init__(self):
        self.m = []
        self.after = {}
    def mfma(self, text):
        self.m.append(text); return len(self.m) - 1
    def place(self, idx, item, tag=None):
        self.after.setdefault(idx, []).append((item, tag))
    def emit(self, p, lo=None, hi=None):
        lo = -10**9 if lo is None else lo
        keys = sorted(k for k in self.after if k < 0)
        for k in keys:
            for it, tag in self.after[k]: self._one(p, it, tag)
        for i, m in enumerate(self.m):
            p(m)
            for it, tag in self.after.get(i, []): self._one(p, it, tag)
        for k in sorted(k for k in self.after if k >= len(self.m)):
            for it, tag in self.after[k]: self._one(p, it, tag)
    def _one(self, p, it, tag):
        if callable(it): it(p)
        else: p(it, tag)

def gen_k2(name='k2_kernel', NW=8, NQ=1, D1=4, D2=4, stamps=False, phase2=True, prefetch=True, modcols=True):
    assert NW * NQ == 8
    p = Prog()
    big = (NQ == 2)
    V = RA('v', 0, 256)
    A = RA('a', 0, 256) if big else V
    v_tid = V.alloc(1)
    v_l16 = V.alloc(1)
    v_wqoff = V.alloc(1)
    v_tr = V.alloc(1)
    v_hoff = [V.alloc(1) for _ in range(NQ)]
    v_kvoff = V.alloc(1)
    v_pf = V.alloc(1); v_pfd = V.alloc(1); v_id = V.alloc(1)
    v_t = [V.alloc(1) for _ in range(6)]
    v_l = [[V.alloc(1) for _ in range(2)] for _ in range(NQ)]
    acc = [[A.alloc(16, 4) for _ in range(4)] for _ in range(NQ)]
    NRA = max(D1, D2) + 2
    fr = [A.alloc(4, 4) for _ in range(NRA)]
    qf = [[A.alloc(4, 4) for _ in range(8)] for _ in range(NQ)]
    S = [[V.alloc(16, 4) for _ in range(NQ)] for _ in range(2)]
    negm = [V.alloc(16, 4) for _ in range(NQ)]
    P = [[[V.alloc(4, 4) for _ in range(2)] for _ in range(NQ)] for _ in range(2)]
    H = [[[V.alloc(4, 4) for _ in range(4)] for _ in range(NQ)] for _ in range(2)]
    nv = V.n; na = A.n if big else 0

    PPW = 16 // NW
    WQ_RING = 0
    KV_RING = 65536
    NKV = 6

    p('s_cmp_ge_u32 s2, 256')
    p('s_cbranch_scc1 %s_end' % name)
    p('s_load_dwordx2 s[4:5], s[0:1], %d' % KA['wq'])
    p('s_load_dwordx2 s[8:9], s[0:1], %d' % KA['ws'])
    if prefetch:
        for i, b in enumerate(('wo',)):
            p('s_load_dwordx2 s[%d:%d], s[0:1], %d' % (28 + 4 * i, 29 + 4 * i, KA[b]))
            p('s_mov_b32 s%d, %d' % (30 + 4 * i, 8388608 if b == 'wo' else 7340032))
            p('s_mov_b32 s%d, 0x20000' % (31 + 4 * i))
        p('s_lshl_b32 s3, s2, 11')
        p('v_lshrrev_b32 %s, 6, v0' % R(v_pf))
        p('v_lshlrev_b32 %s, 8, %s' % (R(v_pf), R(v_pf)))
        p('v_and_b32 %s, 63, v0' % R(v_pfd))
        p('v_lshl_add_u32 %s, %s, 7, %s' % (R(v_pf), R(v_pfd), R(v_pf)))
        p('v_add_u32 %s, s3, %s' % (R(v_pf), R(v_pf)))
        p('v_cmp_gt_u32 vcc, 2, %s' % R(v_pfd))
        p('v_bfrev_b32 %s, -2' % R(v_pfd))
        p('v_cndmask_b32 %s, %s, %s, vcc' % (R(v_pf), R(v_pfd), R(v_pf)))
    if modcols:
        p('s_load_dwordx4 s[44:47], s[0:1], %d' % KA['c'])
        p('s_load_dwordx2 s[56:57], s[0:1], %d' % KA['wr'])
        p('v_mov_b32 %s, v0' % R(v_id))
        p('v_cmp_gt_u32 s[60:61], 16, v0')
    if stamps:
        p('s_load_dwordx2 s[40:41], s[0:1], %d' % KA['dbg'])
        p('s_memtime s[44:45]')
    p('s_and_b32 s12, s2, 3')
    p('s_lshl_b32 s12, s12, 3')
    p('s_bfe_u32 s13, s2, 0x30003')
    p('s_add_u32 s12, s12, s13')
    p('s_bfe_u32 s13, s2, 0x10002')
    p('s_lshl_b32 s13, s13, 2')
    p('s_lshr_b32 s14, s2, 6')
    p('s_add_u32 s13, s13, s14')
    p('v_lshrrev_b32 %s, 6, v0' % R(v_t[0]))
    p('v_and_b32 %s, 63, v0' % R(v_tid))
    p('v_readfirstlane_b32 s15, %s' % R(v_t[0]))
    lane = R(v_tid)
    p('v_lshlrev_b32 %s, 4, %s' % (R(v_l16), lane))
    p('v_bfe_u32 %s, %s, 2, 2' % (R(v_t[0]), lane))
    p('v_lshlrev_b32 %s, 13, %s' % (R(v_t[0]), R(v_t[0])))
    p('v_lshrrev_b32 %s, 4, %s' % (R(v_t[1]), lane))
    p('v_lshl_add_u32 %s, %s, 6, %s' % (R(v_t[0]), R(v_t[1]), R(v_t[0])))
    p('v_and_b32 %s, 3, %s' % (R(v_t[2]), lane))
    p('v_lshl_add_u32 %s, %s, 4, %s' % (R(v_wqoff), R(v_t[2]), R(v_t[0])))
    p('v_lshrrev_b32 %s, 5, %s' % (R(v_t[0]), lane))
    p('v_lshlrev_b32 %s, 11, %s' % (R(v_t[0]), R(v_t[0])))
    p('v_bfe_u32 %s, %s, 2, 2' % (R(v_t[1]), lane))
    p('v_lshl_add_u32 %s, %s, 6, %s' % (R(v_t[0]), R(v_t[1]), R(v_t[0])))
    p('v_bfe_u32 %s, %s, 4, 1' % (R(v_t[1]), lane))
    p('v_lshl_add_u32 %s, %s, 5, %s' % (R(v_t[0]), R(v_t[1]), R(v_t[0])))
    p('v_lshl_add_u32 %s, %s, 3, %s' % (R(v_tr), R(v_t[2]), R(v_t[0])))
    p('s_lshl_b32 s16, s12, 8')
    p('s_add_u32 s4, s4, s16')
    p('s_addc_u32 s5, s5, 0')
    p('s_sub_u32 s6, 0x800000, s16')
    p('s_mov_b32 s7, 0x20000')
    p('s_mov_b32 s10, 0x%x' % WS_SIZE)
    p('s_mov_b32 s11, 0x20000')
    p('s_lshl_b32 s17, s13, 3')
    p('s_mul_i32 s18, s15, %d' % NQ)
    p('s_add_u32 s17, s17, s18')
    for q in range(NQ):
        p('s_add_u32 s18, s17, %d' % q)
        p('s_lshl_b32 s18, s18, 16')
        p('v_add_u32 %s, s18, %s' % (R(v_hoff[q]), R(v_l16)))
    p('s_mul_i32 s19, s15, %d' % (PPW * 32768))
    p('s_mul_i32 s20, s15, %d' % (PPW * 1024))
    p('s_lshr_b32 s21, s12, 3')
    p('s_lshl_b32 s21, s21, 18')
    p('s_add_u32 s21, s21, s20')
    p('s_add_u32 s21, s21, 0x%x' % WS_KV)
    p('v_add_u32 %s, s21, %s' % (R(v_kvoff), R(v_l16)))

    def dma_wq(s):
        out = []
        for i in range(PPW):
            out.append(('s_add_u32 s22, s19, 0x%x' % (s * 64 * 8192 + i * 32768), None))
            out.append(('s_add_u32 m0, s20, 0x%x' % (WQ_RING + (s % 4) * 16384 + i * 1024), None))
            out.append(('buffer_load_dwordx4 %s, s[4:7], s22 offen lds' % R(v_wqoff), 'wq%d' % s))
        return out
    def dma_kv(j):
        out = []
        for i in range(PPW):
            out.append(('s_mov_b32 s22, 0x%x' % (j * 16384 + i * 1024), None))
            out.append(('s_add_u32 m0, s20, 0x%x' % (KV_RING + (j % NKV) * 16384 + i * 1024), None))
            out.append(('buffer_load_dwordx4 %s, s[8:11], s22 offen lds' % R(v_kvoff), 'kv%d' % j))
        return out
    def hload(s, q, t):
        return [('s_mov_b32 s23, 0x%x' % (WS_H + s * 4096), None),
                ('buffer_load_dwordx4 %s, %s, s[8:11], s23 offen offset:%d' % (R(H[s % 2][q][t], 0, 4), R(v_hoff[q]), t * 1024), None)]
    def trread(f):
        s, t, dt = f // 16, (f // 4) % 4, f % 4
        base = WQ_RING + (s % 4) * 16384 + t * 4096 + dt * 256
        r = fr[f % NRA]
        return ['ds_read_b64_tr_b16 %s, %s offset:%d' % (R(r, 0, 2), R(v_tr), base),
                'ds_read_b64_tr_b16 %s, %s offset:%d' % (R(r, 2, 2), R(v_tr), base + 1024)]

    for s in range(2):
        for it, tag in dma_wq(s): p(it, tag)
        for q in range(NQ):
            for t in range(4):
                for it, tag in hload(s, q, t): p(it, tag)
    for it, tag in dma_wq(2): p(it, tag)
    p.wait_tag('wq0')
    p('s_barrier')
    p.stamp(0)
    for f in range(D1):
        for x in trread(f): p(x)
    sc = Sched()
    for f in range(256):
        s, t, dt = f // 16, (f // 4) % 4, f % 4
        for q in range(NQ):
            c = '0' if (s == 0 and t == 0) else R(acc[q][dt], 0, 16)
            idx = sc.mfma('v_mfma_f32_32x32x16_bf16 %s, %s, %s, %s' % (R(acc[q][dt], 0, 16), R(fr[f % NRA], 0, 4), R(H[s % 2][q][t], 0, 4), c))
        g = f + D1
        if g < 256:
            if g % 16 == 0:
                sn = g // 16
                sc.place(idx, lambda p, sn=sn: p.wait_tag('wq%d' % sn))
                sc.place(idx, 's_barrier')
                nxt = dma_wq(sn + 2) if sn + 2 < 16 else dma_kv(sn + 2 - 16)
                for i in range(PPW):
                    for it, tag in nxt[3 * i:3 * i + 3]: sc.place(idx + 1 + 2 * i * NQ, it, tag)
            for x in trread(g): sc.place(idx, x)
        if dt == 3 and s + 2 < 16:
            for q in range(NQ):
                for it, tag in hload(s + 2, q, t): sc.place(idx, it, tag)
        if dt == 3 and s >= 14 and t >= 2:
            j = 2 + (s - 14) * 2 + (t - 2)
            for it, tag in dma_kv(j): sc.place(idx, it, tag)
    if modcols:
        from small import silu, rb1, rb2, unpack, ror_add
        class L:
            def __init__(self): self.l = []
            def __call__(self, t, tag=None): self.l.append(t)
        w = [(S[0][0][0], S[0][0][1] + 4 * i) for i in range(4)]; cs = S[1][0]; ma = (S[1][0][0], S[1][0][1] + 4); mu = (S[1][0][0], S[1][0][1] + 12)
        MLDS = KV_RING + 5 * 16384 - 0x20000
        st0 = lambda s_: s_ * 16 * NQ
        ta, tb = R(v_t[4]), R(v_t[5])
        def issue(p):
            p('s_mov_b64 s[48:49], s[44:45]'); p('s_mov_b32 s50, 2048'); p('s_mov_b32 s51, 0x20000')
            p('s_mov_b64 s[52:53], s[46:47]'); p('s_mov_b32 s54, %d' % (1024 * 6144 * 2)); p('s_mov_b32 s55, 0x20000')
            p('s_mov_b32 s58, 2048'); p('s_mov_b32 s59, 0x20000')
            p('s_and_b32 s62, s2, 7'); p('s_lshl_b32 s62, s62, 5'); p('s_lshr_b32 s63, s2, 3'); p('s_add_u32 s62, s62, s63')
            p('s_lshl_b32 s62, s62, 4'); p('s_add_u32 s62, s62, 2048')
            p('v_lshrrev_b32 %s, 1, %s' % (ta, R(v_id)))
            p('v_lshlrev_b32 %s, 3, %s' % (tb, ta))
            p('buffer_load_dwordx2 %s, %s, s[48:51], 0 offen' % (R(cs, 0, 2), tb))
            p('v_mul_u32_u24 %s, %d, %s' % (ta, 4 * 12288, ta))
            p('v_and_b32 %s, 1, %s' % (tb, R(v_id)))
            p('v_lshl_add_u32 %s, %s, 4, %s' % (ta, tb, ta))
            p('s_lshl_b32 s63, s62, 1')
        sc.place(st0(1) + 5, issue)
        for i in range(4):
            sc.place(st0(1 + 2 * i) + 9, 's_add_u32 s26, s63, %d' % (i * 12288))
            sc.place(st0(1 + 2 * i) + 9, 'buffer_load_dwordx4 %s, %s, s[52:55], s26 offen' % (R(w[i], 0, 4), ta))
        q = L()
        unpack(q, R(cs, 2), R(cs, 3), R(cs, 1)); unpack(q, R(cs, 0), R(cs, 1), R(cs, 0))
        for i in range(4): silu(q, R(cs, i), R(mu, i))
        rb2(q, R(cs, 0), R(cs, 1), R(mu, 0)); rb2(q, R(cs, 2), R(cs, 3), R(mu, 1))
        for i in range(4):
            for hf in range(2):
                for d in range(2): unpack(q, R(mu, 2 * d), R(mu, 2 * d + 1), R(w[i], 2 * hf + d))
                for e in range(4):
                    if i == 0: q('v_mul_f32 %s, %s, %s' % (R(ma, 4 * hf + e), R(cs, i), R(mu, e)))
                    else: q('v_fmac_f32 %s, %s, %s' % (R(ma, 4 * hf + e), R(cs, i), R(mu, e)))
        for e in range(4): q('v_permlane32_swap_b32 %s, %s' % (R(ma, e), R(ma, 4 + e)))
        for e in range(4): q('v_add_f32 %s, %s, %s' % (R(ma, e), R(ma, e), R(ma, 4 + e)))
        for e in range(2): q('v_permlane16_swap_b32 %s, %s' % (R(ma, e), R(ma, 2 + e)))
        for e in range(2): q('v_add_f32 %s, %s, %s' % (R(ma, e), R(ma, e), R(ma, 2 + e)))
        for n in (8, 4, 2):
            for e in range(2): ror_add(q, R(ma, e), n)
        q('v_lshrrev_b32 %s, 6, %s' % (ta, R(v_id)))
        q('v_lshlrev_b32 %s, 6, %s' % (ta, ta))
        q('v_lshl_add_u32 %s, %s, 5, %s' % (ta, tb, ta))
        q('v_bfe_u32 %s, %s, 4, 2' % (tb, R(v_id)))
        q('v_lshl_add_u32 %s, %s, 3, %s' % (ta, tb, ta))
        q('v_add_u32 %s, 0x20000, %s' % (ta, ta))
        lo = st0(10); hi = st0(12) - 1
        for i, o in enumerate(q.l):
            sc.place(lo + (i * (hi - lo)) // len(q.l), o)
        def wr(p):
            p('s_mov_b32 s26, 0x00030003')
            p('s_mov_b32 exec_lo, s26'); p('s_mov_b32 exec_hi, s26')
            p('ds_write_b64 %s, %s offset:%d' % (ta, R(ma, 0, 2), MLDS))
            p('s_mov_b64 exec, -1')
            p('v_add_u32 %s, s62, %s' % (tb, R(v_id)))
            p('v_and_b32 %s, 1023, %s' % (R(mu, 0), tb))
            p('v_lshlrev_b32 %s, 1, %s' % (R(mu, 0), R(mu, 0)))
            p('buffer_load_ushort %s, %s, s[56:59], 0 offen' % (R(mu, 1), R(mu, 0)))
            p('s_waitcnt lgkmcnt(0)')
        sc.place(hi, wr)
        def fin(p):
            p('v_and_b32 %s, 15, %s' % (ta, R(v_id)))
            p('v_lshlrev_b32 %s, 2, %s' % (ta, ta))
            p('v_add_u32 %s, 0x20000, %s' % (ta, ta))
            for i in range(8): p('ds_read_b32 %s, %s offset:%d' % (R(ma, i), ta, MLDS + i * 64))
        sc.place(st0(13) + 2, fin)
        def fin2(p):
            for i in range(4): p('v_add_f32 %s, %s, %s' % (R(ma, i), R(ma, i), R(ma, 4 + i)))
            for i in range(2): p('v_add_f32 %s, %s, %s' % (R(ma, i), R(ma, i), R(ma, 2 + i)))
            a = R(ma, 0)
            p('v_add_f32 %s, %s, %s' % (a, a, R(ma, 1)))
            rb1(p, a)
            p('s_lshr_b32 s63, s62, 10')
            p('s_cmp_eq_u32 s63, 4'); p('s_cselect_b32 s26, 1.0, 0')
            p('v_add_f32 %s, s26, %s' % (a, a))
            rb1(p, a)
            p('v_lshlrev_b32 %s, 2, %s' % (tb, tb))
            p('v_lshlrev_b32 %s, 16, %s' % (R(mu, 1), R(mu, 1)))
            p('v_mul_f32 %s, %s, %s' % (R(mu, 1), a, R(mu, 1)))
            p('s_mov_b32 s26, 0x%x' % WS_MOD)
            p('s_mov_b32 s27, 0x%x' % (WS_MOD + 2 * 4096))
            p('s_cmp_eq_u32 s63, 4'); p('s_cselect_b32 s27, s27, 0x7fffffff')
            p('s_mov_b64 exec, s[60:61]')
            p('buffer_store_dword %s, %s, s[8:11], s26 offen' % (a, tb))
            p('buffer_store_dword %s, %s, s[8:11], s27 offen' % (R(mu, 1), tb))
            p('s_mov_b64 exec, -1')
        sc.place(st0(13) + 8, fin2)
    sc.emit(p)
    if stamps: p('s_memtime s[46:47]')
    p.stamp(1)

    cscale = (128 ** -0.5) * math.log2(math.e)
    import struct
    cbits = struct.unpack('<I', struct.pack('<f', cscale))[0]
    p('s_mov_b32 s24, 0x%x' % cbits)
    for q in range(NQ):
        for dt in range(4):
            for r in range(0, 16, 2):
                t = 2 * dt + r // 8
                dst = R(qf[q][t], (r % 8) // 2)
                a0, a1 = R(acc[q][dt], r), R(acc[q][dt], r + 1)
                if big:
                    p('v_accvgpr_read_b32 %s, %s' % (R(v_t[0]), a0)); p('v_accvgpr_read_b32 %s, %s' % (R(v_t[1]), a1))
                    a0, a1 = R(v_t[0]), R(v_t[1])
                p('v_mul_f32 %s, s24, %s' % (R(v_t[2]), a0))
                p('v_mul_f32 %s, s24, %s' % (R(v_t[3]), a1))
                if big:
                    p('v_cvt_pk_bf16_f32 %s, %s, %s' % (R(v_t[4]), R(v_t[2]), R(v_t[3])))
                    p('v_accvgpr_write_b32 %s, %s' % (dst, R(v_t[4])))
                else:
                    p('v_cvt_pk_bf16_f32 %s, %s, %s' % (dst, R(v_t[2]), R(v_t[3])))

    p.stamp(2)
    def kaddr(j, t): return KV_RING + (j % NKV) * 16384 + t * 1024
    def vaddr(j, u, dt): return KV_RING + (j % NKV) * 16384 + 8192 + (u * 4 + dt) * 1024
    v_l16b = v_wqoff
    p('v_add_u32 %s, 0x10000, %s' % (R(v_l16b), R(v_l16)))
    v_l16c = v_tr
    p('v_add_u32 %s, 0x20000, %s' % (R(v_l16c), R(v_l16)))
    def lds_read(dst, addr):
        if addr >= 0x20000: return 'ds_read_b128 %s, %s offset:%d' % (R(dst, 0, 4), R(v_l16c), addr - 0x20000)
        return 'ds_read_b128 %s, %s offset:%d' % (R(dst, 0, 4), R(v_l16b), addr - 0x10000)

    seq = []
    seq += [('k', 0, t) for t in range(8)]
    seq += [('k', 1, t) for t in range(8)]
    marks = {}
    for j in range(1, 17):
        marks[j] = len(seq)
        if j + 1 < 16: seq += [('k', j + 1, t) for t in range(8)]
        seq += [('v', j - 1, i) for i in range(8)]
    def fragaddr(e):
        k, j, i = e
        return kaddr(j, i) if k == 'k' else vaddr(j, i // 4, i % 4)
    sc = Sched()
    first_m = {}
    last_m = {}
    for n, (k, j, i) in enumerate(seq):
        for q in range(NQ):
            f = R(fr[n % NRA], 0, 4)
            if k == 'k':
                d = R(S[j % 2][q], 0, 16)
                c = d if i > 0 else ('0' if j < 2 else R(negm[q], 0, 16))
                idx = sc.mfma('v_mfma_f32_32x32x16_bf16 %s, %s, %s, %s' % (d, f, R(qf[q][i], 0, 4), c))
            else:
                u, dt = i // 4, i % 4
                d = R(acc[q][dt], 0, 16)
                c = '0' if (j == 0 and u == 0) else d
                idx = sc.mfma('v_mfma_f32_32x32x16_bf16 %s, %s, %s, %s' % (d, f, R(P[j % 2][q][u], 0, 4), c))
            first_m.setdefault(n, idx)
            last_m[n] = idx
    kv_ready = set()
    def need_tile(j, at):
        if j in kv_ready: return
        kv_ready.add(j)
        sc.place(at, lambda p, j=j: p.wait_tag('kv%d' % j))
        sc.place(at, 's_barrier')
        jn = j + 2
        if j >= 4 and jn < 16:
            nxt = dma_kv(jn)
            for i in range(PPW):
                for it, tag in nxt[3 * i:3 * i + 3]: sc.place(at + 1 + 2 * i * NQ, it, tag)
    for n in range(len(seq)):
        at = last_m[n - D2] if n - D2 >= 0 else -1
        k, j, i = seq[n]
        if k == 'k': need_tile(j, at)
        sc.place(at, lds_read(fr[n % NRA], fragaddr(seq[n])))
    def softmax_ops(j, q, sub):
        ops = []
        s = S[j % 2][q]
        for r in range(0, 16, 2):
            if sub:
                ops.append('v_add_f32 %s, %s, %s' % (R(s, r), R(s, r), R(negm[q], 0)))
                ops.append('v_add_f32 %s, %s, %s' % (R(s, r + 1), R(s, r + 1), R(negm[q], 0)))
            ops.append('v_exp_f32 %s, %s' % (R(s, r), R(s, r)))
            ops.append('v_exp_f32 %s, %s' % (R(s, r + 1), R(s, r + 1)))
            if j == 0 and r == 0:
                ops.append('v_mov_b32 %s, %s' % (R(v_l[q][0]), R(s, r)))
                ops.append('v_mov_b32 %s, %s' % (R(v_l[q][1]), R(s, r + 1)))
            else:
                ops.append('v_add_f32 %s, %s, %s' % (R(v_l[q][0]), R(v_l[q][0]), R(s, r)))
                ops.append('v_add_f32 %s, %s, %s' % (R(v_l[q][1]), R(v_l[q][1]), R(s, r + 1)))
            ops.append('v_cvt_pk_bf16_f32 %s, %s, %s' % (R(P[j % 2][q][r // 8], (r % 8) // 2), R(s, r), R(s, r + 1)))
        return ops
    def max_ops(q):
        ops = []
        m = R(v_t[q])
        regs = [R(S[b][q], r) for b in range(2) for r in range(16)]
        ops.append('v_max3_f32 %s, %s, %s, %s' % (m, regs[0], regs[1], regs[2]))
        for i in range(3, 31, 2):
            ops.append('v_max3_f32 %s, %s, %s, %s' % (m, m, regs[i], regs[i + 1]))
        ops.append('v_max_f32 %s, %s, %s' % (m, m, regs[31]))
        m2 = R(v_t[2 + q])
        ops.append('v_mov_b32 %s, %s' % (m2, m))
        ops.append('v_permlane32_swap_b32 %s, %s' % (m, m2))
        ops.append('v_max_f32 %s, %s, %s' % (m, m, m2))
        for r in range(16):
            ops.append('v_sub_f32 %s, 0, %s' % (R(negm[q], r), m))
        return ops
    at = last_m[15]
    for q in range(NQ):
        for o in max_ops(q): sc.place(at, o)
    for q in range(NQ):
        for o in softmax_ops(0, q, True): sc.place(at, o)
    for j in range(1, 16):
        lo = first_m[marks[j]]
        hi = last_m[marks[j + 1] - 1]
        ops = []
        for q in range(NQ): ops += softmax_ops(j, q, j < 2)
        nm = hi - lo + 1
        for i, o in enumerate(ops):
            sc.place(lo + min(nm - 1, (i * nm) // len(ops)), o)
    if prefetch:
        assert NW == 8
        for i in range(16):
            j = min(1 + i, 15)
            at = first_m[marks[j]] + (3 if i < 15 else 7)
            sc.place(at, 's_mov_b32 s26, 0x%x' % ((i % 4) * 0x200000 + (i // 4) * 0x80000))
            sc.place(at, 'buffer_load_dword %s, %s, s[28:31], s26 offen' % (R(v_pfd), R(v_pf)), 'pf')
    if phase2:
        sc.emit(p)
    if stamps: p('s_memtime s[48:49]')
    p.stamp(3)

    p.label('%s_epi' % name)
    for q in range(NQ):
        l0, l1 = R(v_l[q][0]), R(v_l[q][1])
        p('v_add_f32 %s, %s, %s' % (l0, l0, l1))
        p('v_mov_b32 %s, %s' % (l1, l0))
        p('v_permlane32_swap_b32 %s, %s' % (l0, l1))
        p('v_add_f32 %s, %s, %s' % (l0, l0, l1))
        p('v_rcp_f32 %s, %s' % (l1, l0))
        p('s_add_u32 s18, s17, %d' % q)
        p('s_lshl_b32 s18, s18, 18')
        p('s_lshl_b32 s25, s12, 13')
        p('s_add_u32 s18, s18, s25')
        p('s_add_u32 s18, s18, 0x%x' % WS_O)
        p('s_add_u32 s25, s18, 4096')
        for dt in range(4):
            for u in range(2):
                o = S[0][0] if (dt * 2 + u) % 2 == 0 else S[1][0]
                for r in range(8):
                    src = R(acc[q][dt], 8 * u + r)
                    if big:
                        p('v_accvgpr_read_b32 %s, %s' % (R(o, 8 + r), src)); src = R(o, 8 + r)
                    p('v_mul_f32 %s, %s, %s' % (R(o, 8 + r), src, l1))
                for r in range(0, 8, 2):
                    p('v_cvt_pk_bf16_f32 %s, %s, %s' % (R(o, r // 2), R(o, 8 + r), R(o, 8 + r + 1)))
                t = 2 * dt + u
                p('buffer_store_dwordx4 %s, %s, s[8:11], %s offen offset:%d' % (R(o, 0, 4), R(v_l16), 's18' if t < 4 else 's25', (t % 4) * 1024))
    if stamps:
        p('s_waitcnt vmcnt(0)')
        p('s_memtime s[50:51]')
        p('s_waitcnt lgkmcnt(0)')
        p('s_sub_u32 s46, s46, s44'); p('s_sub_u32 s48, s48, s44'); p('s_sub_u32 s50, s50, s44')
        p('s_mov_b32 s42, 256'); p('s_mov_b32 s43, 0x20000')
        p('v_mov_b32 %s, s46' % R(S[0][0], 0)); p('v_mov_b32 %s, s48' % R(S[0][0], 1)); p('v_mov_b32 %s, s50' % R(S[0][0], 2)); p('v_mov_b32 %s, s2' % R(S[0][0], 3))
        p('s_lshl_b32 s26, s2, 3'); p('s_add_u32 s26, s26, s15'); p('s_lshl_b32 s26, s26, 4')
        p('v_mov_b32 %s, s26' % R(v_t[0]))
        p('buffer_store_dwordx4 %s, %s, s[40:43], 0 offen' % (R(S[0][0], 0, 4), R(v_t[0])))
    p.label('%s_end' % name)
    p('s_endpgm')
    body = p.emit()
    nfv = (256 + na) if big else nv
    return body, dict(vgpr=nfv, accum=256 if big else (nv + 3) // 4 * 4, sgpr=64, lds=163840, block=NW * 64, grid=256)
```

```python
from asmdsl import Prog, Inst
from layout import *
from k2 import RA, R, Sched
from small import silu, rb1, rb2, unpack, ror_add, f2u
import math

def gen_k2(name='k2_kernel', D1=4, D2=4, pf_list=('wg', 'wu'), NH=3, ost='sc1', extras=True, prio=False, wqpf_from=1024, wof128=True, MAP=0, shift=0, o16=True, p16=True, a16=True, lsum='add', nperm=True, endprio=('A', 2), wotfirst=False, do_wot=True, do_mod=True, pf_lo=7, pf_mod='', burst=7, fast0=False):
    p = Prog()
    V = RA('v', 0, 256)
    v_tid = V.alloc(1); v_l16 = V.alloc(1); v_wqoff = V.alloc(1); v_tr = V.alloc(1); v_hoff = V.alloc(1)
    v_kvoff = V.alloc(1); v_pf = V.alloc(1); v_pfd = V.alloc(1); v_id = V.alloc(1)
    v_t = [V.alloc(1) for _ in range(6)]
    v_l = [V.alloc(1) for _ in range(2)]
    v_wt = [V.alloc(1) for _ in range(3)]
    v_tr2 = v_l[0]; v_wq2 = v_l[1]
    acc = [V.alloc(16, 4) for _ in range(4)]
    NRA = max(D1, D2) + 2
    fr = [V.alloc(4, 4) for _ in range(NRA)]
    qf = [V.alloc(4, 4) for _ in range(8)]
    S = [V.alloc(16, 4) for _ in range(2)]
    negm = V.alloc(16, 4)
    Pb = V.alloc(16, 4)
    P = [[(Pb[0], Pb[1] + 8 * b + 4 * u) for u in range(2)] for b in range(2)]
    Hx = [V.alloc(16, 4) for _ in range(2)]
    mx = V.alloc(16, 4)
    ones = V.alloc(4, 4)
    LL = (negm[0], negm[1] + 8)
    nv = V.n
    pool = [Hx[0], Hx[1], S[0], S[1], negm, Pb][:NH]
    H = [[(b[0], b[1] + 4 * t) for t in range(4)] for b in pool]
    WQ_RING = 0; KV_RING = 65536; NKV = 6

    p('s_cmp_ge_u32 s2, 256')
    p('s_cbranch_scc1 %s_end' % name)
    p('s_load_dwordx4 s[4:7], s[0:1], %d' % KA['wq'])
    p('s_load_dwordx2 s[8:9], s[0:1], %d' % KA['ws'])
    p('s_load_dwordx4 s[44:47], s[0:1], %d' % KA['c'])
    p('s_load_dwordx4 s[40:43], s[0:1], %d' % KA['wg'])
    p('s_load_dwordx2 s[56:57], s[0:1], %d' % KA['wd'])
    p('s_mov_b32 s58, 7340032'); p('s_mov_b32 s59, 0x20000')
    if MAP == 0:
        p('s_and_b32 s12, s2, 3')
        p('s_lshl_b32 s12, s12, 3')
        p('s_bfe_u32 s13, s2, 0x30003')
        p('s_add_u32 s12, s12, s13')
        p('s_bfe_u32 s13, s2, 0x10002')
        p('s_lshl_b32 s13, s13, 2')
        p('s_lshr_b32 s14, s2, 6')
        p('s_add_u32 s13, s13, s14')
    else:
        p('s_and_b32 s12, s2, 1')
        p('s_lshl_b32 s12, s12, 4')
        p('s_bfe_u32 s13, s2, 0x40003')
        p('s_add_u32 s12, s12, s13')
        p('s_bfe_u32 s13, s2, 0x20001')
        p('s_lshl_b32 s13, s13, 1')
        p('s_lshr_b32 s14, s2, 7')
        p('s_add_u32 s13, s13, s14')
    p('v_and_b32 %s, 255, v0' % R(v_id))
    p('v_lshrrev_b32 %s, 6, v0' % R(v_t[0]))
    p('v_and_b32 %s, 63, v0' % R(v_tid))
    p('v_readfirstlane_b32 s15, %s' % R(v_t[0]))
    lane = R(v_tid)
    p('v_lshlrev_b32 %s, 4, %s' % (R(v_l16), lane))
    p('s_mov_b32 s10, 0x%x' % WS_SIZE)
    p('s_mov_b32 s11, 0x20000')
    p('s_lshl_b32 s17, s13, 3')
    p('s_add_u32 s17, s17, s15')
    p('s_lshl_b32 s18, s17, 16')
    p('v_add_u32 %s, s18, %s' % (R(v_hoff), R(v_l16)))
    p('v_bfe_u32 %s, %s, 2, 2' % (R(v_t[0]), lane))
    p('v_lshrrev_b32 %s, 4, %s' % (R(v_t[1]), lane))
    p('v_and_b32 %s, 3, %s' % (R(v_t[2]), lane))
    p('v_lshrrev_b32 %s, 5, %s' % (R(v_t[3]), lane))
    p('v_bfe_u32 %s, %s, 4, 1' % (R(v_t[4]), lane))
    p('v_lshlrev_b32 %s, 6, %s' % (R(v_t[5]), R(v_t[0])))
    p('v_lshl_add_u32 %s, %s, 5, %s' % (R(v_t[5]), R(v_t[4]), R(v_t[5])))
    p('v_lshl_add_u32 %s, %s, 3, %s' % (R(v_t[5]), R(v_t[2]), R(v_t[5])))
    p('v_lshl_add_u32 %s, %s, 11, %s' % (R(v_tr), R(v_t[3]), R(v_t[5])))
    if p16:
        p('v_lshrrev_b32 %s, 4, %s' % (R(v_tr), lane))
        p('v_lshlrev_b32 %s, 11, %s' % (R(v_tr), R(v_tr)))
        p('v_lshl_add_u32 %s, %s, 6, %s' % (R(v_tr), R(v_t[0]), R(v_tr)))
        p('v_lshl_add_u32 %s, %s, 3, %s' % (R(v_tr), R(v_t[2]), R(v_tr)))
        p('v_lshlrev_b32 %s, 5, %s' % (R(v_wq2), R(v_t[4])))
        p('v_sub_u32 %s, %s, %s' % (R(v_tr2), R(v_tr), R(v_wq2)))
        p('v_add_u32 %s, %s, %s' % (R(v_tr), R(v_tr), R(v_wq2)))
    p('v_lshlrev_b32 %s, 6, %s' % (R(v_t[1]), R(v_t[1])))
    p('v_lshl_add_u32 %s, %s, 4, %s' % (R(v_t[1]), R(v_t[2]), R(v_t[1])))
    p('s_lshr_b32 s21, s12, 3')
    p('s_lshl_b32 s21, s21, 18')
    p('s_add_u32 s21, s21, 0x%x' % WS_KV)

    def dma_wq(s):
        out = []
        for i in range(4):
            out.append(('s_add_u32 s22, s19, 0x%x' % (s * 64 * 8192 + i * 32768), None))
            out.append(('s_add_u32 m0, s20, 0x%x' % (WQ_RING + (s % 4) * 16384 + i * 1024), None))
            out.append(('buffer_load_dwordx4 %s, s[4:7], s22 offen lds' % R(v_wq2 if (p16 and i >= 2) else v_wqoff), 'wq%d' % s))
        return out
    def dma_kv(j):
        out = []
        for i in range(4):
            out.append(('s_add_u32 s22, s20, 0x%x' % (j * 16384 + i * 1024), None))
            out.append(('s_add_u32 m0, s20, 0x%x' % (KV_RING + (j % NKV) * 16384 + i * 1024), None))
            out.append(('buffer_load_dwordx4 %s, s[8:11], s22 offen lds' % R(v_kvoff), 'kv%d' % j))
        return out
    def hload(s, t):
        if p16:
            return [('s_mov_b32 s23, 0x%x' % (WS_H + s * 2048 + (t % 2) * 32768), None),
                    ('buffer_load_dwordx4 %s, %s, s[8:11], s23 offen offset:%d' % (R(H[s % NH][t], 0, 4), R(v_hoff), (t // 2) * 1024), None)]
        return [('s_mov_b32 s23, 0x%x' % (WS_H + s * 4096), None),
                ('buffer_load_dwordx4 %s, %s, s[8:11], s23 offen offset:%d' % (R(H[s % NH][t], 0, 4), R(v_hoff), t * 1024), None)]
    def trread(f):
        r = fr[f % NRA]
        if p16:
            s, T, n = f // 16, (f // 8) % 2, f % 8
            base = WQ_RING + (s % 4) * 16384 + T * 8192 + (n // 2) * 256 + (n % 2) * 32
            va = R(v_tr2 if n % 2 else v_tr)
            return ['ds_read_b64_tr_b16 %s, %s offset:%d' % (R(r, 0, 2), va, base),
                    'ds_read_b64_tr_b16 %s, %s offset:%d' % (R(r, 2, 2), va, base + 1024)]
        s, t, dt = f // 16, (f // 4) % 4, f % 4
        base = WQ_RING + (s % 4) * 16384 + t * 4096 + dt * 256
        return ['ds_read_b64_tr_b16 %s, %s offset:%d' % (R(r, 0, 2), R(v_tr), base),
                'ds_read_b64_tr_b16 %s, %s offset:%d' % (R(r, 2, 2), R(v_tr), base + 1024)]

    class L:
        def __init__(self): self.l = []
        def __call__(self, t, tag=None): self.l.append(t)

    XR = [(Hx[i // 4][0], Hx[i // 4][1] + 4 * (i % 4)) for i in range(8)]
    def add_wot(sc):
        va, vb = R(v_wt[0]), R(v_wt[1])
        for i in range(8):
            ch, kg = i // 4, i % 4
            at = (2 + 4 * i) if wotfirst else (16 * 3 + 4 * i + 2)
            if burst: at = 3 + 8 * burst + burst * i
            sc.place(at, 's_add_u32 s26, s37, %d' % ((i * 4 * 2048) if o16 else (kg * 4 * 2048 + ch * 256)))
            sc.place(at, 's_add_u32 m0, s38, %d' % (i * 1024))
            sc.place(at, 'buffer_load_dwordx4 %s, s[28:31], s26 offen lds' % va, 'wot')
        at0 = (16 * 5 + 1) if wotfirst else (16 * 12 + 1)
        sc.place(at0, lambda p: p.wait_tag('wot'))
        for N in range(8):
            ch, nt4 = N // 4, N % 4
            reg = XR[N]
            at = at0 + 4 * N
            for e in range(2):
                off = (e * (4096 if a16 else 2048) + (N // 2) * 256 + (N % 2) * (8 if nperm else 32)) if o16 else (ch * 4096 + e * 2048 + nt4 * 256)
                sc.place(at, 'ds_read_b64_tr_b16 %s, %s offset:%d' % (R(reg, 2 * e, 2), vb, off))
            NB = 4 if wof128 else 2
            sc.place(at + 5, 's_add_u32 s26, s39, 0x%x' % ((N // 4) * 4096 if o16 else (N // NB) * NB * 0x40000))
            sc.place(at + 5, 'buffer_store_dwordx4 %s, %s, s[8:11], s26 offen offset:%d %s' % (R(reg, 0, 4), R(v_l16), (N % NB) * 1024, ost))
    def setup_B():
        va, vb = R(v_wt[0]), R(v_wt[1])
        LB = 4096
        p('v_lshl_add_u32 %s, %s, 11, %s' % (va, R(v_t[0]), R(v_t[1])))
        p('s_sub_u32 s36, s15, 4')
        if o16:
            p('s_lshr_b32 s37, s2, 1'); p('s_lshl_b32 s27, s37, 13'); p('s_lshl_b32 s37, s37, 16')
            p('s_and_b32 s39, s2, 1'); p('s_lshl_b32 s39, s39, 2'); p('s_add_u32 s39, s39, s36')
            p('s_lshl_b32 s38, s39, 8'); p('s_add_u32 s37, s37, s38')
            p('s_mul_i32 s39, s39, %d' % W_STRIDE); p('s_add_u32 s39, s39, s27'); p('s_add_u32 s39, s39, 0x%x' % WS_WOF)
            p('s_lshl_b32 s38, s36, 13')
            p('s_add_u32 s38, s38, %d' % LB)
            p('v_lshlrev_b32 %s, 6, %s' % (vb, R(v_t[0])))
            p('v_lshl_add_u32 %s, %s, %d, %s' % (vb, R(v_t[2]), 4 if nperm else 3, vb))
            p('v_lshl_add_u32 %s, %s, %d, %s' % (vb, R(v_t[3]), 11 if a16 else 12, vb))
            p('v_lshl_add_u32 %s, %s, 10, %s' % (vb, R(v_t[4]), vb))
            p('v_add_u32 %s, s38, %s' % (vb, vb))
        else:
            p('s_lshl_b32 s37, s2, 15')
            p('s_lshl_b32 s38, s36, 9')
            p('s_add_u32 s37, s37, s38')
            p('s_lshl_b32 s38, s36, 13')
            p('s_add_u32 s38, s38, %d' % LB)
            p('v_lshl_add_u32 %s, %s, 10, %s' % (vb, R(v_t[3]), R(v_t[5])))
            p('v_add_u32 %s, s38, %s' % (vb, vb))
            p('s_lshl_b32 s39, s36, 21')
            p('s_lshl_b32 s27, s2, %d' % (12 if wof128 else 11))
            p('s_add_u32 s39, s39, s27')
            p('s_add_u32 s39, s39, 0x%x' % WS_WOF)
        p('s_and_b32 s62, s2, 63'); p('s_lshr_b32 s63, s2, 6')
        p('s_mov_b64 s[28:29], s[6:7]'); p('s_mov_b32 s30, 0x800000'); p('s_mov_b32 s31, 0x20000')
        p('s_mov_b64 s[48:49], s[44:45]'); p('s_mov_b32 s50, 2048'); p('s_mov_b32 s51, 0x20000')
        p('s_mov_b64 s[52:53], s[46:47]'); p('s_mov_b32 s54, %d' % (1024 * 6144 * 2)); p('s_mov_b32 s55, 0x20000')
        p('s_mov_b64 s[32:33], s[40:41]'); p('s_mov_b32 s34, 7340032'); p('s_mov_b32 s35, 0x20000')
        p('s_mov_b64 s[44:45], s[42:43]'); p('s_mov_b32 s46, 7340032'); p('s_mov_b32 s47, 0x20000')
    def add_modcols(sc):
        w = XR
        cs = (mx[0], mx[1]); ma = (mx[0], mx[1] + 8)
        mu = [R(v_hoff), R(v_t[1]), R(v_kvoff), R(v_t[3])]
        ta, tb = R(v_t[4]), R(v_t[5])
        def issue(p):
            p('v_lshrrev_b32 %s, 3, %s' % (ta, R(v_id)))
            p('v_lshlrev_b32 %s, 4, %s' % (tb, ta))
            p('s_lshl_b32 s26, s63, 9')
            p('buffer_load_dwordx4 %s, %s, s[48:51], s26 offen' % (R(ma, 0, 4), tb))
            p('s_mov_b32 s26, %d' % (8 * 12288))
            p('v_mul_lo_u32 %s, s26, %s' % (ta, ta))
            p('v_and_b32 %s, 7, %s' % (tb, R(v_id)))
            p('v_lshl_add_u32 %s, %s, 4, %s' % (ta, tb, ta))
            p('s_mul_i32 s27, s63, %d' % (256 * 12288))
            p('s_lshl_b32 s26, s62, 7')
            p('s_add_u32 s27, s27, s26')
            p('s_add_u32 s27, s27, 4096')
        sc.place(1, issue)
        for i in range(8):
            at = (16 * 5 + 10 + 4 * i) if wotfirst else (4 + 5 * i)
            if burst: at = 3 + burst * i
            sc.place(at, 's_add_u32 s26, s27, %d' % (i * 12288))
            sc.place(at, 'buffer_load_dwordx4 %s, %s, s[52:55], s26 offen' % (R(w[i], 0, 4), ta))
        q = L()
        for d in range(4): unpack(q, R(cs, 2 * d), R(cs, 2 * d + 1), R(ma, d))
        for i in range(8): silu(q, R(cs, i), mu[i % 4])
        for i in range(0, 8, 2): rb2(q, R(cs, i), R(cs, i + 1), mu[0])
        for i in range(8):
            for hf in range(2):
                for d in range(2): unpack(q, mu[2 * d], mu[2 * d + 1], R(w[i], 2 * hf + d))
                for e in range(4):
                    if i == 0: q('v_mul_f32 %s, %s, %s' % (R(ma, 4 * hf + e), R(cs, i), mu[e]))
                    else: q('v_fmac_f32 %s, %s, %s' % (R(ma, 4 * hf + e), R(cs, i), mu[e]))
        for e in range(4): q('v_permlane32_swap_b32 %s, %s' % (R(ma, e), R(ma, 4 + e)))
        for e in range(4): q('v_add_f32 %s, %s, %s' % (R(ma, e), R(ma, e), R(ma, 4 + e)))
        for e in range(2): q('v_permlane16_swap_b32 %s, %s' % (R(ma, e), R(ma, 2 + e)))
        for e in range(2): q('v_add_f32 %s, %s, %s' % (R(ma, e), R(ma, e), R(ma, 2 + e)))
        for e in range(2): ror_add(q, R(ma, e), 8)
        q('v_lshrrev_b32 %s, 6, %s' % (ta, R(v_id)))
        q('v_lshlrev_b32 %s, 8, %s' % (ta, ta))
        q('v_lshl_add_u32 %s, %s, 5, %s' % (ta, tb, ta))
        q('v_bfe_u32 %s, %s, 4, 2' % (tb, R(v_id)))
        q('v_lshl_add_u32 %s, %s, 3, %s' % (ta, tb, ta))
        q('ds_write_b64 %s, %s' % (ta, R(ma, 0, 2)))
        lo, hi = (16 * 10 + 8, 16 * 13 + 6) if wotfirst else (16 * 9, 16 * 12 - 1)
        for i, o in enumerate(q.l): sc.place(lo + (i * (hi - lo)) // len(q.l), o)
        sc.place(hi + 4, 's_waitcnt lgkmcnt(0)')
        def fin(p):
            p('v_lshlrev_b32 %s, 2, %s' % (ta, lane))
            for i in range(4): p('ds_read_b32 %s, %s offset:%d' % (R(ma, i), ta, i * 256))
        sc.place(16 * (14 if wotfirst else 13) + 2, fin)
        def fin2(p):
            for i in range(2): p('v_add_f32 %s, %s, %s' % (R(ma, i), R(ma, i), R(ma, 2 + i)))
            p('v_add_f32 %s, %s, %s' % (R(ma, 0), R(ma, 0), R(ma, 1)))
            p('s_lshl_b32 s26, s63, 14')
            p('s_lshl_b32 s27, s62, 8')
            p('s_add_u32 s26, s26, s27')
            p('s_add_u32 s26, s26, 0x%x' % WS_MODP2)
            p('s_cmp_eq_u32 s15, 4'); p('s_cselect_b32 s26, s26, 0x7ffffff0')
            p('buffer_store_dword %s, %s, s[8:11], s26 offen sc1' % (R(ma, 0), ta))
        sc.place(16 * (14 if wotfirst else 13) + 8, fin2)

    def phase1(role):
        A_ = role == 'A'
        if A_:
            p('v_lshl_add_u32 %s, %s, 13, %s' % (R(v_wqoff), R(v_t[0]), R(v_t[1])))
            if p16: p('v_xor_b32 %s, 32, %s' % (R(v_wq2), R(v_wqoff)))
            p('v_add_u32 %s, s21, %s' % (R(v_kvoff), R(v_l16)))
            p('s_lshl_b32 s19, s15, 17')
            p('s_lshl_b32 s20, s15, 12')
            p('s_lshl_b32 s16, s12, 8')
            p('s_add_u32 s4, s4, s16')
            p('s_addc_u32 s5, s5, 0')
            p('s_sub_u32 s6, 0x800000, s16')
            p('s_mov_b32 s7, 0x20000')
            for it, tag in dma_wq(0): p(it, tag)
        else:
            if prio: p('s_setprio 1')
        late = []
        for s in range(2):
            for t in range(4):
                for it, tag in hload(s, t):
                    if fast0 and s == 1: late.append((it, tag))
                    else: p(it, tag)
            if A_:
                for it, tag in dma_wq(s + 1):
                    if fast0 and s == 1: late.append((it, tag))
                    else: p(it, tag)
        if not A_: setup_B()
        p.stamp(5)
        if A_: p.wait_tag('wq0')
        p.stamp(6)
        p('s_barrier')
        p.stamp(0)
        for f in range(D1):
            for x in trread(f): p(x)
        sc = Sched()
        k_ = 0
        for it, tag in late:
            sc.place(k_ // 1, it, tag)
            if it.startswith('buffer'): k_ += 2
        hnext = [8]
        for f in range(256):
            s, t, dt = f // 16, (f // 4) % 4, f % 4
            if p16:
                T, n = (f // 8) % 2, f % 8
                for qs in range(2):
                    d = R(acc[n // 2], (n % 2) * 8 + qs * 4, 4)
                    idx = sc.mfma('v_mfma_f32_16x16x32_bf16 %s, %s, %s, %s' % (d, R(fr[f % NRA], 0, 4), R(H[s % NH][T * 2 + qs], 0, 4), '0' if f < 8 else d))
            else:
                c = '0' if (s == 0 and t == 0) else R(acc[dt], 0, 16)
                idx = sc.mfma('v_mfma_f32_32x32x16_bf16 %s, %s, %s, %s' % (R(acc[dt], 0, 16), R(fr[f % NRA], 0, 4), R(H[s % NH][t], 0, 4), c))
            MS = 2 if p16 else 1
            g = f + D1
            if g < 256:
                if g % 16 == 0:
                    sn = g // 16
                    if A_: sc.place(idx, lambda p, sn=sn: p.wait_tag('wq%d' % sn))
                    sc.place(idx, 's_barrier')
                    if A_:
                        nxt = dma_wq(sn + 2) if sn + 2 < 16 else dma_kv(sn + 2 - 16)
                        for i in range(4):
                            for it, tag in nxt[3 * i:3 * i + 3]: sc.place(idx + (1 + 2 * i) * MS, it, tag)
                tr = trread(g)
                if p16 and g % 16 != 0:
                    sc.place(idx - 1, tr[0]); sc.place(idx, tr[1])
                else:
                    for x in tr: sc.place(idx, x)
            if dt in (1, 3):
                lim = min(64, (s + NH - 1) * 4 + t + 1)
                if hnext[0] < lim:
                    for it, tag in hload(hnext[0] // 4, hnext[0] % 4): sc.place(idx, it, tag)
                    hnext[0] += 1
            if A_ and s >= 14 and t >= 2:
                j = 2 + (s - 14) * 2 + (t - 2)
                for it, tag in dma_kv(j)[3 * dt:3 * dt + 3]: sc.place(idx, it, tag)
        if not A_ and wqpf_from < 1024:
            def pfs(p):
                p('s_mov_b32 s6, 0x800000'); p('s_mov_b32 s7, 0x20000')
                p('s_lshl_b32 s3, s2, 12')
                p('v_lshrrev_b32 %s, 6, %s' % (R(v_pf), R(v_id)))
                p('v_lshlrev_b32 %s, 10, %s' % (R(v_pf), R(v_pf)))
                p('v_lshl_add_u32 %s, %s, 7, %s' % (R(v_pf), lane, R(v_pf)))
                p('v_add_u32 %s, s3, %s' % (R(v_pf), R(v_pf)))
                p('v_cmp_gt_u32 vcc, 8, %s' % lane)
                p('v_bfrev_b32 %s, -2' % R(v_pfd))
                p('v_cndmask_b32 %s, %s, %s, vcc' % (R(v_pf), R(v_pfd), R(v_pf)))
            sc.place(0, pfs)
            for i, r0 in enumerate(range(wqpf_from, 1024, 128)):
                sc.place(2 + 12 * i, 's_mov_b32 s26, 0x%x' % (r0 * 8192))
                sc.place(2 + 12 * i, 'buffer_load_dword %s, %s, s[4:7], s26 offen' % (R(v_pfd), R(v_pf)), 'pf')
        sc.emit(p)
        p.stamp(1)
        p('s_mov_b32 s24, 0x%x' % f2u((128 ** -0.5) * math.log2(math.e)))
        for dt in range(4):
            for r in range(0, 16, 2):
                t = 2 * dt + r // 8
                ta, tb = R(v_t[(r // 2 % 2) * 2]), R(v_t[(r // 2 % 2) * 2 + 1])
                p('v_mul_f32 %s, s24, %s' % (ta, R(acc[dt], r)))
                p('v_mul_f32 %s, s24, %s' % (tb, R(acc[dt], r + 1)))
                if a16:
                    dst = R(qf[((r // 4) % 2) * 4 + dt], (r // 8) * 2 + (r % 4) // 2)
                else:
                    dst = R(qf[t], (r % 8) // 2)
                p('v_cvt_pk_bf16_f32 %s, %s, %s' % (dst, ta, tb))
        if p16 and not a16:
            for t in range(8):
                for k in range(2): p('v_permlane16_swap_b32 %s, %s' % (R(qf[t], k), R(qf[t], 2 + k)))
        p.stamp(2)
        p('v_add_u32 %s, 0x10000, %s' % (R(v_l16b), R(v_l16)))
        p('v_add_u32 %s, 0x20000, %s' % (R(v_l16c), R(v_l16)))

    v_l16b = v_wqoff; v_l16c = v_tr
    def kaddr(j, t): return KV_RING + (j % NKV) * 16384 + t * 1024
    def vaddr(j, u, dt): return KV_RING + (j % NKV) * 16384 + 8192 + (u * 4 + dt) * 1024
    def lds_read(dst, addr):
        if addr >= 0x20000: return 'ds_read_b128 %s, %s offset:%d' % (R(dst, 0, 4), R(v_l16c), addr - 0x20000)
        return 'ds_read_b128 %s, %s offset:%d' % (R(dst, 0, 4), R(v_l16b), addr - 0x10000)
    assert a16 and p16 and o16
    def softmax_ops(j, sub, first):
        ops = []
        s = S[j % 2]
        for r in range(0, 16, 2):
            a, qs = r // 8, (r // 4) % 2
            if sub:
                ops.append('v_add_f32 %s, %s, %s' % (R(s, r), R(s, r), R(negm, 4 * qs)))
                ops.append('v_add_f32 %s, %s, %s' % (R(s, r + 1), R(s, r + 1), R(negm, 4 * qs)))
            ops.append('v_exp_f32 %s, %s' % (R(s, r), R(s, r)))
            ops.append('v_exp_f32 %s, %s' % (R(s, r + 1), R(s, r + 1)))
            if lsum == 'add':
                if first and r % 4 == 0 and a == 0:
                    ops.append('v_add_f32 %s, %s, %s' % (R(v_l[qs]), R(s, r), R(s, r + 1)))
                else:
                    ops.append('v_add_f32 %s, %s, %s' % (R(v_l[qs]), R(v_l[qs]), R(s, r)))
                    ops.append('v_add_f32 %s, %s, %s' % (R(v_l[qs]), R(v_l[qs]), R(s, r + 1)))
            elif lsum == 'pk':
                if first and r % 4 == 0 and a == 0:
                    ops.append('v_mov_b32 %s, %s' % (R(LL, 2 * qs), R(s, r))); ops.append('v_mov_b32 %s, %s' % (R(LL, 2 * qs + 1), R(s, r + 1)))
                else:
                    ops.append('v_pk_add_f32 %s, %s, %s' % (R(LL, 2 * qs, 2), R(LL, 2 * qs, 2), R(s, r, 2)))
            ops.append('v_cvt_pk_bf16_f32 %s, %s, %s' % (R(P[j % 2][qs], a * 2 + (r % 4) // 2), R(s, r), R(s, r + 1)))
        return ops
    def interleave_sm(ops):
        return ops
    def xl_red(m, m2, op):
        return ['v_mov_b32 %s, %s' % (m2, m), 'v_permlane16_swap_b32 %s, %s' % (m, m2), '%s %s, %s, %s' % (op, m, m, m2),
                'v_mov_b32 %s, %s' % (m2, m), 'v_permlane32_swap_b32 %s, %s' % (m, m2), '%s %s, %s, %s' % (op, m, m, m2)]
    def finish_max(ms, m2s):
        ops = []
        a, b = xl_red(ms[0], m2s[0], 'v_max_f32'), xl_red(ms[1], m2s[1], 'v_max_f32')
        for x, y in zip(a, b): ops += [x, y]
        for r in range(8): ops.append('v_sub_f32 %s, %s, %s' % (R(negm, r), ('0x%x' % f2u(-float(shift))) if shift else '0', ms[r // 4]))
        return ops
    def mf_k(j, i, f, cz):
        T, a = i // 2, i % 2
        out = []
        for qs in range(2):
            d = R(S[j % 2], (a * 2 + qs) * 4, 4)
            c = d if T > 0 else ('0' if cz else R(negm, 4 * qs, 4))
            out.append('v_mfma_f32_16x16x32_bf16 %s, %s, %s, %s' % (d, f, R(qf[qs * 4 + T], 0, 4), c))
        return out
    def mf_v(j, n, f, cz):
        out = []
        for qs in range(2):
            d = R(acc[n // 2], (n % 2) * 8 + qs * 4, 4)
            out.append('v_mfma_f32_16x16x32_bf16 %s, %s, %s, %s' % (d, f, R(P[j % 2][qs], 0, 4), '0' if cz else d))
        return out
    def mf_l(j, qs, cz):
        d = R(LL, 4 * qs, 4)
        return 'v_mfma_f32_16x16x32_bf16 %s, %s, %s, %s' % (d, R(ones, 0, 4), R(P[j % 2][qs], 0, 4), '0' if cz else d)

    def phase2(role):
        seq = [('k', 0, t) for t in range(8)] + [('k', 1, t) for t in range(8)]
        marks = {}
        for j in range(1, 17):
            marks[j] = len(seq)
            if j + 1 < 16: seq += [('k', j + 1, t) for t in range(8)]
            seq += [('v', j - 1, i) for i in range(8)]
        marks[17] = len(seq)
        sc0 = Sched()
        for n, (k, j, i) in enumerate(seq):
            f = R(fr[n % NRA], 0, 4)
            for m_ in (mf_k(j, i, f, j < 2) if k == 'k' else mf_v(j, i, f, j == 0)): sc0.mfma(m_)
        class SC:
            def place(self, at, item, tag=None): sc0.place(2 * at + 1 if at >= 0 else -1, item, tag)
            def emit(self, p): sc0.emit(p)
        sc = SC()
        ready = set()
        for n, (k, j, i) in enumerate(seq):
            at = n - D2 if n - D2 >= 0 else -1
            if k == 'k' and j not in ready:
                ready.add(j)
                if role == 'A': sc.place(at, lambda p, j=j: p.wait_tag('kv%d' % j))
                sc.place(at, 's_barrier')
                if endprio and role == endprio[0] and j == endprio[1]: sc.place(at, 's_setprio 3')
                jn = j + 2
                if role == 'A' and j >= 4 and jn < 16:
                    nxt = dma_kv(jn)
                    for q in range(4):
                        for it, tag in nxt[3 * q:3 * q + 3]: sc.place(at + 1 + 2 * q, it, tag)
            sc.place(at, lds_read(fr[n % NRA], kaddr(j, i) if k == 'k' else vaddr(j, i // 4, i % 4)))
        if lsum == 'mfma':
            for k in range(4): sc.place(-1, 'v_mov_b32 %s, 0x3f803f80' % R(ones, k))
            for n, (k, j, i) in enumerate(seq):
                if k == 'v' and i in (2, 5): sc0.place(2 * n, mf_l(j, 0 if i == 2 else 1, j == 0))
        ms, m2s = [R(v_t[0]), R(v_t[1])], [R(v_t[2]), R(v_t[3])]
        ops = []
        for qs in range(2):
            rg = [R(S[0], (a * 2 + qs) * 4 + k) for a in range(2) for k in range(4)]
            ops.append('v_max3_f32 %s, %s, %s, %s' % (ms[qs], rg[0], rg[1], rg[2]))
            for i in range(3, 7, 2): ops.append('v_max3_f32 %s, %s, %s, %s' % (ms[qs], ms[qs], rg[i], rg[i + 1]))
            ops.append('v_max_f32 %s, %s, %s' % (ms[qs], ms[qs], rg[7]))
        for i, o in enumerate(ops): sc0.place(22 + i, o)
        ops = []
        for qs in range(2):
            rg = [R(S[1], (a * 2 + qs) * 4 + k) for a in range(2) for k in range(4)]
            for i in range(0, 8, 2): ops.append('v_max3_f32 %s, %s, %s, %s' % (ms[qs], ms[qs], rg[i], rg[i + 1]))
        ops += finish_max(ms, m2s) + softmax_ops(0, True, True)
        for o in ops: sc.place(15, o)
        for j in range(1, 16):
            lo, hi = 2 * marks[j], 2 * marks[j + 1] - 1
            ops = softmax_ops(j, j < 2, False)
            nm = hi - lo + 1
            for i, o in enumerate(ops): sc0.place(lo + min(nm - 1, (i * nm) // len(ops)), o)
        if role == 'B' and extras:
            if do_mod: add_modcols(sc)
            if do_wot: add_wot(sc)
        if role == 'B' and pf_list and extras:
            def pfsetup(p):
                p('s_lshl_b32 s3, s2, 12')
                p('v_lshrrev_b32 %s, 6, %s' % (R(v_pf), R(v_id)))
                p('v_lshlrev_b32 %s, 10, %s' % (R(v_pf), R(v_pf)))
                p('v_lshl_add_u32 %s, %s, 7, %s' % (R(v_pf), lane, R(v_pf)))
                p('v_add_u32 %s, s3, %s' % (R(v_pf), R(v_pf)))
                p('v_cmp_gt_u32 vcc, 8, %s' % lane)
                p('v_bfrev_b32 %s, -2' % R(v_pfd))
                p('v_cndmask_b32 %s, %s, %s, vcc' % (R(v_pf), R(v_pfd), R(v_pf)))
            sc.place(2, pfsetup)
            items = [(b, i * 0x100000) for b in pf_list for i in range(8 if b == 'wo' else 7)]
            lo, hi = marks[max(1, pf_lo)], marks[15]
            for i, (b, off) in enumerate(items):
                at = lo + (i * (hi - lo)) // len(items)
                if pf_lo < 0: at = -pf_lo + i * max(1, burst)
                sr = {'wg': 32, 'wu': 44, 'wd': 56, 'wo': 28}[b]
                sc.place(at, 's_mov_b32 s26, 0x%x' % off)
                sc.place(at, 'buffer_load_dword %s, %s, s[%d:%d], s26 offen %s' % (R(v_pfd), R(v_pf), sr, sr + 3, pf_mod), 'pf')
        sc.emit(p)

    p('s_waitcnt lgkmcnt(0)')
    p.stamp(4)
    p('s_cmp_ge_u32 s15, 4')
    p('s_cbranch_scc1 %s_roleB' % name)
    p.alt_begin()
    phase1('A'); phase2('A')
    p('s_branch %s_chk' % name)
    p.alt_next()
    p.label('%s_roleB' % name)
    phase1('B'); phase2('B')
    p.alt_end()
    p.label('%s_chk' % name)
    p.stamp(3)

    l0, l1 = R(v_l[0]), R(v_l[1])
    if lsum == 'pk':
        p('v_add_f32 %s, %s, %s' % (l0, R(LL, 0), R(LL, 1))); p('v_add_f32 %s, %s, %s' % (l1, R(LL, 2), R(LL, 3)))
    if lsum == 'mfma':
        p('v_mov_b32 %s, %s' % (l0, R(LL, 0))); p('v_mov_b32 %s, %s' % (l1, R(LL, 4)))
    else:
        for x, y in zip(xl_red(l0, R(v_t[0]), 'v_add_f32'), xl_red(l1, R(v_t[2]), 'v_add_f32')): p(x); p(y)
    mo = [R(v_t[1]), R(v_t[3])]
    regs = [R(acc[dt], r) for dt in range(4) for r in range(16)]
    p('v_max3_f32 %s, |%s|, |%s|, %s' % (mo[0], regs[0], regs[1], l0))
    p('v_max3_f32 %s, |%s|, |%s|, %s' % (mo[1], regs[2], regs[3], l1))
    for i in range(4, 64, 2): p('v_max3_f32 %s, |%s|, |%s|, %s' % (mo[i // 2 % 2], regs[i], regs[i + 1], mo[i // 2 % 2]))
    p('v_max_f32 %s, %s, %s' % (mo[0], mo[0], mo[1]))
    p('s_mov_b32 s26, 0x%x' % f2u(2.0 ** 120))
    p('v_cmp_ngt_f32 vcc, s26, %s' % mo[0])
    p('v_cmp_u_f32 s[26:27], %s, %s' % (l0, l1))
    p('s_or_b64 vcc, vcc, s[26:27]')
    p('s_cbranch_vccnz %s_slow' % name)
    p.label('%s_epi' % name)
    rl = [R(v_t[0]), R(v_t[2])]
    p('v_rcp_f32 %s, %s' % (rl[0], l0)); p('v_rcp_f32 %s, %s' % (rl[1], l1))
    p('s_mul_i32 s18, s17, %d' % (2 * O_STRIDE))
    p('s_lshl_b32 s25, s12, 12')
    p('s_add_u32 s18, s18, s25')
    p('s_add_u32 s18, s18, 0x%x' % WS_O)
    p('s_add_u32 s25, s18, %d' % O_STRIDE)
    for T in range(4):
        for qs in range(2):
            o = S[qs]
            for b in range(2):
                for k in range(4): p('v_mul_f32 %s, %s, %s' % (R(o, 8 + 4 * b + k), R(acc[T], b * 8 + qs * 4 + k), rl[qs]))
            for r in range(0, 8, 2): p('v_cvt_pk_bf16_f32 %s, %s, %s' % (R(o, r // 2), R(o, 8 + r), R(o, 8 + r + 1)))
            p('buffer_store_dwordx4 %s, %s, s[8:11], %s offen offset:%d %s' % (R(o, 0, 4), R(v_l16), 's25' if qs else 's18', T * 1024, ost))
    p('s_branch %s_end' % name)

    p.label('%s_slow' % name)
    p.flush()
    p('s_cmp_eq_u32 s14, 0x7777')
    p('s_cbranch_scc1 %s_epi' % name)
    p('s_mov_b32 s14, 0x7777')
    p('v_add_u32 %s, s21, %s' % (R(v_kvoff), R(v_l16)))
    ms, m2s = [R(v_t[0]), R(v_t[1])], [R(v_t[2]), R(v_t[3])]
    p('v_mov_b32 %s, 0xff7fffff' % ms[0]); p('v_mov_b32 %s, 0xff7fffff' % ms[1])
    p('s_mov_b32 s22, 0')
    KF = XR
    p.loop_begin()
    p.label('%s_s1' % name)
    p('s_add_u32 s23, s22, 4096')
    for t in range(8):
        p('buffer_load_dwordx4 %s, %s, s[8:11], %s offen offset:%d' % (R(KF[t], 0, 4), R(v_kvoff), 's22' if t < 4 else 's23', (t % 4) * 1024))
    for t in range(8):
        for m_ in mf_k(0, t, R(KF[t], 0, 4), True): p(m_)
    for r in range(0, 16, 2): p('v_max3_f32 %s, %s, %s, %s' % (ms[(r // 4) % 2], ms[(r // 4) % 2], R(S[0], r), R(S[0], r + 1)))
    p('s_add_u32 s22, s22, 16384')
    p('s_cmp_lt_u32 s22, 0x40000')
    p('s_cbranch_scc1 %s_s1' % name)
    p.loop_end()
    for o in finish_max(ms, m2s): p(o)
    for dt in range(4):
        for r in range(16): p('v_mov_b32 %s, 0' % R(acc[dt], r))
    p('v_mov_b32 %s, 0' % l0); p('v_mov_b32 %s, 0' % l1)
    for k in range(8): p('v_mov_b32 %s, 0' % R(LL, k))
    p('s_mov_b32 s22, 0')
    p.loop_begin()
    p.label('%s_s2' % name)
    p('s_add_u32 s23, s22, 4096')
    for t in range(8):
        p('buffer_load_dwordx4 %s, %s, s[8:11], %s offen offset:%d' % (R(KF[t], 0, 4), R(v_kvoff), 's22' if t < 4 else 's23', (t % 4) * 1024))
    for t in range(8):
        for m_ in mf_k(0, t, R(KF[t], 0, 4), False): p(m_)
    p('s_add_u32 s26, s22, 8192')
    p('s_add_u32 s23, s22, 12288')
    for t in range(8):
        p('buffer_load_dwordx4 %s, %s, s[8:11], %s offen offset:%d' % (R(KF[t], 0, 4), R(v_kvoff), 's26' if t < 4 else 's23', (t % 4) * 1024))
    for o in softmax_ops(0, False, False): p(o)
    for i in range(8):
        for m_ in mf_v(0, i, R(KF[i], 0, 4), False): p(m_)
    if lsum == 'mfma':
        for qs in range(2): p(mf_l(0, qs, False))
    p('s_add_u32 s22, s22, 16384')
    p('s_cmp_lt_u32 s22, 0x40000')
    p('s_cbranch_scc1 %s_s2' % name)
    p.loop_end()
    p.flush()
    p('s_branch %s_chk' % name)
    p.label('%s_end' % name)
    p('s_endpgm')
    body = p.emit()
    return body, dict(vgpr=nv, accum=(nv + 3) // 4 * 4, sgpr=64, lds=163840, block=512, grid=256)
```

```python
from asmdsl import Prog
from layout import *
from k2 import RA, R, Sched
from small import *
SPIN_MAX = 1 << 18
WS_GU2 = WS_YP2 + 0x10000
WS_MODF = WS_YP2 + 0x20000
WS_RFL = WS_YP2 + 0x30000

def gen_k34(name='k34_kernel', D=3, PO=4, NS=8, AH=3, WEARLY=1, WDPF=0, HDMA=False, ROT=None, fused=False, xrow=True, KREP=1, R1=False, APB=True, DOT=True, WDPOS=0, TOUCH=0, WLAST=4, LPF=None, XMAP=True, CPF=0, EARLY=0, SPF=0, SPW=128):
    p = Prog()
    V = RA('v', 1, 256)
    v_lane = V.alloc(1); v_w = V.alloc(1)
    t = [V.alloc(1) for _ in range(13)]
    base = V.n
    G = RA('v', base, 256)
    v_l16b = G.alloc(1); v_wo = G.alloc(1); v_oo = G.alloc(1); v_xo = G.alloc(1); v_ga = G.alloc(1)
    acc3 = [[G.alloc(4, 4) for _ in range(2)] for _ in range(8)]
    NRA = D + 2
    fr = [G.alloc(4, 4) for _ in range(NRA)]
    OB = [[G.alloc(4, 4) for _ in range(2)] for _ in range(PO)]
    xb = G.alloc(32, 4); gav = G.alloc(32, 4)
    T = RA('v', base, 256)
    gr = T.alloc(4, 4)
    xf = T.alloc(16, 4); raw = T.alloc(16, 4); mods = T.alloc(32, 4); uf = T.alloc(16, 4); mg = T.alloc(8, 4)
    w = [T.alloc(4, 4) for _ in range(16)]
    wd = w
    x = T.alloc(16, 4); u8 = T.alloc(8, 4); acc = T.alloc(8, 4); sl = T.alloc(8, 4); fin = T.alloc(8, 4)
    mu = uf
    MSB, MC1, MGB, MWR = 0, 8, 16, 24
    NT = 64; NSTG = NT // 2
    TAB = NS * 16384; MODS = TAB + 2048
    WDL = MODS + 8192; XL = WDL + 28672
    lane = R(v_lane); v_l16 = t[3]

    if not fused:
        p('s_cmp_ge_u32 s2, 256')
        p('s_cbranch_scc1 %s_end' % name)
    SC = ' sc1' if fused else ''
    p('s_load_dwordx2 s[8:9], s[0:1], %d' % KA['ws'])
    p('s_load_dwordx2 s[28:29], s[0:1], %d' % KA['x'])
    p('s_load_dwordx4 s[36:39], s[0:1], %d' % KA['wr'])
    p('s_load_dwordx4 s[40:43], s[0:1], %d' % KA['wu'])
    p('s_load_dwordx2 s[56:57], s[0:1], %d' % KA['out'])
    srd(p, 8, 0, WS_SIZE); srd(p, 56, 0, 4194304); p('s_mov_b32 s31, 0x20000')
    p('s_bfe_u32 s12, s2, 0x20001'); p('s_lshl_b32 s12, s12, 2'); p('s_bfe_u32 s13, s2, 0x20003'); p('s_add_u32 s12, s12, s13')
    p('s_lshr_b32 s13, s2, 5')
    p('s_and_b32 s14, s2, 1')
    p('v_lshrrev_b32 %s, 6, v0' % R(v_w))
    p('v_and_b32 %s, 63, v0' % lane)
    p('v_readfirstlane_b32 s3, %s' % R(v_w))
    p('v_lshlrev_b32 %s, 4, %s' % (R(v_l16), lane))
    p('v_lshlrev_b32 %s, 2, v0' % R(t[4]))
    p('v_mov_b32 %s, 0' % R(t[5]))
    if XMAP:
        p('s_bfe_u32 s51, s2, 0x10002'); p('s_mul_i32 s51, s51, 28'); p('s_lshr_b32 s50, s2, 3'); p('s_add_u32 s51, s51, s50')
        p('s_and_b32 s52, s2, 1')
        p('s_bfe_u32 s53, s2, 0x10001')
    else:
        p('s_mul_hi_u32 s50, s2, 0x%x' % ((2**32 + 55) // 56))
        p('s_mul_i32 s51, s50, 56')
        p('s_sub_u32 s51, s2, s51')
        p('s_and_b32 s52, s50, 1')
        p('s_bfe_u32 s53, s50, 0x10001')
    p('v_bfe_u32 %s, v0, 3, 5' % R(t[10]))
    p('v_and_b32 %s, 7, v0' % R(t[11]))
    p('s_mov_b32 s55, %d' % (16 * 7168))
    p('v_mul_lo_u32 %s, s55, %s' % (R(t[9]), R(t[10])))
    p('v_lshl_add_u32 %s, %s, 4, %s' % (R(t[9]), R(t[11]), R(t[9])))
    p('s_mul_i32 s54, s53, %d' % (512 * 7168))
    p('s_lshl_b32 s55, s51, 7')
    p('s_add_u32 s54, s54, s55')
    p('s_waitcnt lgkmcnt(0)')
    p('s_cmp_eq_u32 s52, 0')
    p('s_cselect_b32 s4, s38, s40')
    p('s_cselect_b32 s5, s39, s41')
    p('s_cmp_lt_u32 s2, 224')
    p('s_cselect_b32 s6, 0x%x, 0' % (1024 * 3584 * 2))
    p('s_mov_b32 s7, 0x20000')
    def wloads(lo=0, hi=16):
        for i in range(lo, hi):
            p('s_add_u32 s25, s54, %d' % (i * 7168))
            p('buffer_load_dwordx4 %s, %s, s[4:7], s25 offen' % (R(w[i], 0, 4), R(t[9])))
    if fused:
        p('s_waitcnt vmcnt(0)')
        p('s_barrier')
        p('s_lshl_b32 s23, s2, 2'); p('s_add_u32 s23, s23, 0x%x' % (WS_YP2 + 0x40000))
        p('s_cmp_eq_u32 s3, 0'); p('s_cselect_b32 s23, s23, 0x7ffffff0')
        p('v_mov_b32 %s, 1' % R(t[6]))
        p('s_mov_b64 exec, 1')
        p('buffer_store_dword %s, %s, s[8:11], s23 offen sc1' % (R(t[6]), R(t[5])))
        p('s_mov_b64 exec, -1')
        p('s_mov_b32 s23, 0x%x' % (WS_YP2 + 0x40000))
        p('s_mov_b32 s27, 0')
        p.label('%s_gp' % name)
        p('buffer_load_dwordx4 %s, %s, s[8:11], s23 offen sc1' % (R(gr, 0, 4), R(v_l16)))
        p('v_min_u32 %s, %s, %s' % (R(t[6]), R(gr, 0), R(gr, 1)))
        p('v_min3_u32 %s, %s, %s, %s' % (R(t[6]), R(t[6]), R(gr, 2), R(gr, 3)))
        p('v_cmp_eq_u32 vcc, 0, %s' % R(t[6]))
        p('s_add_u32 s27, s27, 1')
        p('s_cmp_ge_u32 s27, %d' % SPIN_MAX)
        p('s_cbranch_scc1 %s_gg' % name)
        p('s_cbranch_vccnz %s_gp' % name)
        p.label('%s_gg' % name)
    p('s_cmp_ge_u32 s3, 4')
    p('s_cbranch_scc1 %s_help' % name)
    p.alt_begin()
    p('v_add_u32 %s, 0x10000, %s' % (R(v_l16b), R(v_l16)))
    p('s_mul_i32 s17, s12, %d' % (8 * O_STRIDE)); p('s_mul_i32 s18, s3, %d' % (2 * O_STRIDE)); p('s_add_u32 s17, s17, s18')
    p('s_lshl_b32 s18, s14, 16'); p('s_add_u32 s17, s17, s18'); p('s_add_u32 s17, s17, 0x%x' % WS_O)
    p('v_add_u32 %s, s17, %s' % (R(v_oo), R(v_l16)))
    p('s_lshl_b32 s20, s3, 12')
    p('s_mul_i32 s18, s13, %d' % W_STRIDE); p('s_lshl_b32 s19, s14, 19'); p('s_add_u32 s18, s18, s19'); p('s_add_u32 s18, s18, s20')
    p('s_add_u32 s18, s18, 0x%x' % WS_WOF)
    p('v_add_u32 %s, s18, %s' % (R(v_wo), R(v_l16)))
    if ROT:
        p('s_bfe_u32 s60, s2, 0x20003'); p('s_mul_i32 s60, s60, %d' % ROT[0])
        p('s_mul_i32 s61, s13, %d' % ROT[1]); p('s_add_u32 s60, s60, s61'); p('s_and_b32 s60, s60, 15')
        p('s_lshl_b32 s61, s60, 12'); p('s_lshl_b32 s60, s60, 15')
    def dma(s):
        if ROT:
            out = [('s_add_u32 s22, s60, 0x%x\ns_and_b32 s22, s22, 0x7ffff' % (s * 16384), None), ('s_add_u32 m0, s20, 0x%x' % ((s % NS) * 16384), None)]
        else:
            out = [('s_mov_b32 s22, 0x%x' % (s * 16384), None), ('s_add_u32 m0, s20, 0x%x' % ((s % NS) * 16384), None)]
        for i in range(4):
            out.append(('buffer_load_dwordx4 %s, s[8:11], s22 offen offset:%d%s lds' % (R(v_wo), i * 1024, SC), 'w%d' % s))
        return out
    def oload(Tt, qs):
        return [('s_add_u32 s23, s61, 0x%x\ns_and_b32 s23, s23, 0x2ffff' % (qs * 131072 + (Tt // 4) * 4096)) if ROT else ('s_mov_b32 s23, 0x%x' % (qs * O_STRIDE + (Tt // 4) * 4096)),
                'buffer_load_dwordx4 %s, %s, s[8:11], s23 offen offset:%d%s' % (R(OB[Tt % PO][qs], 0, 4), R(v_oo), (Tt % 4) * 1024, SC)]
    def rd(f):
        a = ((f // 16) % NS) * 16384 + (f % 16) * 1024
        return 'ds_read_b128 %s, %s offset:%d' % (R(fr[f % NRA], 0, 4), R(v_l16b if a >= 65536 else v_l16), a % 65536)
    for s in range(2):
        if not HDMA:
            for it, tag in dma(s): p(it, tag)
        for Tt in (2 * s, 2 * s + 1):
            for qs in range(2):
                for l in oload(Tt, qs): p(l)
    if not HDMA: p.wait_tag('w0')
    p('s_barrier')
    for f in range(D): p(rd(f))
    sc = Sched()
    dnext = [2]; onext = [8]
    for f in range(NT * 8):
        Tt, n = f // 8, f % 8
        s = f // 16
        for qs in range(2):
            d = R(acc3[n][qs], 0, 4)
            idx = sc.mfma('v_mfma_f32_16x16x32_bf16 %s, %s, %s, %s' % (d, R(fr[f % NRA], 0, 4), R(OB[Tt % PO][qs], 0, 4), '0' if Tt == 0 else d))
        g_ = f + D
        if g_ < NT * 8:
            if g_ % 16 == 0:
                sn = g_ // 16
                if not HDMA: sc.place(idx, lambda p, sn=sn: p.wait_tag('w%d' % sn))
                sc.place(idx, 's_barrier')
            sc.place(idx, rd(g_))
        if not HDMA and f % 8 == 1 and dnext[0] < NSTG and dnext[0] <= s + AH and dnext[0] - NS + 2 <= s:
            dl = dma(dnext[0])
            for it, tag in dl[:3]: sc.place(idx, it, tag)
            for k in range(3): sc.place(idx + 2 * (k + 1), dl[3 + k][0], dl[3 + k][1])
            dnext[0] += 1
        if n in (0, 3, 5, 7) and onext[0] < 2 * NT and onext[0] // 2 <= Tt - 1 + PO:
            for l in oload(onext[0] // 2, onext[0] % 2): sc.place(idx - 1, l)
            onext[0] += 1
    assert (HDMA or dnext[0] == NSTG) and onext[0] == 2 * NT
    def setup1(p):
        p('v_and_b32 %s, 15, %s' % (R(v_xo), lane))
        p('v_lshrrev_b32 %s, 4, %s' % (R(v_ga), lane))
        p('v_lshlrev_b32 %s, %d, %s' % (R(v_xo), 6 if APB else 11, R(v_xo)))
        p('v_lshl_add_u32 %s, %s, 4, %s' % (R(v_xo), R(v_ga), R(v_xo)))
        p('v_lshlrev_b32 %s, 5, %s' % (R(v_ga), R(v_ga)))
        p('v_add_u32 %s, %d, %s' % (R(v_ga), TAB, R(v_ga)))
        p('s_lshl_b32 s27, s12, 18'); p('s_lshl_b32 s26, s3, 16'); p('s_add_u32 s27, s27, s26')
        p('s_lshl_b32 s26, s13, %d' % (12 if APB else 8)); p('s_add_u32 s27, s27, s26')
        p('s_add_u32 s24, s27, 0x8000')
        p('s_cmp_eq_u32 s14, 0'); p('s_cselect_b32 s30, 0x400000, 0')
    sc.place(32 * 8 + 5, setup1)
    for i in range(0 if xrow else 8):
        sc.place(32 * (18 + i) + 9, 'buffer_load_dwordx4 %s, %s, s[28:31], %s offen offset:%d' % (R(xb, 4 * i, 4), R(v_xo), 's24' if i >= 4 else 's27', (i % 4) * 64))
    for m in range(4):
        for h in range(2):
            sc.place(32 * 28 + 6 * (2 * m + h) + 3, 'ds_read_b128 %s, %s offset:%d' % (R(gav, 8 * m + 4 * h, 4), R(v_ga), m * 128 + h * 16))
    sc.emit(p)
    p.stamp(0)
    p('s_lshl_b32 s25, s14, 22'); p('s_add_u32 s25, s25, s27'); p('s_add_u32 s25, s25, 0x%x' % WS_AP)
    p('s_add_u32 s26, s25, 0x8000')
    tmp = [OB[k // 2][k % 2] for k in range(8)]
    for m in range(4):
        for qs in range(2):
            i = qs * 4 + m
            u = tmp[(2 * m + qs) % 4 * 2]
            for d in range(0 if xrow else 4):
                p('v_lshlrev_b32 %s, 16, %s' % (R(u, 2 * d), R(xb, 4 * i + d))); p('v_and_b32 %s, 0xffff0000, %s' % (R(u, 2 * d + 1), R(xb, 4 * i + d)))
            for d in range(4):
                tt = acc3[2 * m + d // 2][qs]
                if xrow: p('v_pk_mul_f32 %s, %s, %s' % (R(u, 2 * d, 2), R(tt, (d % 2) * 2, 2), R(gav, 8 * m + 2 * d, 2)))
                else: p('v_pk_fma_f32 %s, %s, %s, %s' % (R(u, 2 * d, 2), R(tt, (d % 2) * 2, 2), R(gav, 8 * m + 2 * d, 2), R(u, 2 * d, 2)))
            for d in range(4):
                p('v_cvt_pk_bf16_f32 %s, %s, %s' % (R(xb, 4 * i + d), R(u, 2 * d), R(u, 2 * d + 1)))
            p('buffer_store_dwordx4 %s, %s, s[8:11], %s offen offset:%d sc1' % (R(xb, 4 * i, 4), R(v_xo), 's26' if qs else 's25', m * (1024 if APB else 64)), 'ap')
    p.wait_tag('ap')
    p('s_branch %s_join' % name)
    p.alt_next()
    p.label('%s_help' % name)
    H = RA('v', base, 256)
    mp = [H.alloc(2, 2) for _ in range(4)]
    hv = H.alloc(16, 4); hp = H.alloc(8, 4); ha = H.alloc(1); hb = H.alloc(1)
    p('s_sub_u32 s20, s3, 4')
    hw = H.alloc(1)
    bar = [0]
    def hdma(s):
        p('s_mov_b32 s22, 0x%x' % (s * 16384)); p('s_add_u32 m0, s21, 0x%x' % ((s % NS) * 16384))
        for i in range(4):
            p('buffer_load_dwordx4 %s, s[8:11], s22 offen offset:%d lds' % (R(hw), i * 1024), 'w%d' % s)
    def hbar():
        k = bar[0]; bar[0] += 1
        if HDMA: p.wait_tag('w%d' % k)
        p('s_barrier')
        if HDMA and k + AH < NSTG: hdma(k + AH)
        if CPF and k + CPF < NSTG: cpf()
        if SPF and k + SPF < NSTG: spf(k + SPF)
    if SPF:
        p('s_lshr_b32 s60, s2, 3')
        p('s_bfe_u32 s61, s2, 0x20001'); p('s_lshl_b32 s61, s61, 5'); p('s_add_u32 s61, s61, s60')
        p('s_mul_i32 s61, s61, %d' % O_STRIDE); p('s_lshl_b32 s62, s14, 16'); p('s_add_u32 s61, s61, s62')
        p('s_lshl_b32 s62, s20, 9'); p('s_add_u32 s61, s61, s62'); p('s_add_u32 s61, s61, 0x%x' % WS_O)
        p('s_lshr_b32 s62, s60, 2'); p('s_mul_i32 s62, s62, %d' % W_STRIDE); p('s_lshl_b32 s63, s14, 19'); p('s_add_u32 s62, s62, s63')
        p('s_and_b32 s63, s60, 3'); p('s_lshl_b32 s63, s63, 12'); p('s_add_u32 s62, s62, s63')
        p('s_lshl_b32 s63, s20, 10'); p('s_add_u32 s62, s62, s63'); p('s_add_u32 s62, s62, 0x%x' % WS_WOF)
        def spf(st):
            for i in range(512 // SPW): p.raw('s_load_dword s63, s[8:9], s61 offset:0x%x' % (st * 2048 + i * SPW))
            for i in range(1024 // SPW): p.raw('s_load_dword s60, s[8:9], s62 offset:0x%x' % (st * 16384 + i * SPW))
        for s_ in range(3, SPF): spf(s_)
    if CPF:
        ca = H.alloc(1); cs_ = H.alloc(1); cd = H.alloc(1); ct = H.alloc(1)
        p('s_lshr_b32 s60, s2, 3')
        p('s_bfe_u32 s61, s2, 0x20001'); p('s_lshl_b32 s61, s61, 5'); p('s_add_u32 s61, s61, s60')
        p('s_mul_i32 s61, s61, %d' % O_STRIDE); p('s_lshl_b32 s62, s14, 16'); p('s_add_u32 s61, s61, s62')
        p('s_lshl_b32 s62, s20, 9'); p('s_add_u32 s61, s61, s62'); p('s_add_u32 s61, s61, 0x%x' % WS_O)
        p('s_lshr_b32 s62, s60, 2'); p('s_mul_i32 s62, s62, %d' % W_STRIDE); p('s_lshl_b32 s63, s14, 19'); p('s_add_u32 s62, s62, s63')
        p('s_and_b32 s63, s60, 3'); p('s_lshl_b32 s63, s63, 12'); p('s_add_u32 s62, s62, s63')
        p('s_lshl_b32 s63, s20, 10'); p('s_add_u32 s62, s62, s63'); p('s_add_u32 s62, s62, 0x%x' % (WS_WOF - 512))
        p('v_lshlrev_b32 %s, 7, %s' % (R(ct), lane))
        p('v_add_u32 %s, s61, %s' % (R(ca), R(ct))); p('v_add_u32 %s, s62, %s' % (R(cd), R(ct)))
        p('v_cmp_gt_u32 vcc, 4, %s' % lane)
        p('v_cndmask_b32 %s, %s, %s, vcc' % (R(ca), R(cd), R(ca)))
        p('v_mov_b32 %s, 0x4000' % R(cs_)); p('v_mov_b32 %s, 0x800' % R(ct))
        p('v_cndmask_b32 %s, %s, %s, vcc' % (R(cs_), R(cs_), R(ct)))
        def cpf():
            p('s_mov_b64 exec, 0xfff')
            p('buffer_load_dword %s, %s, s[8:11], 0 offen' % (R(cd), R(ca)), 'pf')
            p('s_mov_b64 exec, -1')
            p('v_add_u32 %s, %s, %s' % (R(ca), R(ca), R(cs_)))
        for s_ in range(CPF):
            if s_ < 3: p('v_add_u32 %s, %s, %s' % (R(ca), R(ca), R(cs_)))
            else: cpf()
    if HDMA:
        assert AH <= NS - 2
        p('s_lshl_b32 s21, s20, 12')
        p('s_mul_i32 s18, s13, %d' % W_STRIDE); p('s_lshl_b32 s19, s14, 19'); p('s_add_u32 s18, s18, s19'); p('s_add_u32 s18, s18, s21')
        p('s_add_u32 s18, s18, 0x%x' % WS_WOF)
        p('v_add_u32 %s, s18, %s' % (R(hw), R(v_l16)))
        for s_ in range(AH): hdma(s_)
    p('v_lshlrev_b32 %s, 3, %s' % (R(ha), lane))
    p('s_lshl_b32 s33, s20, 12'); p('s_lshl_b32 s34, s13, 9'); p('s_add_u32 s33, s33, s34')
    for k in range(4):
        p('s_add_u32 s34, s33, 0x%x' % (WS_MODP2 + k * 16384))
        p('buffer_load_dwordx2 %s, %s, s[8:11], s34 offen%s' % (R(mp[k], 0, 2), R(ha), SC))
    def touch():
        p('v_and_b32 %s, 255, v0' % R(hb))
        p('v_mul_u32_u24 %s, %d, %s' % (R(hv, 1), 2 * 7168, R(hb)))
        p('v_and_b32 %s, %d, v0' % (R(hv, 2), 3 if TOUCH == 1 else 0))
        p('v_cmp_eq_u32 vcc, 0, %s' % R(hv, 2))
        p('v_bfrev_b32 %s, -2' % R(hv, 3))
        p('v_cndmask_b32 %s, %s, %s, vcc' % (R(hv, 1), R(hv, 3), R(hv, 1)))
        p('buffer_load_dword %s, %s, s[4:7], s54 offen' % (R(hv, 0), R(hv, 1)), 'pf')
        p('s_mov_b64 s[16:17], s[42:43]'); p('s_mov_b32 s18, 7340032'); p('s_mov_b32 s19, 0x20000')
        p('v_min_u32 %s, 223, %s' % (R(hb), R(hb)))
        p('v_lshlrev_b32 %s, 11, %s' % (R(hv, 4), R(hb)))
        p('v_and_b32 %s, 15, v0' % R(hv, 2))
        p('v_cmp_eq_u32 vcc, 0, %s' % R(hv, 2))
        p('v_cndmask_b32 %s, %s, %s, vcc' % (R(hv, 4), R(hv, 3), R(hv, 4)))
        p('s_lshr_b32 s34, s2, 4'); p('s_mul_i32 s34, s34, %d' % (224 * 2048))
        p('buffer_load_dword %s, %s, s[16:19], s34 offen' % (R(hv, 5), R(hv, 4)), 'pf')
    if TOUCH: touch()
    if WEARLY == 0: wloads(0, 16)
    hbar()
    p('v_pk_add_f32 %s, %s, %s' % (R(mp[0], 0, 2), R(mp[0], 0, 2), R(mp[1], 0, 2)))
    p('v_pk_add_f32 %s, %s, %s' % (R(mp[2], 0, 2), R(mp[2], 0, 2), R(mp[3], 0, 2)))
    p('v_pk_add_f32 %s, %s, %s' % (R(mp[0], 0, 2), R(mp[0], 0, 2), R(mp[2], 0, 2)))
    rb2(p, R(mp[0], 0), R(mp[0], 1), R(mp[1], 0))
    p('s_cmp_eq_u32 s20, 2'); p('s_cselect_b32 s34, 1.0, 0')
    for k in range(2): p('v_add_f32 %s, s34, %s' % (R(mp[0], k), R(mp[0], k)))
    rb2(p, R(mp[0], 0), R(mp[0], 1), R(mp[1], 0))
    p('s_lshl_b32 s34, s20, 9'); p('s_add_u32 s34, s34, %d' % TAB)
    p('v_add_u32 %s, s34, %s' % (R(hb), R(ha)))
    p('ds_write_b64 %s, %s' % (R(hb), R(mp[0], 0, 2)))
    for k in range(2): p('v_or_b32 %s, 1, %s' % (R(mp[2], k), R(mp[0], k)))
    p('s_or_b32 s44, s12, s14')
    p('s_add_u32 s34, s33, 0x%x' % WS_MODF)
    p('s_cmp_eq_u32 s44, 0'); p('s_cselect_b32 s34, s34, 0x7ffffff0')
    p('buffer_store_dwordx2 %s, %s, s[8:11], s34 offen sc1' % (R(mp[2], 0, 2), R(ha)))
    p('s_waitcnt lgkmcnt(0)')
    NB1 = 20
    wleft = list(range(16)) if WEARLY else []
    def wtrickle(bidx):
        if bidx < WEARLY or not wleft: return
        n = -(-len(wleft) // max(1, WLAST - bidx + 1))
        for _ in range(n):
            if wleft:
                i = wleft.pop(0); wloads(i, i + 1)
    if LPF:
        hpf = H.alloc(1); hpd = H.alloc(1)
        p('s_lshl_b32 s35, s2, 12')
        p('v_bfe_u32 %s, v0, 6, 2' % R(hpf)); p('v_lshlrev_b32 %s, 10, %s' % (R(hpf), R(hpf)))
        p('v_lshl_add_u32 %s, %s, 7, %s' % (R(hpf), lane, R(hpf))); p('v_add_u32 %s, s35, %s' % (R(hpf), R(hpf)))
        p('v_cmp_gt_u32 vcc, 8, %s' % lane); p('v_bfrev_b32 %s, -2' % R(hpd))
        p('v_cndmask_b32 %s, %s, %s, vcc' % (R(hpf), R(hpd), R(hpf)))
        p('s_mov_b32 s18, 7340032'); p('s_mov_b32 s19, 0x20000')
        pfl = [(b, i) for b in LPF for i in range(7)]
    for b_ in range(NB1):
        hbar()
        if LPF and b_ >= 1:
            for _ in range(-(-len(LPF) * 7 // (NB1 - 3))):
                if pfl:
                    b, i = pfl.pop(0)
                    p('s_mov_b64 s[16:17], s[%d:%d]' % ({'wg': 38, 'wu': 40, 'wd': 42}[b], {'wg': 39, 'wu': 41, 'wd': 43}[b]))
                    p('s_mov_b32 s35, 0x%x' % (i * 0x100000))
                    p('buffer_load_dword %s, %s, s[16:19], s35 offen' % (R(hpd), R(hpf)), 'pf')
        wtrickle(b_ + 1)
        if EARLY and b_ + 1 == EARLY:
            he = H.alloc(1)
            p('s_mov_b64 s[16:17], s[42:43]'); p('s_mov_b32 s18, 7340032'); p('s_mov_b32 s19, 0x20000')
            p('v_mul_u32_u24 %s, %d, %s' % (R(he), 7 * 2048, R(t[10])))
            p('v_lshl_add_u32 %s, %s, 4, %s' % (R(he), R(t[11]), R(he)))
            assert XMAP
            p('s_and_b32 s34, s2, 7'); p('s_lshl_b32 s34, s34, 1'); p('s_lshr_b32 s35, s2, 7'); p('s_add_u32 s34, s34, s35')
            p('s_mul_i32 s34, s34, %d' % (224 * 2048))
            p('s_bfe_u32 s35, s2, 0x40003'); p('s_lshl_b32 s35, s35, 7'); p('s_add_u32 s34, s34, s35')
            p('s_lshl_b32 s35, s20, 10')
            for i in range(7):
                p('s_add_u32 s26, s34, %d' % (i * 2048))
                p('s_add_u32 m0, s35, %d' % (WDL + i * 4096))
                p('buffer_load_dwordx4 %s, s[16:19], s26 offen lds' % R(he))
            p('s_mov_b32 s30, 0x400000')
            p('s_lshl_b32 s34, s13, 1'); p('s_add_u32 s34, s34, s14'); p('s_lshl_b32 s34, s34, 14')
            p('s_lshl_b32 s26, s12, 18'); p('s_add_u32 s34, s34, s26')
            p('s_lshl_b32 s35, s20, 12'); p('s_add_u32 s34, s34, s35')
            p('s_add_u32 m0, s35, %d' % XL)
            for i in range(4):
                p('buffer_load_dwordx4 %s, s[28:31], s34 offen offset:%d lds' % (R(v_l16), i * 1024))
    assert not LPF or not pfl
    p('s_cmp_lg_u32 s20, 0')
    p('s_cbranch_scc1 %s_hg' % name)
    p('s_mov_b64 s[16:17], s[36:37]'); p('s_mov_b32 s18, 2048'); p('s_mov_b32 s19, 0x20000')
    for i in range(2): p('buffer_load_dwordx4 %s, %s, s[16:19], 0 offen offset:%d' % (R(hp, 4 * i, 4), R(v_l16), i * 1024))
    p('v_add_u32 %s, %d, %s' % (R(hb), MODS + 6144, R(v_l16)))
    for i in range(2): p('ds_write_b128 %s, %s offset:%d' % (R(hb), R(hp, 4 * i, 4), i * 1024))
    p('s_branch %s_hd' % name)
    p.label('%s_hg' % name)
    p('s_lshl_b32 s34, s20, 12'); p('s_add_u32 s34, s34, 0x%x' % WS_MODF)
    p('s_mov_b32 s27, 0')
    p.label('%s_hp' % name)
    for i in range(4): p('buffer_load_dwordx4 %s, %s, s[8:11], s34 offen offset:%d sc1' % (R(hv, 4 * i, 4), R(v_l16), i * 1024))
    p('v_min3_u32 %s, %s, %s, %s' % (R(hb), R(hv, 0), R(hv, 1), R(hv, 2)))
    for i in range(3, 15, 2): p('v_min3_u32 %s, %s, %s, %s' % (R(hb), R(hb), R(hv, i), R(hv, i + 1)))
    p('v_min_u32 %s, %s, %s' % (R(hb), R(hb), R(hv, 15)))
    p('v_cmp_eq_u32 vcc, 0, %s' % R(hb))
    p('s_add_u32 s27, s27, 1')
    p('s_cmp_ge_u32 s27, %d' % SPIN_MAX)
    p('s_cbranch_scc1 %s_hq' % name)
    p('s_cbranch_vccnz %s_hp' % name)
    p.label('%s_hq' % name)
    p('s_mov_b32 s34, 0x07060302')
    for i in range(8): p('v_perm_b32 %s, %s, %s, s34' % (R(hp, i), R(hv, 2 * i + 1), R(hv, 2 * i)))
    p('s_lshl_b32 s34, s20, 11'); p('s_add_u32 s34, s34, %d' % (MODS - 2048))
    p('v_add_u32 %s, s34, %s' % (R(hb), R(ha)))
    for i in range(4): p('ds_write_b64 %s, %s offset:%d' % (R(hb), R(hp, 2 * i, 2), i * 512))
    p.label('%s_hd' % name)
    p.flush()
    for b_ in range(NB1, 31):
        hbar()
        wtrickle(b_ + 1)
    assert not wleft
    p('s_waitcnt lgkmcnt(0)')
    p.alt_end()
    p.label('%s_join' % name)
    p('s_nop 7')
    p('s_barrier')
    p('s_lshl_b32 s21, s13, 1'); p('s_add_u32 s21, s21, s14')
    p('s_lshl_b32 s22, s12, 8'); p('s_add_u32 s22, s22, 0x%x' % WS_RFL)
    p('s_lshl_b32 s23, s21, 2'); p('s_add_u32 s23, s23, s22')
    p('s_cmp_eq_u32 s3, 0'); p('s_cselect_b32 s23, s23, 0x7ffffff0')
    p('v_mov_b32 %s, 1' % R(t[6]))
    p('s_mov_b64 exec, 1')
    p('buffer_store_dword %s, %s, s[8:11], s23 offen sc1' % (R(t[6]), R(t[5])))
    p('s_mov_b64 exec, -1')
    p.stamp(1)
    p('s_lshl_b32 s20, s12, 7'); p('s_lshl_b32 s21, s21, 3'); p('s_add_u32 s20, s20, s21'); p('s_add_u32 s20, s20, s3')
    p('s_lshl_b32 s21, s20, 11')
    if xrow:
        p('s_mov_b32 s30, 0x400000')
        if EARLY:
            p('s_lshl_b32 s24, s3, 11'); p('s_add_u32 s24, s24, %d' % XL)
            p('v_add_u32 %s, s24, %s' % (R(t[12]), R(v_l16)))
        for hf in range(2):
            if EARLY: p('ds_read_b128 %s, %s offset:%d' % (R(x, 4 * hf, 4), R(t[12]), hf * 1024))
            else: p('buffer_load_dwordx4 %s, %s, s[28:31], s21 offen offset:%d' % (R(x, 4 * hf, 4), R(v_l16), hf * 1024))
    p('v_add_u32 %s, %d, %s' % (R(t[12]), MODS, R(v_l16)))
    for i in range(8): p('ds_read_b128 %s, %s offset:%d' % (R(mods, 4 * i, 4), R(t[12]), i * 1024))

    def best_of(ldsoff, n=8):
        p('v_and_b32 %s, %d, %s' % (R(t[7]), n - 1, lane))
        p('v_lshlrev_b32 %s, 4, %s' % (R(t[7]), R(t[7])))
        p('ds_read_b32 %s, %s offset:%d' % (R(u8, 0), R(t[7]), ldsoff))
        p('v_mov_b32 %s, %s' % (R(u8, 1), R(u8, 0)))
        for k in ((1, 2, 4) if n == 8 else (1, 2)): ror_add(p, R(u8, 1), k, 'v_max_u32')
        p('v_cmp_eq_u32 vcc, %s, %s' % (R(u8, 0), R(u8, 1)))
        p('s_ff1_i32_b64 s26, vcc')
        p('s_lshl_b32 s26, s26, 4')
        p('v_mov_b32 %s, s26' % R(t[7]))
        p('ds_read_b128 %s, %s offset:%d' % (R(gr, 0, 4), R(t[7]), ldsoff))
    def sel_x2(dst, a, b):
        p('v_lshlrev_b32 %s, 16, %s' % (a, a)); p('v_lshlrev_b32 %s, 16, %s' % (b, b))
        p('v_add_f32 %s, %s, %s' % (dst, a, b))
        if xrow:
            p('v_lshlrev_b32 %s, 16, %s' % (R(raw, 2), R(raw, 2)))
            p('v_add_f32 %s, %s, %s' % (dst, R(raw, 2), dst))
        rb1(p, dst)
    def gemv(ws_, n):
        for i in range(n):
            if DOT:
                xl = R(u8, i % 8)
                p('v_lshrrev_b32 %s, 16, %s' % (xl, R(x, i)))
                for d in range(4):
                    for h, xx in ((1, R(x, i)), (0, xl)):
                        if i == 0: p('v_dot2_f32_bf16 %s, %s, %s, 0' % (R(acc, 2 * d + h), R(ws_[i], d), xx))
                        else: p('v_dot2c_f32_bf16 %s, %s, %s' % (R(acc, 2 * d + h), R(ws_[i], d), xx))
                continue
            for d in range(4): unpack(p, R(u8, 2 * d), R(u8, 2 * d + 1), R(ws_[i], d))
            for e in range(8):
                if i == 0: p('v_mul_f32 %s, %s, %s' % (R(acc, e), R(x, i), R(u8, e)))
                else: p('v_fmac_f32 %s, %s, %s' % (R(acc, e), R(x, i), R(u8, e)))
        for e in range(4): p('v_permlane32_swap_b32 %s, %s' % (R(acc, e), R(acc, 4 + e)))
        for e in range(4): p('v_add_f32 %s, %s, %s' % (R(acc, e), R(acc, e), R(acc, 4 + e)))
        for e in range(2): p('v_permlane16_swap_b32 %s, %s' % (R(acc, e), R(acc, 2 + e)))
        for e in range(2): p('v_add_f32 %s, %s, %s' % (R(acc, e), R(acc, e), R(acc, 2 + e)))
        for e in range(2): ror_add(p, R(acc, e), 8)
    def wg_sum(ldsoff):
        p('ds_write_b64 %s, %s offset:%d' % (R(t[0]), R(acc, 0, 2), ldsoff))
        p('s_waitcnt lgkmcnt(0)')
        p('s_barrier')
        for i in range(4): p('ds_read_b32 %s, %s offset:%d' % (R(acc, i), R(t[2]), ldsoff + i * 256))
        for i in range(2): p('v_add_f32 %s, %s, %s' % (R(acc, i), R(acc, i), R(acc, 2 + i)))
        p('v_add_f32 %s, %s, %s' % (R(acc, 0), R(acc, 0), R(acc, 1)))
        p('v_or_b32 %s, 1, %s' % (R(acc, 0), R(acc, 0)))
    def poll(tag, loads, test):
        p('s_mov_b32 s27, 0')
        p.label('%s_%sp' % (name, tag))
        loads(); test()
        p('s_add_u32 s27, s27, 1')
        p('s_cmp_ge_u32 s27, %d' % SPIN_MAX)
        p('s_cbranch_scc1 %s_%sg' % (name, tag))
        p('s_cbranch_vccnz %s_%sp' % (name, tag))
        p.label('%s_%sg' % (name, tag))

    a0, a1, b0, b1 = R(u8, 0), R(u8, 1), R(u8, 2), R(u8, 3)
    a01, b01 = R(u8, 0, 2), R(u8, 2, 2)
    b0v = R(fin, 2)
    p('v_mov_b32 %s, 0' % b0v)
    for d in range(8):
        unpack(p, a0, a1, R(mods, MC1 + d)); unpack(p, b0, b1, R(mods, MWR + d))
        p('v_pk_mul_f32 %s, %s, %s' % (R(uf, 2 * d, 2), a01, b01))
        unpack(p, a0, a1, R(mods, MSB + d))
        p('v_fmac_f32 %s, %s, %s' % (b0v, a0, b0)); p('v_fmac_f32 %s, %s, %s' % (b0v, a1, b1))
    for n in (1, 2, 4, 8): ror_add(p, b0v, n)
    xor16_add(p, b0v, a0); xor32_add(p, b0v, a0)
    p('v_and_b32 %s, 255, v0' % R(t[6]))
    p('v_lshlrev_b32 %s, 2, %s' % (R(t[6]), R(t[6])))
    p('s_lshl_b32 s33, s53, 10'); p('s_add_u32 s33, s33, %d' % MODS)
    p('v_add_u32 %s, s33, %s' % (R(t[7]), R(t[6])))
    p('ds_read_b32 %s, %s offset:2048' % (R(sl, 4), R(t[7])))
    p('ds_read_b32 %s, %s' % (R(sl, 6), R(t[7])))
    if XMAP:
        p('s_bfe_u32 s44, s2, 0x40003')
        p('s_and_b32 s45, s2, 7'); p('s_lshl_b32 s45, s45, 1'); p('s_lshr_b32 s47, s2, 7'); p('s_add_u32 s45, s45, s47')
    else:
        p('s_and_b32 s44, s2, 15')
        p('s_lshr_b32 s45, s2, 4')
    p('s_lshl_b32 s47, s44, 7')
    p('s_add_u32 s33, s47, %d' % MODS)
    p('v_lshl_add_u32 %s, %s, 1, s33' % (R(t[7]), lane))
    for k, off in enumerate((2048, 0, 4096)): p('ds_read_u16 %s, %s offset:%d' % (R(mg, 5 + k), R(t[7]), off))
    for r_ in (R(mg, 5), R(mg, 6), R(mg, 7)): p('v_lshlrev_b32 %s, 16, %s' % (r_, r_))
    unpack(p, R(sl, 4), R(sl, 5), R(sl, 4)); unpack(p, R(sl, 6), R(sl, 7), R(sl, 6))
    if xrow:
        for d in range(8): unpack(p, R(xf, 2 * d), R(xf, 2 * d + 1), R(x, d))
    if APB:
        p('s_lshr_b32 s60, s20, 4'); p('s_lshl_b32 s60, s60, 15'); p('s_and_b32 s61, s20, 15'); p('s_lshl_b32 s61, s61, 6')
        p('s_add_u32 s60, s60, s61'); p('s_add_u32 s60, s60, 0x%x' % WS_AP); p('s_add_u32 s61, s60, 16384')
        p('v_lshrrev_b32 %s, 2, %s' % (R(t[1]), lane)); p('v_lshlrev_b32 %s, 10, %s' % (R(t[1]), R(t[1])))
        p('v_and_b32 %s, 3, %s' % (R(t[0]), lane)); p('v_lshl_add_u32 %s, %s, 4, %s' % (R(t[1]), R(t[0]), R(t[1])))
        p('v_add_u32 %s, 0x400000, %s' % (R(t[0]), R(t[1])))
    def wd_loads():
        if EARLY:
            p('s_lshl_b32 s26, s3, 10'); p('s_add_u32 s26, s26, %d' % WDL)
            p('v_add_u32 %s, s26, %s' % (R(t[9]), R(v_l16)))
            for i in range(7): p('ds_read_b128 %s, %s offset:%d' % (R(wd[i], 0, 4), R(t[9]), i * 4096))
            p('s_waitcnt lgkmcnt(0)')
            return
        p('s_mov_b64 s[16:17], s[42:43]'); p('s_mov_b32 s18, 7340032'); p('s_mov_b32 s19, 0x20000')
        p('v_mul_u32_u24 %s, %d, %s' % (R(t[9]), 7 * 2048, R(t[10])))
        p('v_lshl_add_u32 %s, %s, 4, %s' % (R(t[9]), R(t[11]), R(t[9])))
        p('s_mul_i32 s46, s45, %d' % (224 * 2048))
        p('s_add_u32 s46, s46, s47')
        for i in range(7):
            p('s_add_u32 s26, s46, %d' % (i * 2048))
            p('buffer_load_dwordx4 %s, %s, s[16:19], s26 offen' % (R(wd[i], 0, 4), R(t[9])))
    if WDPOS == 2:
        p('s_cmp_ge_u32 s3, 4')
        p('s_cbranch_scc1 %s_nwd' % name)
        wd_loads()
        p.label('%s_nwd' % name)
    p('v_and_b32 %s, 15, %s' % (R(t[7]), lane))
    p('v_lshlrev_b32 %s, 2, %s' % (R(t[7]), R(t[7])))
    if R1:
        p('s_cmp_lg_u32 s3, 0')
        p('s_cbranch_scc1 %s_rs' % name)
    poll('r', lambda: p('buffer_load_dword %s, %s, s[8:11], s22 offen sc1' % (a0, R(t[7]))),
         lambda: p('v_cmp_eq_u32 vcc, 0, %s' % a0))
    if R1:
        p.label('%s_rs' % name)
        p('s_barrier')
    p.stamp(2)
    def aprow(dst, row):
        if APB:
            p('s_lshr_b32 %s, %s, 4' % (dst, row)); p('s_lshl_b32 %s, %s, 15' % (dst, dst))
            p('s_and_b32 s62, %s, 15' % row); p('s_lshl_b32 s62, s62, 6'); p('s_add_u32 %s, %s, s62' % (dst, dst))
        else:
            p('s_lshl_b32 %s, %s, 11' % (dst, row))
    if APB:
        for hf in range(2):
            p('buffer_load_dwordx4 %s, %s, s[8:11], s%d offen sc1' % (R(raw, 4 * hf, 4), R(t[1]), 60 + hf))
            p('buffer_load_dwordx4 %s, %s, s[8:11], s%d offen sc1' % (R(raw, 8 + 4 * hf, 4), R(t[0]), 60 + hf))
    else:
        p('s_add_u32 s22, s21, 0x%x' % WS_AP)
        p('s_add_u32 s23, s22, 0x400000')
        for hf in range(2):
            p('buffer_load_dwordx4 %s, %s, s[8:11], s22 offen offset:%d sc1' % (R(raw, 4 * hf, 4), R(v_l16), hf * 1024))
            p('buffer_load_dwordx4 %s, %s, s[8:11], s23 offen offset:%d sc1' % (R(raw, 8 + 4 * hf, 4), R(v_l16), hf * 1024))
    for d in range(8):
        k = (d % 2) * 4
        A0, A1, B0_, B1 = [R(u8, k + i) for i in range(4)]
        tt = R(t[7 + (d % 2)])
        unpack(p, A0, A1, R(raw, d)); unpack(p, B0_, B1, R(raw, 8 + d))
        if xrow:
            p('v_pk_add_f32 %s, %s, %s' % (R(u8, k, 2), R(u8, k, 2), R(u8, k + 2, 2)))
            p('v_pk_add_f32 %s, %s, %s' % (R(xf, 2 * d, 2), R(xf, 2 * d, 2), R(u8, k, 2)))
        else:
            p('v_pk_add_f32 %s, %s, %s' % (R(xf, 2 * d, 2), R(u8, k, 2), R(u8, k + 2, 2)))
        rb2(p, R(xf, 2 * d), R(xf, 2 * d + 1), tt)
    mean, var, s3v, rcp = R(fin, 4), R(fin, 5), R(fin, 6), R(fin, 7)
    p('v_pk_add_f32 %s, %s, %s' % (a01, R(xf, 0, 2), R(xf, 2, 2)))
    p('v_pk_add_f32 %s, %s, %s' % (b01, R(xf, 4, 2), R(xf, 6, 2)))
    for d in (4, 6):
        p('v_pk_add_f32 %s, %s, %s' % (a01, a01, R(xf, 2 * d, 2)))
        p('v_pk_add_f32 %s, %s, %s' % (b01, b01, R(xf, 2 * d + 2, 2)))
    p('v_pk_add_f32 %s, %s, %s' % (a01, a01, b01))
    p('v_add_f32 %s, %s, %s' % (mean, a0, a1))
    for n in (1, 2, 4, 8): ror_add(p, mean, n)
    xor16_add(p, mean, a0); xor32_add(p, mean, a0)
    p('v_mul_f32 %s, 0x%x, %s' % (mean, f2u(1.0 / 1024), mean))
    for i in range(16): p('v_sub_f32 %s, %s, %s' % (R(raw, i), R(xf, i), mean))
    p('v_pk_mul_f32 %s, %s, %s' % (a01, R(raw, 0, 2), R(raw, 0, 2)))
    p('v_pk_mul_f32 %s, %s, %s' % (b01, R(raw, 0, 2), R(uf, 0, 2)))
    for d in range(1, 8):
        p('v_pk_fma_f32 %s, %s, %s, %s' % (a01, R(raw, 2 * d, 2), R(raw, 2 * d, 2), a01))
        p('v_pk_fma_f32 %s, %s, %s, %s' % (b01, R(raw, 2 * d, 2), R(uf, 2 * d, 2), b01))
    p('v_add_f32 %s, %s, %s' % (var, a0, a1)); p('v_add_f32 %s, %s, %s' % (s3v, b0, b1))
    for n in (1, 2, 4, 8):
        ror_add(p, var, n); ror_add(p, s3v, n)
    xor16_add(p, var, a0); xor16_add(p, s3v, a1)
    xor32_add(p, var, a0); xor32_add(p, s3v, a1)
    p('v_mul_f32 %s, 0x%x, %s' % (var, f2u(1.0 / 1024), var))
    p('v_add_f32 %s, 0x%x, %s' % (a0, f2u(1e-5), var))
    p('v_rsq_f32 %s, %s' % (a0, a0))
    p('v_fma_f32 %s, %s, %s, %s' % (R(gr, 3), s3v, a0, b0v))
    sd = s3v
    ln_scalars(p, mean, var, sd, rcp)
    p('v_mov_b32 %s, %s' % (R(gr, 1), mean))
    p('v_mov_b32 %s, %s' % (R(gr, 2), sd))
    p('v_ashrrev_i32 %s, 31, %s' % (R(t[8]), R(gr, 3)))
    p('v_or_b32 %s, 0x80000000, %s' % (R(t[8]), R(t[8])))
    p('v_xor_b32 %s, %s, %s' % (R(gr, 0), R(gr, 3), R(t[8])))
    p('v_and_b32 %s, 0xfffff800, %s' % (R(gr, 0), R(gr, 0)))
    p('v_max_u32 %s, 0x800, %s' % (R(gr, 0), R(gr, 0)))
    p('s_sub_u32 s24, 2047, s20')
    p('v_or_b32 %s, s24, %s' % (R(gr, 0), R(gr, 0)))
    p('v_lshlrev_b32 %s, 4, %s' % (R(t[7]), R(v_w)))
    p('ds_write_b128 %s, %s' % (R(t[7]), R(gr, 0, 4)))
    p('s_waitcnt lgkmcnt(0)')
    p('s_barrier')
    best_of(0)
    p('s_lshl_b32 s24, s2, 4')
    p('s_add_u32 s24, s24, 0x%x' % WS_KEY2)
    p('s_cmp_eq_u32 s3, 0'); p('s_cselect_b32 s24, s24, 0x7ffffff0')
    p('v_lshlrev_b32 %s, 12, %s' % (R(t[7]), lane))
    p('s_mov_b64 exec, %d' % ((1 << KREP) - 1))
    p('buffer_store_dwordx4 %s, %s, s[8:11], s24 offen sc1' % (R(gr, 0, 4), R(t[7])))
    p('s_mov_b64 exec, -1')
    p.stamp(3)
    if WDPOS == 0:
        p('s_cmp_ge_u32 s3, 4')
        p('s_cbranch_scc1 %s_nwd' % name)
        wd_loads()
        p.label('%s_nwd' % name)
    for hf in range(2):
        X = [R(raw, i) for i in range(8)]
        c1 = [R(raw, 8 + i) for i in range(8)]
        for i in range(8): p('v_sub_f32 %s, %s, %s' % (X[i], R(xf, 8 * hf + i), mean))
        for i in range(0, 8, 2): rb2(p, X[i], X[i + 1], R(t[8]))
        for i in range(8): p('v_mul_f32 %s, %s, %s' % (c1[i], X[i], rcp))
        for i in range(8): p('v_fma_f32 %s, -%s, %s, %s' % (X[i], c1[i], sd, X[i]))
        for i in range(8): p('v_fma_f32 %s, %s, %s, %s' % (X[i], X[i], rcp, c1[i]))
        for i in range(0, 8, 2): rb2(p, X[i], X[i + 1], R(t[8]))
        for op, mo in (('v_pk_mul_f32', MC1), ('v_pk_add_f32', MSB), ('v_pk_mul_f32', MGB)):
            for d in range(4): unpack(p, c1[2 * d], c1[2 * d + 1], R(mods, mo + 4 * hf + d))
            for d in range(4): p('%s %s, %s, %s' % (op, R(raw, 2 * d, 2), R(raw, 2 * d, 2), R(raw, 8 + 2 * d, 2)))
            for i in range(0, 8, 2): rb2(p, X[i], X[i + 1], R(t[8]))
        for d in range(4): p('v_pk_add_f32 %s, %s, %s' % (R(raw, 2 * d, 2), R(raw, 2 * d, 2), R(xf, 8 * hf + 2 * d, 2)))
        for d in range(4): p('v_cvt_pk_bf16_f32 %s, %s, %s' % (R(xf, 8 * hf + d), X[2 * d], X[2 * d + 1]))
    p('v_lshlrev_b32 %s, 5, %s' % (R(t[0]), R(t[11])))
    p('v_bfe_u32 %s, v0, 4, 2' % R(t[2]))
    p('v_lshl_add_u32 %s, %s, 3, %s' % (R(t[0]), R(t[2]), R(t[0])))
    p('v_bfe_u32 %s, v0, 6, 2' % R(t[2]))
    p('v_lshl_add_u32 %s, %s, 8, %s' % (R(t[0]), R(t[2]), R(t[0])))
    p('v_lshlrev_b32 %s, 2, %s' % (R(t[2]), lane))
    def winner():
        best_of(256, 4)
        p('v_and_b32 %s, 0x7ff, %s' % (R(u8, 0), R(gr, 0)))
        p('v_sub_u32 %s, 2047, %s' % (R(u8, 0), R(u8, 0)))
        p('v_readfirstlane_b32 s48, %s' % R(u8, 0))
        p('s_lshl_b32 s49, s48, 11')
        p('v_rcp_f32 %s, %s' % (R(sl, 3), R(gr, 2)))
        p('s_cmp_lg_u32 s48, s20'); p('s_cselect_b32 s23, s21, 0x7ffffff0')
    def out_store():
        for hf in range(2):
            p('buffer_store_dwordx4 %s, %s, s[56:59], s23 offen offset:%d sc1' % (R(xf, 8 * hf, 4), R(v_l16), hf * 1024))
    p('s_cmp_lt_u32 s3, 4')
    p('s_cbranch_scc1 %s_dn' % name)
    p.alt_begin()
    p('v_lshrrev_b32 %s, 6, %s' % (R(t[12]), R(t[6]))); p('v_lshlrev_b32 %s, 10, %s' % (R(t[12]), R(t[12])))
    p('v_and_b32 %s, 63, %s' % (R(t[7]), R(t[6]))); p('v_add_u32 %s, %s, %s' % (R(t[12]), R(t[12]), R(t[7])))
    p('v_lshlrev_b32 %s, 2, %s' % (R(t[7]), R(t[6])))
    p('s_and_b32 s26, s2, %d' % (KREP - 1)); p('s_lshl_b32 s26, s26, 12'); p('s_add_u32 s26, s26, 0x%x' % WS_KEY2)
    poll('w', lambda: p('buffer_load_dwordx4 %s, %s, s[8:11], s26 offen sc1' % (R(gr, 0, 4), R(t[7]))),
         lambda: p('v_cmp_eq_u32 vcc, 0, %s' % R(gr, 0)))
    p('v_mov_b32 %s, %s' % (R(u8, 0), R(gr, 0)))
    for n in (1, 2, 4, 8): ror_add(p, R(u8, 0), n, 'v_max_u32')
    xor16_add(p, R(u8, 0), R(u8, 1), 'v_max_u32'); xor32_add(p, R(u8, 0), R(u8, 1), 'v_max_u32')
    p('v_cmp_eq_u32 vcc, %s, %s' % (R(u8, 0), R(gr, 0)))
    p('v_lshlrev_b32 %s, 4, %s' % (R(t[7]), R(v_w)))
    p('s_and_saveexec_b64 s[26:27], vcc')
    p('ds_write_b128 %s, %s offset:192' % (R(t[7]), R(gr, 0, 4)))
    p('s_mov_b64 exec, s[26:27]')
    p('s_waitcnt lgkmcnt(0)')
    p('s_barrier')
    winner()
    p.stamp(4)
    p('s_lshl_b32 s34, s53, 10')
    p('s_add_u32 s34, s49, s34')
    if APB:
        aprow('s35', 's48')
        p('s_lshl_b32 s33, s53, 14'); p('s_add_u32 s35, s35, s33'); p('s_add_u32 s35, s35, 0x%x' % WS_AP)
        va = R(t[12])
    else:
        p('s_add_u32 s35, s34, 0x%x' % WS_AP)
        va = R(t[6])
    p('s_add_u32 s33, s35, 0x400000')
    p('buffer_load_dword %s, %s, s[8:11], s35 offen sc1' % (R(sl, 0), va))
    p('buffer_load_dword %s, %s, s[8:11], s33 offen sc1' % (R(sl, 1), va))
    if xrow: p('buffer_load_dword %s, %s, s[28:31], s34 offen' % (R(sl, 2), R(t[6])))
    X = [R(x, 0), R(x, 1)]
    unpack(p, a0, a1, R(sl, 0)); unpack(p, b0, b1, R(sl, 1))
    p('v_pk_add_f32 %s, %s, %s' % (R(x, 0, 2), a01, b01))
    if xrow:
        unpack(p, a0, a1, R(sl, 2))
        p('v_pk_add_f32 %s, %s, %s' % (R(x, 0, 2), a01, R(x, 0, 2)))
    rb2(p, X[0], X[1], a0)
    ln_apply(p, X, 2, R(gr, 1), R(gr, 2), R(sl, 3), [R(sl, 4), R(sl, 5)], [R(sl, 6), R(sl, 7)], R(u8, 0), R(u8, 1))
    rb2(p, X[0], X[1], a0)
    p('v_lshlrev_b32 %s, 1, %s' % (R(t[7]), R(t[6])))
    p('ds_write_b64 %s, %s offset:512' % (R(t[7]), R(x, 0, 2)))
    p('v_lshlrev_b32 %s, 6, %s' % (R(t[7]), R(t[10])))
    p('s_waitcnt lgkmcnt(0)')
    for i in range(4):
        p('ds_read_b128 %s, %s offset:%d' % (R(x, 4 * i, 4), R(t[7]), 512 + i * 16))
    p('s_lshl_b32 s26, s52, 1')
    p('s_add_u32 s26, s26, s53')
    p('s_mul_i32 s26, s26, %d' % (3584 * 4))
    p('s_lshl_b32 s25, s51, 8')
    p('s_add_u32 s26, s26, s25')
    p('s_add_u32 s26, s26, 0x%x' % WS_GU2)
    p('s_cmp_lt_u32 s2, 224'); p('s_cselect_b32 s26, s26, 0x7ffffff0')
    p('s_cmp_eq_u32 s3, 4'); p('s_cselect_b32 s26, s26, 0x7ffffff0')
    gemv(w, 16)
    wg_sum(4096)
    p('buffer_store_dword %s, %s, s[8:11], s26 offen sc1' % (R(acc, 0), R(t[2])))
    p.stamp(5)
    out_store()
    p('s_branch %s_end' % name)
    p.alt_next()
    p.label('%s_dn' % name)
    p('s_barrier')
    if WDPOS == 1: wd_loads()
    winner()
    p('s_add_u32 s49, s49, s47')
    p('v_lshlrev_b32 %s, 1, %s' % (R(t[8]), lane))
    if APB:
        aprow('s35', 's48')
        p('s_lshl_b32 s33, s44, 11'); p('s_add_u32 s35, s35, s33'); p('s_add_u32 s35, s35, 0x%x' % WS_AP)
        p('v_lshrrev_b32 %s, 5, %s' % (R(t[12]), lane)); p('v_lshlrev_b32 %s, 10, %s' % (R(t[12]), R(t[12])))
        p('v_and_b32 %s, 63, %s' % (R(t[7]), R(t[8]))); p('v_add_u32 %s, %s, %s' % (R(t[12]), R(t[12]), R(t[7])))
        vb = R(t[12])
    else:
        p('s_add_u32 s35, s49, 0x%x' % WS_AP)
        vb = R(t[8])
    p('s_add_u32 s33, s35, 0x400000')
    p('buffer_load_ushort %s, %s, s[8:11], s35 offen sc1' % (R(raw, 0), vb))
    p('buffer_load_ushort %s, %s, s[8:11], s33 offen sc1' % (R(raw, 1), vb))
    if xrow: p('buffer_load_ushort %s, %s, s[28:31], s49 offen' % (R(raw, 2), R(t[8])))
    out_store()
    g = mg
    p('v_min_u32 %s, 223, v0' % R(t[6]))
    p('v_lshlrev_b32 %s, 2, %s' % (R(t[6]), R(t[6])))
    p('s_mul_i32 s24, s45, %d' % (224 * 4))
    p('s_add_u32 s24, s24, 0x%x' % WS_GU2)
    p('v_mul_u32_u24 %s, 28, %s' % (R(t[7]), R(t[10])))
    p('s_barrier')
    def l1():
        for k in range(4):
            p('s_add_u32 s25, s24, %d' % (k * 3584 * 4))
            p('buffer_load_dword %s, %s, s[8:11], s25 offen sc1' % (R(g, k), R(t[6])))
    def t1():
        p('v_min_u32 %s, %s, %s' % (R(g, 4), R(g, 0), R(g, 1)))
        p('v_min3_u32 %s, %s, %s, %s' % (R(g, 4), R(g, 4), R(g, 2), R(g, 3)))
        p('v_cmp_eq_u32 vcc, 0, %s' % R(g, 4))
    poll('a', l1, t1)
    ga, ua = R(g, 0), R(g, 2)
    p('v_add_f32 %s, %s, %s' % (ga, R(g, 0), R(g, 1)))
    p('v_add_f32 %s, %s, %s' % (ua, R(g, 2), R(g, 3)))
    rb2(p, ga, ua, R(g, 4))
    silu(p, ga, R(g, 4))
    rb1(p, ga)
    p('v_mul_f32 %s, %s, %s' % (ga, ga, ua))
    rb1(p, ga)
    p('ds_write_b32 %s, %s offset:8192' % (R(t[4]), ga))
    p('s_waitcnt lgkmcnt(0)')
    p('s_barrier')
    p.stamp(6)
    for i in range(7): p('ds_read_b32 %s, %s offset:%d' % (R(x, i), R(t[7]), 8192 + 4 * i))
    p('s_lshl_b32 s24, s44, 12')
    p('s_add_u32 s24, s24, 0x%x' % WS_YP2)
    p('s_lshl_b32 s25, s45, 8')
    p('s_add_u32 s25, s25, s24')
    gemv(wd, 7)
    wg_sum(12288)
    p('s_cmp_lg_u32 s3, 0')
    p('s_cbranch_scc1 %s_end' % name)
    p('buffer_store_dword %s, %s, s[8:11], s25 offen sc1' % (R(acc, 0), R(t[2])))
    p('s_cmp_lg_u32 s45, 15')
    p('s_cbranch_scc1 %s_end' % name)
    rsel = R(fin, 2)
    p('v_mov_b32 %s, %s' % (rsel, R(gr, 3)))
    rb1(p, rsel)
    p('v_mul_f32 %s, 0x%x, %s' % (rsel, f2u(-LOG2E), rsel))
    p('v_exp_f32 %s, %s' % (rsel, rsel))
    p('v_add_f32 %s, 1.0, %s' % (rsel, rsel))
    p('v_rcp_f32 %s, %s' % (rsel, rsel))
    rb1(p, rsel)
    sel_x2(R(fin, 0), R(raw, 0), R(raw, 1))
    X = [R(fin, 1), R(fin, 3)]
    p('v_mov_b32 %s, %s' % (X[0], R(fin, 0))); p('v_mov_b32 %s, %s' % (X[1], R(fin, 0)))
    ln_apply(p, X, 2, R(gr, 1), R(gr, 2), R(sl, 3), [R(mg, 5), R(mg, 5)], [R(mg, 6), R(mg, 6)], R(u8, 4), R(u8, 5))
    rb1(p, X[0])
    pp = [R(mu, k) for k in range(16)]
    mn = R(t[6])
    def l2():
        for k in range(15): p('buffer_load_dword %s, %s, s[8:11], s24 offen offset:%d sc1' % (pp[k], R(t[2]), k * 256))
    def t2():
        p('v_min3_u32 %s, %s, %s, %s' % (mn, pp[0], pp[1], pp[2]))
        for k in range(3, 15, 2): p('v_min3_u32 %s, %s, %s, %s' % (mn, mn, pp[k], pp[k + 1]))
        p('v_cmp_eq_u32 vcc, 0, %s' % mn)
    poll('y', l2, t2)
    p.stamp(7)
    p('v_mov_b32 %s, %s' % (pp[15], R(acc, 0)))
    for step in (8, 4, 2, 1):
        for k in range(step): p('v_add_f32 %s, %s, %s' % (pp[k], pp[k], pp[step + k]))
    y = pp[0]
    rb1(p, y)
    p('v_mul_f32 %s, %s, %s' % (y, y, rsel))
    rb1(p, y)
    p('v_add_f32 %s, %s, %s' % (y, y, X[0]))
    rb1(p, y)
    p('v_mul_f32 %s, %s, %s' % (y, y, R(mg, 7)))
    rb1(p, y)
    p('v_add_f32 %s, %s, %s' % (y, y, R(fin, 0)))
    p('v_cvt_pk_bf16_f32 %s, %s, %s' % (y, y, y))
    p('buffer_store_short %s, %s, s[56:59], s49 offen sc1' % (y, R(t[8])))
    p.alt_end()
    p.label('%s_end' % name)
    p('s_endpgm')
    assert H.n <= w[0][1]
    nv = max(G.n, T.n, H.n)
    return p.emit(), dict(vgpr=nv, accum=(nv + 3) // 4 * 4, sgpr=64, lds=(XL + 16384) if EARLY else (MODS + 8192), block=512, grid=256)
```

```python
WS_H     = 0x0000000
WS_KV    = 0x0400000
WS_MODP  = 0x0500000
WS_MODP2 = 0x0520000
WS_MOD   = 0x0580000
WS_MODB  = 0x0588000
WS_SEL   = 0x058C000
WS_ZERO  = 0x0590000
WS_STAT  = 0x0590000
WS_UB    = 0x0596000
WS_CNT   = 0x0596100
WS_PIV   = 0x0598000
WS_GU    = 0x05A0000
WS_YP    = 0x05B0000
WS_X2    = 0x0600000
WS_YP2   = 0x0A00000
WS_KEY2  = 0x0A70000
WS_O     = 0x1000000
WS_WOF   = 0x2200000
WS_AP    = 0x2C00000
WS_KEY   = 0x059A000
WS_XCH   = 0x2800000
WS_XFL   = 0x05B8000
WS_SIZE  = 0x3400000

KA = dict(x=0, k=8, v=16, wq=24, wo=32, bx=40, wr=48, wg=56, wu=64, wd=72, c=80, wmod=88, out=96, dbg=104, ws=112)

import os
O_STRIDE = int(os.environ.get('O_STRIDE', 131072))
W_STRIDE = int(os.environ.get('W_STRIDE', 1048576))
```

```python
from asmdsl import Prog
from layout import *
from k2 import RA, R
from small import f2u, rb1, rb2, unpack, srd, xor16_add, xor32_add, ror_add, silu, ln_apply, ln_scalars

def gen_k1a(name='k1a_kernel', xpf=True, codepf=0, KS=8):
    p = Prog()
    NW = 32 // KS; NWG = 32 * KS; RPS = 1024 // KS; LG = {8: 0, 4: 1}[KS]
    p('s_cmp_ge_u32 s2, %d' % NWG)
    p('s_cbranch_scc1 %s_end' % name)
    p('s_load_dwordx4 s[36:39], s[0:1], %d' % KA['c'])
    p('s_load_dwordx2 s[8:9], s[0:1], %d' % KA['ws'])
    p('s_load_dwordx2 s[16:17], s[0:1], %d' % KA['x'])
    srd(p, 4, 0, 1024 * 6144 * 2); srd(p, 8, 0, WS_SIZE); srd(p, 12, 0, 2048); srd(p, 16, 0, 4194304)
    V = RA('v', 1, 256)
    t = [V.alloc(1) for _ in range(8)]
    w = [V.alloc(4, 4) for _ in range(4)]
    cs = V.alloc(4, 4); acc = V.alloc(8, 4); u = V.alloc(8, 4)
    p('s_and_b32 s20, s2, 31')
    p('s_lshr_b32 s21, s2, 5')
    p('v_lshrrev_b32 %s, 3, v0' % R(t[0]))
    p('v_mul_u32_u24 %s, %d, %s' % (R(t[1]), 4 * 12288, R(t[0])))
    p('v_and_b32 %s, 7, v0' % R(t[2]))
    p('v_lshl_add_u32 %s, %s, 4, %s' % (R(t[1]), R(t[2]), R(t[1])))
    p('v_lshlrev_b32 %s, 3, %s' % (R(t[3]), R(t[0])))
    p('s_mul_i32 s22, s21, %d' % (RPS * 12288))
    p('s_lshl_b32 s23, s20, 7')
    p('s_add_u32 s22, s22, s23')
    p('s_lshl_b32 s24, s21, %d' % (8 + LG))
    p('v_lshlrev_b32 %s, 6, v0' % R(t[4]))
    p('s_lshl_b32 s25, s2, %d' % (14 + LG))
    p('s_waitcnt lgkmcnt(0)')
    p('s_mov_b64 s[12:13], s[36:37]'); p('s_mov_b64 s[4:5], s[38:39]')
    p('buffer_load_dwordx2 %s, %s, s[12:15], s24 offen' % (R(cs, 0, 2), R(t[3])))
    for i in range(4):
        p('s_add_u32 s26, s22, %d' % (i * 12288))
        p('buffer_load_dwordx4 %s, %s, s[4:7], s26 offen' % (R(w[i], 0, 4), R(t[1])))
    if xpf: p('buffer_load_dword %s, %s, s[16:19], s25 offen' % (R(t[5]), R(t[4])), 'pf')
    if codepf:
        n = (codepf // 128 + NWG // 8 - 1) // (NWG // 8)
        p('s_getpc_b64 s[40:41]')
        p('s_mov_b32 s42, %d' % codepf)
        p('s_mov_b32 s43, 0x20000')
        p('v_lshlrev_b32 %s, 7, v0' % R(t[6]))
        p('v_cmp_gt_u32 vcc, %d, v0' % n)
        p('v_bfrev_b32 %s, -2' % R(t[7]))
        p('v_cndmask_b32 %s, %s, %s, vcc' % (R(t[6]), R(t[7]), R(t[6])))
        p('s_lshr_b32 s26, s2, 3')
        p('s_mul_i32 s26, s26, %d' % (n * 128))
        p('buffer_load_dword %s, %s, s[40:43], s26 offen' % (R(t[5]), R(t[6])), 'pf')
    for i in range(2): p('v_mov_b32 %s, 0' % R(acc, i))
    p('v_lshlrev_b32 %s, 2, v0' % R(t[7]))
    p('v_lshlrev_b32 %s, 3, v0' % R(t[6]))
    p('s_lshl_b32 s26, s2, %d' % (11 + LG))
    p('s_add_u32 s26, s26, 0x%x' % WS_YP2)
    p('buffer_store_dwordx2 %s, %s, s[8:11], s26 offen' % (R(acc, 0, 2), R(t[6])))
    p.stamp(0)
    unpack(p, R(cs, 2), R(cs, 3), R(cs, 1))
    unpack(p, R(cs, 0), R(cs, 1), R(cs, 0))
    for i in range(4):
        silu(p, R(cs, i), R(u, i))
    rb2(p, R(cs, 0), R(cs, 1), R(u, 0)); rb2(p, R(cs, 2), R(cs, 3), R(u, 1))
    p.stamp(1)
    for i in range(4):
        for d in range(4): unpack(p, R(u, 2 * d), R(u, 2 * d + 1), R(w[i], d))
        for e in range(8):
            if i == 0: p('v_mul_f32 %s, %s, %s' % (R(acc, e), R(cs, i), R(u, e)))
            else: p('v_fmac_f32 %s, %s, %s' % (R(acc, e), R(cs, i), R(u, e)))
    p.stamp(2)
    for e in range(4): p('v_permlane32_swap_b32 %s, %s' % (R(acc, e), R(acc, 4 + e)))
    for e in range(4): p('v_add_f32 %s, %s, %s' % (R(acc, e), R(acc, e), R(acc, 4 + e)))
    for e in range(2): p('v_permlane16_swap_b32 %s, %s' % (R(acc, e), R(acc, 2 + e)))
    for e in range(2): p('v_add_f32 %s, %s, %s' % (R(acc, e), R(acc, e), R(acc, 2 + e)))
    for e in range(2): ror_add(p, R(acc, e), 8)
    p('v_lshlrev_b32 %s, 5, %s' % (R(t[2]), R(t[2])))
    p('v_bfe_u32 %s, v0, 4, 2' % R(t[3]))
    p('v_lshl_add_u32 %s, %s, 3, %s' % (R(t[2]), R(t[3]), R(t[2])))
    p('v_lshrrev_b32 %s, 6, v0' % R(t[3]))
    p('v_lshl_add_u32 %s, %s, 8, %s' % (R(t[2]), R(t[3]), R(t[2])))
    p('ds_write_b64 %s, %s' % (R(t[2]), R(acc, 0, 2)))
    p('s_waitcnt lgkmcnt(0)')
    p('s_barrier')
    p.stamp(3)
    p('v_cmp_gt_u32 vcc, 64, v0')
    p('s_and_saveexec_b64 s[28:29], vcc')
    p('s_cbranch_execz %s_end' % name)
    for i in range(NW):
        p('ds_read_b32 %s, %s offset:%d' % (R(acc, i), R(t[7]), i * 256))
    p('s_lshl_b32 s26, s21, 13')
    p('s_lshl_b32 s27, s20, 8')
    p('s_add_u32 s26, s26, s27')
    p('s_add_u32 s26, s26, 0x%x' % WS_MODP)
    if NW == 8:
        for i in range(4): p('v_add_f32 %s, %s, %s' % (R(acc, i), R(acc, i), R(acc, 4 + i)))
    p('v_add_f32 %s, %s, %s' % (R(acc, 0), R(acc, 0), R(acc, 1)))
    p('v_add_f32 %s, %s, %s' % (R(acc, 2), R(acc, 2), R(acc, 3)))
    p('v_add_f32 %s, %s, %s' % (R(acc, 0), R(acc, 0), R(acc, 2)))
    p('buffer_store_dword %s, %s, s[8:11], s26 offen' % (R(acc, 0), R(t[7])))
    p.label('%s_end' % name)
    p('s_endpgm')
    nv = V.n
    return p.emit(), dict(vgpr=nv, accum=(nv + 3) // 4 * 4, sgpr=48, lds=2048, block=NW * 64, grid=NWG)

def kv_relayout(p, name, s_wg, p16, a16=False):
    p('s_load_dwordx4 s[40:43], s[0:1], %d' % KA['k'])
    p('s_load_dwordx2 s[8:9], s[0:1], %d' % KA['ws'])
    srd(p, 28, 0, 2097152); srd(p, 32, 0, 2097152); srd(p, 8, 0, WS_SIZE)
    p('v_lshrrev_b32 v1, 6, v0')
    p('v_and_b32 v6, 63, v0')
    p('v_readfirstlane_b32 s21, v1')
    p('s_lshl_b32 s20, %s, 2' % s_wg)
    p('s_add_u32 s20, s20, s21')
    p('s_lshr_b32 s22, s20, 8')
    p('s_bfe_u32 s23, s20, 0x40004')
    p('s_and_b32 s24, s20, 15')
    p('s_lshl_b32 s25, s22, 19')
    p('s_lshl_b32 s26, s23, 13')
    p('s_add_u32 s25, s25, s26')
    p('s_add_u32 s25, s25, %d' % (1536 * 256))
    p('v_and_b32 v2, 31, v6')
    p('v_lshrrev_b32 v3, 5, v6')
    p('v_lshlrev_b32 v4, 4, v6')
    p('s_lshl_b32 s27, s20, 10')
    p('s_add_u32 s27, s27, 0x%x' % WS_KV)
    p('s_waitcnt lgkmcnt(0)')
    p('s_mov_b64 s[28:29], s[40:41]'); p('s_mov_b64 s[32:33], s[42:43]')
    if a16:
        p('v_and_b32 v2, 15, v6')
        p('v_lshrrev_b32 v3, 4, v6')
        p('s_cmp_ge_u32 s24, 8')
        p('s_cbranch_scc1 %s_v' % name)
        p('v_lshlrev_b32 v5, 8, v2')
        p('v_lshl_add_u32 v5, v3, 3, v5')
        p('s_and_b32 s26, s24, 1'); p('s_lshl_b32 s26, s26, 12'); p('s_add_u32 s25, s25, s26')
        p('s_lshr_b32 s26, s24, 1'); p('s_lshl_b32 s26, s26, 6'); p('s_add_u32 s25, s25, s26')
        p('buffer_load_dwordx2 v[8:9], v5, s[28:31], s25 offen')
        p('buffer_load_dwordx2 v[10:11], v5, s[28:31], s25 offen offset:32')
        p('buffer_store_dwordx4 v[8:11], v4, s[8:11], s27 offen sc1')
        p('s_branch %s_end' % name)
        p.label('%s_v' % name)
        p('s_and_b32 s26, s24, 7'); p('s_lshl_b32 s26, s26, 5'); p('s_add_u32 s25, s25, s26')
        p('s_add_u32 s26, s25, 4096')
        p('v_lshlrev_b32 v5, 10, v3')
        p('v_lshl_add_u32 v5, v2, 1, v5')
        for e in range(8):
            p('buffer_load_ushort v%d, v5, s[32:35], %s offen offset:%d' % (12 + e, 's26' if e >= 4 else 's25', (e % 4) * 256))
        for d in range(4):
            p('v_lshl_or_b32 v%d, v%d, 16, v%d' % (8 + d, 12 + 2 * d + 1, 12 + 2 * d))
        p('buffer_store_dwordx4 v[8:11], v4, s[8:11], s27 offen sc1')
        p('s_branch %s_end' % name)
        return
    p('s_cmp_ge_u32 s24, 8')
    p('s_cbranch_scc1 %s_v' % name)
    p('v_lshlrev_b32 v5, 8, v2')
    p('v_lshl_add_u32 v5, v3, %d, v5' % (4 if p16 else 3))
    p('s_lshl_b32 s26, s24, 5')
    p('s_add_u32 s25, s25, s26')
    if p16:
        p('buffer_load_dwordx4 v[8:11], v5, s[28:31], s25 offen')
    else:
        p('buffer_load_dwordx2 v[8:9], v5, s[28:31], s25 offen')
        p('buffer_load_dwordx2 v[10:11], v5, s[28:31], s25 offen offset:16')
    p('buffer_store_dwordx4 v[8:11], v4, s[8:11], s27 offen sc1')
    p('s_branch %s_end' % name)
    p.label('%s_v' % name)
    p('s_bfe_u32 s26, s24, 0x10002')
    p('s_lshl_b32 s26, s26, 12')
    p('s_add_u32 s25, s25, s26')
    p('s_and_b32 s26, s24, 3')
    p('s_lshl_b32 s26, s26, 6')
    p('s_add_u32 s25, s25, s26')
    p('v_lshlrev_b32 v5, 10, v3')
    p('v_lshl_add_u32 v5, v2, 1, v5')
    for e in range(8):
        p('buffer_load_ushort v%d, v5, s[32:35], s25 offen offset:%d' % (12 + e, (8 * (e // 4) + e % 4) * 256))
    for d in range(4):
        p('v_lshl_or_b32 v%d, v%d, 16, v%d' % (8 + d, 12 + 2 * d + 1, 12 + 2 * d))
    p('buffer_store_dwordx4 v[8:11], v4, s[8:11], s27 offen sc1')
    p('s_branch %s_end' % name)

def gen_k1b(name='k1b_kernel', wq_pf_rows=512, p16=True, KS=8, a16=True):
    p = Prog()
    p('s_cmp_ge_u32 s2, 512')
    p('s_cbranch_scc1 %s_end' % name)
    p('s_cmp_lt_u32 s2, 256')
    p('s_cbranch_scc1 %s_h' % name)
    p('s_sub_u32 s19, s2, 256')
    kv_relayout(p, name, 's19', p16, a16)
    p.label('%s_h' % name)
    p('s_load_dwordx2 s[28:29], s[0:1], %d' % KA['x'])
    p('s_load_dwordx2 s[8:9], s[0:1], %d' % KA['ws'])
    p('s_load_dwordx2 s[32:33], s[0:1], %d' % KA['wq'])
    srd(p, 28, 0, 4194304); srd(p, 8, 0, WS_SIZE); srd(p, 32, 0, max(1, wq_pf_rows) * 8192)
    p('s_mov_b32 s3, s2')
    V = RA('v', 1, 256)
    v_r = V.alloc(1); v_c = V.alloc(1); v_xo = V.alloc(1); v_mo = V.alloc(1); v_so = V.alloc(1); v_w = V.alloc(1)
    t = [V.alloc(1, 2 if i == 0 else 1) for i in range(10)]
    xr = [V.alloc(4, 4) for _ in range(4)]
    x = V.alloc(32, 4); c1 = V.alloc(32, 4); sh = V.alloc(32, 4)
    red = V.alloc(8, 4)
    mp = V.alloc(64, 4)
    p('v_and_b32 %s, 7, v0' % R(v_r))
    p('v_bfe_u32 %s, v0, 3, 3' % R(v_c))
    p('v_lshrrev_b32 %s, 6, v0' % R(v_w))
    p('v_lshlrev_b32 %s, 9, %s' % (R(v_mo), R(v_w)))
    p('v_lshl_add_u32 %s, %s, 4, %s' % (R(v_mo), R(v_c), R(v_mo)))
    p('v_lshl_add_u32 %s, %s, 11, %s' % (R(v_xo), R(v_r), R(v_mo)))
    p('v_lshlrev_b32 %s, 4, v0' % R(t[8]))
    p('v_bfrev_b32 %s, -2' % R(t[6]))
    p('s_lshl_b32 s20, s3, 14')
    for i in range(4):
        p('buffer_load_dwordx4 %s, %s, s[28:31], s20 offen offset:%d' % (R(xr[i], 0, 4), R(v_xo), i * 128))
    for k in range(KS):
        for hf in range(2):
            p('s_mov_b32 s21, 0x%x' % (WS_MODP + k * 8192 + hf * 4096))
            p('buffer_load_dwordx4 %s, %s, s[8:11], s21 offen' % (R(mp, (k * 2 + hf) * 4, 4), R(t[8])))
    if wq_pf_rows:
        p('v_lshlrev_b32 %s, 7, v0' % R(t[9]))
        p('v_cmp_gt_u32 vcc, %d, v0' % (wq_pf_rows * 8192 // 256 // 128))
        p('v_cndmask_b32 %s, %s, %s, vcc' % (R(t[9]), R(t[6]), R(t[9])))
        p('s_mul_i32 s21, s3, %d' % (wq_pf_rows * 8192 // 256))
        p('buffer_load_dword %s, %s, s[32:35], s21 offen' % (R(t[7]), R(t[9])), 'pf')
    p.stamp(0)
    for i in range(4):
        for d in range(4): unpack(p, R(x, 8 * i + 2 * d), R(x, 8 * i + 2 * d + 1), R(xr[i], d))
    p.stamp(1)
    X = [R(x, i) for i in range(32)]
    p('v_lshlrev_b32 %s, 5, %s' % (R(t[4]), R(v_r)))
    p('v_lshl_add_u32 %s, %s, 3, %s' % (R(v_so), R(v_w), R(t[4])))
    mean, var, sd, rcp = R(t[0]), R(t[1]), R(t[2]), R(t[3])
    a0, a1 = R(t[5]), R(t[6])
    tmp = R(red, 0)
    p('v_add_f32 %s, %s, %s' % (a0, X[0], X[1])); p('v_add_f32 %s, %s, %s' % (a1, X[2], X[3]))
    for i in range(4, 32, 2):
        p('v_add_f32 %s, %s, %s' % (a0, a0, X[i])); p('v_add_f32 %s, %s, %s' % (a1, a1, X[i + 1]))
    p('v_add_f32 %s, %s, %s' % (mean, a0, a1))
    ror_add(p, mean, 8); xor16_add(p, mean, tmp); xor32_add(p, mean, tmp)
    p('v_mul_f32 %s, 0x%x, %s' % (mean, f2u(1.0 / 256), mean))
    p('v_sub_f32 %s, %s, %s' % (sd, X[0], mean)); p('v_mul_f32 %s, %s, %s' % (a0, sd, sd))
    p('v_sub_f32 %s, %s, %s' % (rcp, X[1], mean)); p('v_mul_f32 %s, %s, %s' % (a1, rcp, rcp))
    for i in range(2, 32, 2):
        p('v_sub_f32 %s, %s, %s' % (sd, X[i], mean)); p('v_sub_f32 %s, %s, %s' % (rcp, X[i + 1], mean))
        p('v_fmac_f32 %s, %s, %s' % (a0, sd, sd)); p('v_fmac_f32 %s, %s, %s' % (a1, rcp, rcp))
    p('v_add_f32 %s, %s, %s' % (var, a0, a1))
    ror_add(p, var, 8); xor16_add(p, var, tmp); xor32_add(p, var, tmp)
    p('ds_write_b64 %s, %s offset:8192' % (R(v_so), R(t[0], 0, 2)))
    p('s_waitcnt lgkmcnt(0)')
    p('s_barrier')
    p('ds_read_b128 %s, %s offset:8192' % (R(red, 0, 4), R(t[4])))
    p('ds_read_b128 %s, %s offset:8208' % (R(red, 4, 4), R(t[4])))
    m = [R(red, 2 * k) for k in range(4)]; q = [R(red, 2 * k + 1) for k in range(4)]
    p('v_add_f32 %s, %s, %s' % (a0, m[0], m[1])); p('v_add_f32 %s, %s, %s' % (a1, m[2], m[3]))
    p('v_add_f32 %s, %s, %s' % (mean, a0, a1)); p('v_mul_f32 %s, 0x%x, %s' % (mean, f2u(0.25), mean))
    p('v_add_f32 %s, %s, %s' % (a0, q[0], q[1])); p('v_add_f32 %s, %s, %s' % (a1, q[2], q[3]))
    p('v_add_f32 %s, %s, %s' % (var, a0, a1))
    for k in range(4): p('v_sub_f32 %s, %s, %s' % (m[k], m[k], mean))
    p('v_mul_f32 %s, %s, %s' % (a0, m[0], m[0]))
    for k in range(1, 4): p('v_fmac_f32 %s, %s, %s' % (a0, m[k], m[k]))
    p('v_fmamk_f32 %s, %s, 0x%x, %s' % (var, a0, f2u(256.0), var))
    p('v_mul_f32 %s, 0x%x, %s' % (var, f2u(1.0 / 1024), var))
    ln_scalars(p, mean, var, sd, rcp)
    p.stamp(2)
    NP = KS * 8
    step = NP // 2
    while step >= 8:
        for i in range(0, step, 2): p('v_pk_add_f32 %s, %s, %s' % (R(mp, i, 2), R(mp, i, 2), R(mp, step + i, 2)))
        step //= 2
    for i in range(0, 8, 2): rb2(p, R(mp, i), R(mp, i + 1), a0)
    for i in range(4, 8): p('v_add_f32 %s, 1.0, %s' % (R(mp, i), R(mp, i)))
    for i in range(4, 8, 2): rb2(p, R(mp, i), R(mp, i + 1), a0)
    p('ds_write_b128 %s, %s' % (R(t[8]), R(mp, 0, 4)))
    p('ds_write_b128 %s, %s offset:4096' % (R(t[8]), R(mp, 4, 4)))
    p('v_lshlrev_b32 %s, 1, %s' % (R(t[9]), R(v_mo)))
    p('s_waitcnt lgkmcnt(0)')
    for i in range(4):
        for hf in range(2):
            p('ds_read_b128 %s, %s offset:%d' % (R(c1, 8 * i + 4 * hf, 4), R(t[9]), 4096 + i * 256 + hf * 16))
            p('ds_read_b128 %s, %s offset:%d' % (R(sh, 8 * i + 4 * hf, 4), R(t[9]), i * 256 + hf * 16))
    p('v_lshlrev_b32 %s, %d, %s' % (R(v_so), 4 if p16 else 5, R(v_mo)))
    p('v_lshl_add_u32 %s, %s, 4, %s' % (R(v_so), R(v_r), R(v_so)))
    p('s_lshr_b32 s23, s3, %d' % (1 if p16 else 2))
    p('s_lshl_b32 s23, s23, %d' % (15 if p16 else 16))
    p('s_and_b32 s24, s3, %d' % (1 if p16 else 3))
    p('s_lshl_b32 s24, s24, 7')
    p('s_add_u32 s23, s23, s24')
    if WS_H: p('s_add_u32 s23, s23, 0x%x' % WS_H)
    pm = (mp[0], mp[1] + 8); ps = (mp[0], mp[1] + 10); pr = (mp[0], mp[1] + 12); tq = (mp[0], mp[1] + 16)
    for k in range(2):
        p('v_sub_f32 %s, 0, %s' % (R(pm, k), mean)); p('v_sub_f32 %s, 0, %s' % (R(ps, k), sd)); p('v_mov_b32 %s, %s' % (R(pr, k), rcp))
    for i in range(4):
        P2 = lambda k: R(x, 8 * i + k, 2)
        for k in range(0, 8, 2): p('v_pk_add_f32 %s, %s, %s' % (P2(k), P2(k), R(pm, 0, 2)))
        for k in range(0, 8, 2): rb2(p, X[8 * i + k], X[8 * i + k + 1], R(red, k // 2))
        for k in range(0, 8, 2): p('v_pk_mul_f32 %s, %s, %s' % (R(tq, k, 2), P2(k), R(pr, 0, 2)))
        for k in range(0, 8, 2): p('v_pk_fma_f32 %s, %s, %s, %s' % (P2(k), R(tq, k, 2), R(ps, 0, 2), P2(k)))
        for k in range(0, 8, 2): p('v_pk_fma_f32 %s, %s, %s, %s' % (P2(k), P2(k), R(pr, 0, 2), R(tq, k, 2)))
        for k in range(0, 8, 2): rb2(p, X[8 * i + k], X[8 * i + k + 1], R(red, k // 2))
        for k in range(0, 8, 2): p('v_pk_mul_f32 %s, %s, %s' % (P2(k), P2(k), R(c1, 8 * i + k, 2)))
        for k in range(0, 8, 2): rb2(p, X[8 * i + k], X[8 * i + k + 1], R(red, k // 2))
        for k in range(0, 8, 2): p('v_pk_add_f32 %s, %s, %s' % (P2(k), P2(k), R(sh, 8 * i + k, 2)))
        for d in range(4):
            p('v_cvt_pk_bf16_f32 %s, %s, %s' % (R(xr[i], d), X[8 * i + 2 * d], X[8 * i + 2 * d + 1]))
        p('s_add_u32 s24, s23, %d' % (i * (2048 if p16 else 4096)))
        p('buffer_store_dwordx4 %s, %s, s[8:11], s24 offen sc1' % (R(xr[i], 0, 4), R(v_so)))
    p.stamp(6)
    p.label('%s_end' % name)
    p('s_endpgm')
    nv = V.n
    return p.emit(), dict(vgpr=nv, accum=(nv + 3) // 4 * 4, sgpr=48, lds=9216, block=256, grid=512)
```

```python
from asmdsl import Prog
from layout import *
from k2 import RA, R
from small import f2u, rb1, rb2, unpack, srd, xor16_add, xor32_add, ror_add, silu, ln_apply, ln_scalars
from pre2 import kv_relayout
SPIN_MAX = 1 << 18
WS_FLG = WS_MODP + 0x10000

def gen_k1(name='k1_kernel', wq_pf_rows=256, p16=True, xlate=0, pfwait=False, constnonce=False, wot=0):
    p = Prog()
    p('s_cmp_ge_u32 s2, 512')
    p('s_cbranch_scc1 %s_end' % name)
    p('s_cmp_lt_u32 s2, 256')
    p('s_cbranch_scc1 %s_h' % name)
    p('s_sub_u32 s19, s2, 256')
    p('s_load_dwordx2 s[44:45], s[0:1], %d' % KA['wq'])
    p('s_load_dwordx2 s[8:9], s[0:1], %d' % KA['ws'])
    p('s_load_dwordx2 s[48:49], s[0:1], %d' % KA['dbg'])
    srd(p, 44, 0, 8388608); srd(p, 8, 0, WS_SIZE); srd(p, 48, 0, 256)
    p('v_mov_b32 v22, 0'); p('v_mov_b32 v23, 0')
    p('v_lshlrev_b32 v24, 3, v0')
    p('s_lshl_b32 s26, s19, 11')
    p('s_add_u32 s26, s26, 0x%x' % WS_YP2)
    p('buffer_store_dwordx2 v[22:23], v24, s[8:11], s26 offen')
    class KV:
        n = 0
        def __init__(self): pass
        def __call__(self, t, tag=None):
            if t.startswith('buffer_store_dwordx4') and wq_pf_rows:
                p('v_lshlrev_b32 v25, 7, v0')
                p('v_cmp_gt_u32 vcc, %d, v0' % (wq_pf_rows * 8192 // 256 // 128))
                p('v_bfrev_b32 v26, -2')
                p('v_cndmask_b32 v25, v26, v25, vcc')
                p('s_mul_i32 s18, s19, %d' % (wq_pf_rows * 8192 // 256))
                p(t, tag)
                if pfwait:
                    KV.n += 1
                    p('s_lshl_b32 s17, s19, 2')
                    p('s_add_u32 s17, s17, 0x%x' % WS_FLG)
                    p('s_mov_b32 s16, 0')
                    p.label('%s_pw%d' % (name, KV.n))
                    p('buffer_load_dword v28, v22, s[48:51], 0 offen sc1')
                    p('buffer_load_dword v29, v22, s[8:11], s17 offen sc1')
                    p('s_waitcnt vmcnt(0)')
                    p('v_cmp_ne_u32 vcc, v28, v29')
                    p('v_cmp_eq_u32 s[14:15], 0, v28')
                    p('s_or_b64 vcc, vcc, s[14:15]')
                    p('s_add_u32 s16, s16, 1')
                    p('s_cmp_ge_u32 s16, 64')
                    p('s_cbranch_scc1 %s_pg%d' % (name, KV.n))
                    p('s_cbranch_vccnz %s_pw%d' % (name, KV.n))
                    p.label('%s_pg%d' % (name, KV.n))
                p('buffer_load_dword v27, v25, s[44:47], s18 offen', 'pf')
                return
            if t.startswith('s_branch') and wot:
                p('s_branch %s_wot' % name); return
            p(t, tag)
        def label(self, n): p.label(n)
    kv_relayout(KV(), name, 's19', p16, True)
    if wot:
        p.label('%s_wot' % name)
        p('s_load_dwordx2 s[28:29], s[0:1], %d' % KA['wo'])
        p('s_mov_b32 s30, 0x800000'); p('s_mov_b32 s31, 0x20000')
        p('v_bfe_u32 v30, v6, 2, 2'); p('v_lshrrev_b32 v31, 4, v6'); p('v_and_b32 v32, 3, v6')
        p('v_lshlrev_b32 v33, 11, v30'); p('v_lshl_add_u32 v33, v31, 6, v33'); p('v_lshl_add_u32 v33, v32, 4, v33')
        p('s_lshr_b32 s37, s19, 1'); p('s_lshl_b32 s27, s37, 13'); p('s_lshl_b32 s37, s37, 16')
        p('s_and_b32 s39, s19, 1'); p('s_lshl_b32 s39, s39, 2'); p('s_add_u32 s39, s39, s21')
        p('s_lshl_b32 s38, s39, 8'); p('s_add_u32 s37, s37, s38')
        p('s_mul_i32 s39, s39, %d' % W_STRIDE); p('s_add_u32 s39, s39, s27'); p('s_add_u32 s39, s39, 0x%x' % WS_WOF)
        p('s_lshl_b32 s38, s21, 13')
        p('v_lshlrev_b32 v34, 6, v30'); p('v_lshl_add_u32 v34, v32, 4, v34'); p('v_lshl_add_u32 v34, v31, 10, v34')
        p('v_add_u32 v34, s38, v34')
        p('s_waitcnt %s' % ('vmcnt(0) lgkmcnt(0)' if wot == 2 else 'lgkmcnt(0)'))
        for i in range(8):
            p('s_add_u32 s26, s37, %d' % (i * 4 * 2048))
            p('s_add_u32 m0, s38, %d' % (i * 1024))
            p('buffer_load_dwordx4 v33, s[28:31], s26 offen lds')
        p('s_waitcnt vmcnt(0)')
        for N in range(8):
            for e in range(2):
                p('ds_read_b64_tr_b16 v[%d:%d], v34 offset:%d' % (36 + 4 * N + 2 * e, 37 + 4 * N + 2 * e, e * 4096 + (N // 2) * 256 + (N % 2) * 8))
        for N in range(8):
            p('s_add_u32 s26, s39, 0x%x' % ((N // 4) * 4096))
            p('buffer_store_dwordx4 v[%d:%d], v4, s[8:11], s26 offen offset:%d sc1' % (36 + 4 * N, 39 + 4 * N, (N % 4) * 1024))
        p('s_branch %s_end' % name)
    p.label('%s_h' % name)
    p('s_load_dwordx4 s[36:39], s[0:1], %d' % KA['c'])
    p('s_load_dwordx2 s[28:29], s[0:1], %d' % KA['x'])
    p('s_load_dwordx4 s[40:43], s[0:1], %d' % KA['dbg'])
    p('s_memrealtime s[46:47]')
    srd(p, 4, 0, 1024 * 6144 * 2); srd(p, 8, 0, WS_SIZE); srd(p, 12, 0, 2048); srd(p, 28, 0, 4194304); srd(p, 16, 0, 256)
    V = RA('v', 1, 256)
    v_r = V.alloc(1); v_c = V.alloc(1); v_xo = V.alloc(1); v_mo = V.alloc(1); v_so = V.alloc(1); v_w = V.alloc(1)
    t = [V.alloc(1, 2 if i == 0 else 1) for i in range(14)]
    xr = [V.alloc(4, 4) for _ in range(4)]
    x = V.alloc(32, 4); c1 = V.alloc(32, 4); sh = V.alloc(32, 4)
    red = V.alloc(8, 4)
    mp = V.alloc(64, 4)
    w = [(c1[0], c1[1] + 4 * i) for i in range(4)]
    cs = (c1[0], c1[1] + 16); acc = (sh[0], sh[1]); u = (sh[0], sh[1] + 8)
    non = R(t[10]); zero = R(t[11])
    p('s_and_b32 s20, s2, 31')
    p('s_lshr_b32 s21, s2, 5')
    p('v_lshrrev_b32 %s, 3, v0' % R(t[0]))
    p('v_mul_u32_u24 %s, %d, %s' % (R(t[1]), 4 * 12288, R(t[0])))
    p('v_and_b32 %s, 7, v0' % R(v_r))
    p('v_lshl_add_u32 %s, %s, 4, %s' % (R(t[1]), R(v_r), R(t[1])))
    p('v_lshlrev_b32 %s, 3, %s' % (R(t[3]), R(t[0])))
    p('s_mul_i32 s22, s21, %d' % (128 * 12288))
    p('s_lshl_b32 s23, s20, 7')
    p('s_add_u32 s22, s22, s23')
    p('s_lshl_b32 s24, s21, 8')
    p('v_bfe_u32 %s, v0, 3, 3' % R(v_c))
    p('v_lshrrev_b32 %s, 6, v0' % R(v_w))
    p('v_readfirstlane_b32 s3, %s' % R(v_w))
    p('v_lshlrev_b32 %s, 9, %s' % (R(v_mo), R(v_w)))
    p('v_lshl_add_u32 %s, %s, 4, %s' % (R(v_mo), R(v_c), R(v_mo)))
    p('v_lshl_add_u32 %s, %s, 11, %s' % (R(v_xo), R(v_r), R(v_mo)))
    p('v_lshlrev_b32 %s, 4, v0' % R(t[8]))
    p('v_lshlrev_b32 %s, 2, v0' % R(t[7]))
    p('v_mov_b32 %s, 0' % zero)
    p('s_lshl_b32 s25, s2, 14')
    p('s_waitcnt lgkmcnt(0)')
    p('s_mov_b64 s[12:13], s[36:37]'); p('s_mov_b64 s[4:5], s[38:39]')
    p('s_mov_b64 s[16:17], s[40:41]'); p('s_mov_b64 s[8:9], s[42:43]')
    p('s_or_b32 s44, s46, 1')
    if constnonce: p('s_mov_b32 s44, 0x5eed1235')
    p('v_mov_b32 %s, s44' % non)
    p('s_or_b32 s45, s2, s3')
    p('s_cmp_eq_u32 s45, 0'); p('s_cselect_b32 s45, 0, 0x7ffffff0')
    p('s_mov_b64 exec, 1')
    if not constnonce: p('buffer_store_dword %s, %s, s[16:19], s45 offen sc1' % (non, zero))
    p('s_mov_b64 exec, -1')
    p('buffer_load_dwordx2 %s, %s, s[12:15], s24 offen' % (R(cs, 0, 2), R(t[3])))
    for i in range(4):
        p('s_add_u32 s26, s22, %d' % (i * 12288))
        p('buffer_load_dwordx4 %s, %s, s[4:7], s26 offen' % (R(w[i], 0, 4), R(t[1])))
    if not xlate:
        for i in range(4):
            p('buffer_load_dwordx4 %s, %s, s[28:31], s25 offen offset:%d' % (R(xr[i], 0, 4), R(v_xo), i * 128))
    p.stamp(0)
    unpack(p, R(cs, 2), R(cs, 3), R(cs, 1))
    unpack(p, R(cs, 0), R(cs, 1), R(cs, 0))
    for i in range(4): silu(p, R(cs, i), R(u, i))
    rb2(p, R(cs, 0), R(cs, 1), R(u, 0)); rb2(p, R(cs, 2), R(cs, 3), R(u, 1))
    for i in range(4):
        for d in range(4): unpack(p, R(u, 2 * d), R(u, 2 * d + 1), R(w[i], d))
        for e in range(8):
            if i == 0: p('v_mul_f32 %s, %s, %s' % (R(acc, e), R(cs, i), R(u, e)))
            else: p('v_fmac_f32 %s, %s, %s' % (R(acc, e), R(cs, i), R(u, e)))
    if xlate == 1:
        for i in range(4):
            p('buffer_load_dwordx4 %s, %s, s[28:31], s25 offen offset:%d' % (R(xr[i], 0, 4), R(v_xo), i * 128))
    for e in range(4): p('v_permlane32_swap_b32 %s, %s' % (R(acc, e), R(acc, 4 + e)))
    for e in range(4): p('v_add_f32 %s, %s, %s' % (R(acc, e), R(acc, e), R(acc, 4 + e)))
    for e in range(2): p('v_permlane16_swap_b32 %s, %s' % (R(acc, e), R(acc, 2 + e)))
    for e in range(2): p('v_add_f32 %s, %s, %s' % (R(acc, e), R(acc, e), R(acc, 2 + e)))
    for e in range(2): ror_add(p, R(acc, e), 8)
    p('v_lshlrev_b32 %s, 5, %s' % (R(t[2]), R(v_r)))
    p('v_bfe_u32 %s, v0, 4, 2' % R(t[3]))
    p('v_lshl_add_u32 %s, %s, 3, %s' % (R(t[2]), R(t[3]), R(t[2])))
    p('v_lshl_add_u32 %s, %s, 8, %s' % (R(t[2]), R(v_w), R(t[2])))
    p('ds_write_b64 %s, %s offset:9216' % (R(t[2]), R(acc, 0, 2)))
    p('v_and_b32 %s, 63, v0' % R(t[12]))
    p('v_lshlrev_b32 %s, 2, %s' % (R(t[12]), R(t[12])))
    p('s_waitcnt lgkmcnt(0)')
    p('s_barrier')
    p.stamp(1)
    for i in range(4):
        p('ds_read_b32 %s, %s offset:%d' % (R(acc, i), R(t[12]), 9216 + i * 256))
    p('s_lshl_b32 s26, s21, 13')
    p('s_lshl_b32 s27, s20, 8')
    p('s_add_u32 s26, s26, s27')
    p('s_add_u32 s26, s26, 0x%x' % WS_MODP)
    p('s_cmp_eq_u32 s3, 0'); p('s_cselect_b32 s26, s26, 0x7ffffff0')
    p('v_add_f32 %s, %s, %s' % (R(acc, 0), R(acc, 0), R(acc, 1)))
    p('v_add_f32 %s, %s, %s' % (R(acc, 2), R(acc, 2), R(acc, 3)))
    p('v_add_f32 %s, %s, %s' % (R(acc, 0), R(acc, 0), R(acc, 2)))
    p('buffer_store_dword %s, %s, s[8:11], s26 offen sc1' % (R(acc, 0), R(t[12])))
    p('s_mov_b32 s27, 0')
    p.label('%s_np' % name)
    if not constnonce: p('buffer_load_dword %s, %s, s[16:19], 0 offen sc1' % (non, zero))
    p('s_waitcnt vmcnt(0)')
    p('v_cmp_eq_u32 vcc, 0, %s' % non)
    p('s_add_u32 s27, s27, 1')
    p('s_cmp_ge_u32 s27, %d' % SPIN_MAX)
    p('s_cbranch_scc1 %s_ng' % name)
    p('s_cbranch_vccnz %s_np' % name)
    p.label('%s_ng' % name)
    p('s_lshl_b32 s26, s2, 2')
    p('s_add_u32 s26, s26, 0x%x' % WS_FLG)
    p('s_cmp_eq_u32 s3, 0'); p('s_cselect_b32 s26, s26, 0x7ffffff0')
    p('s_mov_b64 exec, 1')
    p('buffer_store_dword %s, %s, s[8:11], s26 offen sc1' % (non, zero))
    p('s_mov_b64 exec, -1')
    if xlate == 2:
        for i in range(4):
            p('buffer_load_dwordx4 %s, %s, s[28:31], s25 offen offset:%d' % (R(xr[i], 0, 4), R(v_xo), i * 128))
    p.stamp(2)
    for i in range(4):
        for d in range(4): unpack(p, R(x, 8 * i + 2 * d), R(x, 8 * i + 2 * d + 1), R(xr[i], d))
    X = [R(x, i) for i in range(32)]
    p('v_lshlrev_b32 %s, 5, %s' % (R(t[4]), R(v_r)))
    p('v_lshl_add_u32 %s, %s, 3, %s' % (R(v_so), R(v_w), R(t[4])))
    mean, var, sd, rcp = R(t[0]), R(t[1]), R(t[2]), R(t[3])
    a0, a1 = R(t[5]), R(t[6])
    tmp = R(red, 0)
    p('v_add_f32 %s, %s, %s' % (a0, X[0], X[1])); p('v_add_f32 %s, %s, %s' % (a1, X[2], X[3]))
    for i in range(4, 32, 2):
        p('v_add_f32 %s, %s, %s' % (a0, a0, X[i])); p('v_add_f32 %s, %s, %s' % (a1, a1, X[i + 1]))
    p('v_add_f32 %s, %s, %s' % (mean, a0, a1))
    ror_add(p, mean, 8); xor16_add(p, mean, tmp); xor32_add(p, mean, tmp)
    p('v_mul_f32 %s, 0x%x, %s' % (mean, f2u(1.0 / 256), mean))
    p('v_sub_f32 %s, %s, %s' % (sd, X[0], mean)); p('v_mul_f32 %s, %s, %s' % (a0, sd, sd))
    p('v_sub_f32 %s, %s, %s' % (rcp, X[1], mean)); p('v_mul_f32 %s, %s, %s' % (a1, rcp, rcp))
    for i in range(2, 32, 2):
        p('v_sub_f32 %s, %s, %s' % (sd, X[i], mean)); p('v_sub_f32 %s, %s, %s' % (rcp, X[i + 1], mean))
        p('v_fmac_f32 %s, %s, %s' % (a0, sd, sd)); p('v_fmac_f32 %s, %s, %s' % (a1, rcp, rcp))
    p('v_add_f32 %s, %s, %s' % (var, a0, a1))
    ror_add(p, var, 8); xor16_add(p, var, tmp); xor32_add(p, var, tmp)
    p('ds_write_b64 %s, %s offset:8192' % (R(v_so), R(t[0], 0, 2)))
    p('s_waitcnt lgkmcnt(0)')
    p('s_barrier')
    p('ds_read_b128 %s, %s offset:8192' % (R(red, 0, 4), R(t[4])))
    p('ds_read_b128 %s, %s offset:8208' % (R(red, 4, 4), R(t[4])))
    m = [R(red, 2 * k) for k in range(4)]; q = [R(red, 2 * k + 1) for k in range(4)]
    p('v_add_f32 %s, %s, %s' % (a0, m[0], m[1])); p('v_add_f32 %s, %s, %s' % (a1, m[2], m[3]))
    p('v_add_f32 %s, %s, %s' % (mean, a0, a1)); p('v_mul_f32 %s, 0x%x, %s' % (mean, f2u(0.25), mean))
    p('v_add_f32 %s, %s, %s' % (a0, q[0], q[1])); p('v_add_f32 %s, %s, %s' % (a1, q[2], q[3]))
    p('v_add_f32 %s, %s, %s' % (var, a0, a1))
    for k in range(4): p('v_sub_f32 %s, %s, %s' % (m[k], m[k], mean))
    p('v_mul_f32 %s, %s, %s' % (a0, m[0], m[0]))
    for k in range(1, 4): p('v_fmac_f32 %s, %s, %s' % (a0, m[k], m[k]))
    p('v_fmamk_f32 %s, %s, 0x%x, %s' % (var, a0, f2u(256.0), var))
    p('v_mul_f32 %s, 0x%x, %s' % (var, f2u(1.0 / 1024), var))
    ln_scalars(p, mean, var, sd, rcp)
    for i in range(32): p('v_sub_f32 %s, %s, %s' % (X[i], X[i], mean))
    for i in range(0, 32, 2): rb2(p, X[i], X[i + 1], a0)
    for i in range(32):
        tt = R(red, i % 4)
        p('v_mul_f32 %s, %s, %s' % (tt, X[i], rcp))
        p('v_fma_f32 %s, -%s, %s, %s' % (X[i], tt, sd, X[i]))
        p('v_fma_f32 %s, %s, %s, %s' % (X[i], X[i], rcp, tt))
    for i in range(0, 32, 2): rb2(p, X[i], X[i + 1], a0)
    p.stamp(3)
    p('v_and_b32 %s, 3, v0' % R(t[13]))
    p('v_lshl_add_u32 %s, %s, 2, %s' % (R(t[13]), R(v_w), R(t[13])))
    p('v_bfe_u32 %s, v0, 2, 4' % R(t[9]))
    p('v_lshl_add_u32 %s, %s, 4, %s' % (R(t[13]), R(t[9]), R(t[13])))
    p('v_lshlrev_b32 %s, 2, %s' % (R(t[13]), R(t[13])))
    p('s_mov_b32 s26, 0x%x' % WS_FLG)
    p('s_mov_b32 s27, 0')
    p.label('%s_fp' % name)
    p('buffer_load_dword %s, %s, s[8:11], s26 offen sc1' % (a0, R(t[13])))
    p('v_cmp_ne_u32 vcc, %s, %s' % (a0, non))
    p('s_add_u32 s27, s27, 1')
    p('s_cmp_ge_u32 s27, %d' % SPIN_MAX)
    p('s_cbranch_scc1 %s_fg' % name)
    p('s_cbranch_vccnz %s_fp' % name)
    p.label('%s_fg' % name)
    p.stamp(4)
    for k in range(8):
        for hf in range(2):
            p('s_mov_b32 s21, 0x%x' % (WS_MODP + k * 8192 + hf * 4096))
            p('buffer_load_dwordx4 %s, %s, s[8:11], s21 offen sc1' % (R(mp, (k * 2 + hf) * 4, 4), R(t[8])))
    for step in (32, 16, 8):
        for i in range(0, step, 2): p('v_pk_add_f32 %s, %s, %s' % (R(mp, i, 2), R(mp, i, 2), R(mp, step + i, 2)))
    for i in range(0, 8, 2): rb2(p, R(mp, i), R(mp, i + 1), tmp)
    for i in range(4, 8): p('v_add_f32 %s, 1.0, %s' % (R(mp, i), R(mp, i)))
    for i in range(4, 8, 2): rb2(p, R(mp, i), R(mp, i + 1), tmp)
    p('ds_write_b128 %s, %s' % (R(t[8]), R(mp, 0, 4)))
    p('ds_write_b128 %s, %s offset:4096' % (R(t[8]), R(mp, 4, 4)))
    p('v_lshlrev_b32 %s, 1, %s' % (R(t[9]), R(v_mo)))
    p('s_waitcnt lgkmcnt(0)')
    for i in range(4):
        for hf in range(2):
            p('ds_read_b128 %s, %s offset:%d' % (R(c1, 8 * i + 4 * hf, 4), R(t[9]), 4096 + i * 256 + hf * 16))
            p('ds_read_b128 %s, %s offset:%d' % (R(sh, 8 * i + 4 * hf, 4), R(t[9]), i * 256 + hf * 16))
    p.stamp(5)
    p('v_lshlrev_b32 %s, %d, %s' % (R(v_so), 4 if p16 else 5, R(v_mo)))
    p('v_lshl_add_u32 %s, %s, 4, %s' % (R(v_so), R(v_r), R(v_so)))
    p('s_lshr_b32 s23, s2, %d' % (1 if p16 else 2))
    p('s_lshl_b32 s23, s23, %d' % (15 if p16 else 16))
    p('s_and_b32 s24, s2, %d' % (1 if p16 else 3))
    p('s_lshl_b32 s24, s24, 7')
    p('s_add_u32 s23, s23, s24')
    if WS_H: p('s_add_u32 s23, s23, 0x%x' % WS_H)
    for i in range(4):
        for k in range(0, 8, 2): p('v_pk_mul_f32 %s, %s, %s' % (R(x, 8 * i + k, 2), R(x, 8 * i + k, 2), R(c1, 8 * i + k, 2)))
        for k in range(0, 8, 2): rb2(p, X[8 * i + k], X[8 * i + k + 1], a0)
        for k in range(0, 8, 2): p('v_pk_add_f32 %s, %s, %s' % (R(x, 8 * i + k, 2), R(x, 8 * i + k, 2), R(sh, 8 * i + k, 2)))
        for d in range(4):
            p('v_cvt_pk_bf16_f32 %s, %s, %s' % (R(xr[i], d), X[8 * i + 2 * d], X[8 * i + 2 * d + 1]))
        p('s_add_u32 s24, s23, %d' % (i * (2048 if p16 else 4096)))
        p('buffer_store_dwordx4 %s, %s, s[8:11], s24 offen sc1' % (R(xr[i], 0, 4), R(v_so)))
    p.stamp(6)
    p.label('%s_end' % name)
    p('s_endpgm')
    nv = V.n
    return p.emit(), dict(vgpr=nv, accum=(nv + 3) // 4 * 4, sgpr=64, lds=32768 if wot else 10240, block=256, grid=512)
```

```python
from asmdsl import Prog
from layout import *
from k2 import RA, R
import struct

def f2u(x): return struct.unpack('<I', struct.pack('<f', x))[0]
LOG2E = 1.4426950408889634

def rb2(p, a, b, t):
    p('v_cvt_pk_bf16_f32 %s, %s, %s' % (t, a, b))
    p('v_lshlrev_b32 %s, 16, %s' % (a, t))
    p('v_and_b32 %s, 0xffff0000, %s' % (b, t))
def rb1(p, a):
    p('v_cvt_pk_bf16_f32 %s, %s, %s' % (a, a, a))
    p('v_lshlrev_b32 %s, 16, %s' % (a, a))
def unpack(p, lo, hi, src):
    if lo == src:
        p('v_and_b32 %s, 0xffff0000, %s' % (hi, src)); p('v_lshlrev_b32 %s, 16, %s' % (lo, src))
    else:
        p('v_lshlrev_b32 %s, 16, %s' % (lo, src)); p('v_and_b32 %s, 0xffff0000, %s' % (hi, src))
def srd(p, base, ptr_off, size, kernarg_loaded=True):
    p('s_mov_b32 s%d, 0x%x' % (base + 2, size)); p('s_mov_b32 s%d, 0x20000' % (base + 3))
def xor16_add(p, a, t, op='v_add_f32'):
    p('v_mov_b32 %s, %s' % (t, a)); p('v_permlane16_swap_b32 %s, %s' % (a, t)); p('%s %s, %s, %s' % (op, a, a, t))
def xor32_add(p, a, t, op='v_add_f32'):
    p('v_mov_b32 %s, %s' % (t, a)); p('v_permlane32_swap_b32 %s, %s' % (a, t)); p('%s %s, %s, %s' % (op, a, a, t))
def ror_add(p, a, n, op='v_add_f32'):
    p('%s_dpp %s, %s, %s row_ror:%d row_mask:0xf bank_mask:0xf' % (op, a, a, a, n))
def silu(p, x, t):
    p('v_mul_f32 %s, 0x%x, %s' % (t, f2u(-LOG2E), x))
    p('v_exp_f32 %s, %s' % (t, t))
    p('v_add_f32 %s, 1.0, %s' % (t, t))
    p('v_rcp_f32 %s, %s' % (t, t))
    p('v_mul_f32 %s, %s, %s' % (x, x, t))

def mod_strip(p, name, T, s_strip):
    NL = 1024 // (T // 4)
    RG = T // 4
    V = RA('v', 1, 256)
    v_c4 = V.alloc(1); v_rg = V.alloc(1); v_off = V.alloc(1); v_co = V.alloc(1)
    t = [V.alloc(1) for _ in range(4)]
    w = [V.alloc(4, 4) for _ in range(NL)]
    cs = [V.alloc(1) for _ in range(NL)]
    acc = V.alloc(8, 4)
    u = V.alloc(8, 4)
    p('v_and_b32 %s, 3, v0' % R(v_c4))
    p('v_lshrrev_b32 %s, 2, v0' % R(v_rg))
    p('v_mul_u32_u24 %s, 12288, %s' % (R(v_off), R(v_rg)))
    p('v_lshl_add_u32 %s, %s, 4, %s' % (R(v_off), R(v_c4), R(v_off)))
    p('s_lshl_b32 s20, %s, 6' % s_strip)
    for i in range(NL):
        p('s_add_u32 s21, s20, 0x%x' % (i * RG * 12288))
        p('buffer_load_dwordx4 %s, %s, s[4:7], s21 offen' % (R(w[i], 0, 4), R(v_off)))
    p('v_lshlrev_b32 %s, 1, %s' % (R(v_co), R(v_rg)))
    for i in range(NL):
        p('buffer_load_ushort %s, %s, s[12:15], 0 offen offset:%d' % (R(cs[i]), R(v_co), i * RG * 2))
    p.stamp(0)
    for i in range(NL):
        p('v_lshlrev_b32 %s, 16, %s' % (R(cs[i]), R(cs[i])))
        if i == 0: p.stamp(1)
        silu(p, R(cs[i]), R(t[i % 4]))
        rb1(p, R(cs[i]))
    for i in range(NL):
        for d in range(4):
            unpack(p, R(u, 2 * d), R(u, 2 * d + 1), R(w[i], d))
        for e in range(8):
            if i == 0: p('v_mul_f32 %s, %s, %s' % (R(acc, e), R(cs[i]), R(u, e)))
            else: p('v_fmac_f32 %s, %s, %s' % (R(acc, e), R(cs[i]), R(u, e)))
    p.stamp(2)
    for n in (4, 8):
        for e in range(8): ror_add(p, R(acc, e), n)
    p('v_lshrrev_b32 %s, 4, v0' % R(t[0]))
    p('v_lshlrev_b32 %s, 7, %s' % (R(t[0]), R(t[0])))
    p('v_lshl_add_u32 %s, %s, 5, %s' % (R(t[0]), R(v_c4), R(t[0])))
    p('v_and_b32 %s, 15, v0' % R(t[1]))
    p('v_cmp_gt_u32 vcc, 4, %s' % R(t[1]))
    p('s_and_saveexec_b64 s[22:23], vcc')
    p('ds_write_b128 %s, %s' % (R(t[0]), R(acc, 0, 4)))
    p('ds_write_b128 %s, %s offset:16' % (R(t[0]), R(acc, 4, 4)))
    p('s_mov_b64 exec, s[22:23]')
    p('s_waitcnt lgkmcnt(0)')
    p('s_barrier')
    p.stamp(3)
    p('v_cmp_gt_u32 vcc, 64, v0')
    p('s_and_saveexec_b64 s[22:23], vcc')
    p('s_cbranch_execz %s_end' % name)
    NR = T // 16 // 2
    p('v_and_b32 %s, 31, v0' % R(t[1]))
    p('v_lshrrev_b32 %s, 5, v0' % R(t[2]))
    p('v_mul_u32_u24 %s, %d, %s' % (R(t[2]), NR * 128, R(t[2])))
    p('v_lshl_add_u32 %s, %s, 2, %s' % (R(t[2]), R(t[1]), R(t[2])))
    for i in range(NR):
        p('ds_read_b32 %s, %s offset:%d' % (R(w[i // 4], i % 4), R(t[2]), i * 128))
    p('s_lshl_b32 s21, %s, 5' % s_strip)
    p('v_add_u32 %s, s21, %s' % (R(t[1]), R(t[1])))
    p('v_and_b32 %s, 1023, %s' % (R(t[3]), R(t[1])))
    p('v_lshlrev_b32 %s, 1, %s' % (R(t[3]), R(t[3])))
    p('buffer_load_ushort %s, %s, s[16:19], 0 offen' % (R(u, 0), R(t[3])))
    a = R(acc, 0)
    p('v_mov_b32 %s, %s' % (a, R(w[0], 0)))
    for i in range(1, NR):
        p('v_add_f32 %s, %s, %s' % (a, a, R(w[i // 4], i % 4)))
    xor32_add(p, a, R(acc, 1))
    rb1(p, a)
    p('s_lshr_b32 s24, %s, 5' % s_strip)
    p('s_cmp_eq_u32 s24, 1'); p('s_cselect_b32 s25, 1.0, 0')
    p('s_cmp_eq_u32 s24, 4'); p('s_cselect_b32 s25, 1.0, s25')
    p('v_add_f32 %s, s25, %s' % (a, a))
    rb1(p, a)
    p.stamp(4)
    p('v_lshlrev_b32 %s, 2, %s' % (R(t[2]), R(t[1])))
    p('s_mov_b32 s26, 0x%x' % WS_MOD)
    p('v_cmp_gt_u32 vcc, 32, v0')
    p('s_and_b64 exec, exec, vcc')
    p('buffer_store_dword %s, %s, s[8:11], s26 offen' % (a, R(t[2])))
    p('v_lshrrev_b32 %s, 16, %s' % (R(acc, 2), a))
    p('v_lshlrev_b32 %s, 1, %s' % (R(t[0]), R(t[1])))
    p('s_mov_b32 s26, 0x%x' % WS_MODB)
    p('buffer_store_short %s, %s, s[8:11], s26 offen' % (R(acc, 2), R(t[0])))
    p('s_cmp_lg_u32 s24, 4')
    p('s_cbranch_scc1 %s_end' % name)
    p('v_lshlrev_b32 %s, 16, %s' % (R(u, 0), R(u, 0)))
    p('v_mul_f32 %s, %s, %s' % (R(u, 1), a, R(u, 0)))
    p('s_mov_b32 s26, 0x%x' % (WS_MOD + 2 * 4096))
    p('buffer_store_dword %s, %s, s[8:11], s26 offen' % (R(u, 1), R(t[2])))
    p('s_branch %s_end' % name)
    return V.n

def load_common(p):
    p('s_load_dwordx2 s[4:5], s[0:1], %d' % KA['wmod'])
    p('s_load_dwordx2 s[8:9], s[0:1], %d' % KA['ws'])
    p('s_load_dwordx2 s[12:13], s[0:1], %d' % KA['c'])
    p('s_load_dwordx2 s[16:17], s[0:1], %d' % KA['wr'])
    srd(p, 4, 0, 1024 * 6144 * 2); srd(p, 8, 0, WS_SIZE); srd(p, 12, 0, 2048); srd(p, 16, 0, 2048)

def gen_k1a(name='k1a_kernel', NSTRIP=64):
    p = Prog()
    NWG = NSTRIP + 128
    p('s_cmp_ge_u32 s2, %d' % NWG)
    p('s_cbranch_scc1 %s_end' % name)
    load_common(p)
    p('s_load_dwordx2 s[28:29], s[0:1], %d' % KA['k'])
    p('s_load_dwordx2 s[32:33], s[0:1], %d' % KA['v'])
    srd(p, 28, 0, 2097152); srd(p, 32, 0, 2097152)
    p('s_waitcnt lgkmcnt(0)')
    p('s_cmp_ge_u32 s2, %d' % NSTRIP)
    p('s_cbranch_scc1 %s_kv' % name)
    nv = mod_strip(p, name, 512, 's2')
    p.label('%s_kv' % name)
    p.flush()
    p('s_sub_u32 s20, s2, %d' % NSTRIP)
    p('s_cmp_ge_u32 s20, 12')
    p('s_cbranch_scc1 %s_nz' % name)
    p('s_lshl_b32 s21, s20, 11')
    p('s_add_u32 s21, s21, 0x%x' % WS_STAT)
    p('v_lshlrev_b32 v1, 2, v0')
    p('v_mov_b32 v2, 0')
    p('buffer_store_dword v2, v1, s[8:11], s21 offen')
    p.label('%s_nz' % name)
    p('v_lshrrev_b32 v1, 6, v0')
    p('v_and_b32 v0, 63, v0')
    p('v_readfirstlane_b32 s21, v1')
    p('s_lshl_b32 s20, s20, 3')
    p('s_add_u32 s20, s20, s21')
    p('s_lshr_b32 s22, s20, 8')
    p('s_bfe_u32 s23, s20, 0x40004')
    p('s_and_b32 s24, s20, 15')
    p('s_lshl_b32 s25, s22, 19')
    p('s_lshl_b32 s26, s23, 13')
    p('s_add_u32 s25, s25, s26')
    p('s_add_u32 s25, s25, %d' % (1536 * 256))
    p('v_and_b32 v2, 31, v0')
    p('v_lshrrev_b32 v3, 5, v0')
    p('v_lshlrev_b32 v4, 4, v0')
    p('s_lshl_b32 s27, s20, 10')
    p('s_add_u32 s27, s27, 0x%x' % WS_KV)
    p('s_cmp_ge_u32 s24, 8')
    p('s_cbranch_scc1 %s_v' % name)
    p('v_lshlrev_b32 v5, 8, v2')
    p('v_lshl_add_u32 v5, v3, 3, v5')
    p('s_lshl_b32 s26, s24, 5')
    p('s_add_u32 s25, s25, s26')
    p('buffer_load_dwordx2 v[8:9], v5, s[28:31], s25 offen')
    p('buffer_load_dwordx2 v[10:11], v5, s[28:31], s25 offen offset:16')
    p('buffer_store_dwordx4 v[8:11], v4, s[8:11], s27 offen')
    p('s_branch %s_end' % name)
    p.label('%s_v' % name)
    p.flush()
    p('s_bfe_u32 s26, s24, 0x10002')
    p('s_lshl_b32 s26, s26, 12')
    p('s_add_u32 s25, s25, s26')
    p('s_and_b32 s26, s24, 3')
    p('s_lshl_b32 s26, s26, 6')
    p('s_add_u32 s25, s25, s26')
    p('v_lshlrev_b32 v5, 10, v3')
    p('v_lshl_add_u32 v5, v2, 1, v5')
    for e in range(8):
        p('buffer_load_ushort v%d, v5, s[32:35], s25 offen offset:%d' % (12 + e, (8 * (e // 4) + e % 4) * 256))
    for d in range(4):
        p('v_lshl_or_b32 v%d, v%d, 16, v%d' % (8 + d, 12 + 2 * d + 1, 12 + 2 * d))
    p('buffer_store_dwordx4 v[8:11], v4, s[8:11], s27 offen')
    p.label('%s_end' % name)
    p('s_endpgm')
    nv = max(nv, 24)
    return p.emit(), dict(vgpr=nv, accum=(nv + 3) // 4 * 4, sgpr=48, lds=4096, block=512, grid=NWG)

def ln_apply(p, x, n, mean_b, sd, rcp, c1, sh, t0, t1):
    for i in range(n): p('v_sub_f32 %s, %s, %s' % (x[i], x[i], mean_b))
    for i in range(0, n, 2): rb2(p, x[i], x[i + 1], t0)
    for i in range(n):
        p('v_mul_f32 %s, %s, %s' % (t1, x[i], rcp))
        p('v_fma_f32 %s, -%s, %s, %s' % (x[i], t1, sd, x[i]))
        p('v_fma_f32 %s, %s, %s, %s' % (x[i], x[i], rcp, t1))
    for i in range(0, n, 2): rb2(p, x[i], x[i + 1], t0)
    for i in range(n): p('v_mul_f32 %s, %s, %s' % (x[i], x[i], c1[i]))
    for i in range(0, n, 2): rb2(p, x[i], x[i + 1], t0)
    for i in range(n): p('v_add_f32 %s, %s, %s' % (x[i], x[i], sh[i]))

def ln_scalars(p, mean, var, sd, rcp):
    rb1(p, mean)
    rb1(p, var)
    p('v_add_f32 %s, 0x%x, %s' % (var, f2u(1e-5), var))
    rb1(p, var)
    p('v_sqrt_f32 %s, %s' % (sd, var))
    rb1(p, sd)
    p('v_rcp_f32 %s, %s' % (rcp, sd))

def gen_k1b(name='k1b_kernel', FIRST=64):
    p = Prog()
    NWG = 256 + (192 - FIRST)
    p('s_cmp_ge_u32 s2, %d' % NWG)
    p('s_cbranch_scc1 %s_end' % name)
    load_common(p)
    p('s_load_dwordx2 s[28:29], s[0:1], %d' % KA['x'])
    srd(p, 28, 0, 4194304)
    p('s_waitcnt lgkmcnt(0)')
    p('s_cmp_lt_u32 s2, %d' % (192 - FIRST))
    p('s_cbranch_scc0 %s_h' % name)
    p('s_add_u32 s3, s2, %d' % FIRST)
    nv1 = mod_strip(p, name, 256, 's3')
    p.label('%s_h' % name)
    p.flush()
    p('s_sub_u32 s3, s2, %d' % (192 - FIRST))
    V = RA('v', 1, 256)
    v_r = V.alloc(1); v_c = V.alloc(1); v_xo = V.alloc(1); v_mo = V.alloc(1); v_so = V.alloc(1); v_w = V.alloc(1)
    t = [V.alloc(1) for _ in range(6)]
    xr = [V.alloc(4, 4) for _ in range(4)]
    cr = [V.alloc(4, 4) for _ in range(4)]
    sr = [V.alloc(4, 4) for _ in range(4)]
    x = V.alloc(32, 4); c1 = V.alloc(32, 4); sh = V.alloc(32, 4)
    p('v_and_b32 %s, 7, v0' % R(v_r))
    p('v_bfe_u32 %s, v0, 3, 3' % R(v_c))
    p('v_lshrrev_b32 %s, 6, v0' % R(v_w))
    p('v_lshlrev_b32 %s, 9, %s' % (R(v_mo), R(v_w)))
    p('v_lshl_add_u32 %s, %s, 4, %s' % (R(v_mo), R(v_c), R(v_mo)))
    p('v_lshl_add_u32 %s, %s, 11, %s' % (R(v_xo), R(v_r), R(v_mo)))
    p('s_lshl_b32 s20, s3, 14')
    for i in range(4):
        p('buffer_load_dwordx4 %s, %s, s[28:31], s20 offen offset:%d' % (R(xr[i], 0, 4), R(v_xo), i * 128))
    p('s_mov_b32 s21, 0x%x' % WS_MODB)
    p('s_mov_b32 s22, 0x%x' % (WS_MODB + 2048))
    for i in range(4):
        p('buffer_load_dwordx4 %s, %s, s[8:11], s21 offen offset:%d' % (R(sr[i], 0, 4), R(v_mo), i * 128))
        p('buffer_load_dwordx4 %s, %s, s[8:11], s22 offen offset:%d' % (R(cr[i], 0, 4), R(v_mo), i * 128))
    p.stamp(0)
    for i in range(4):
        for d in range(4): unpack(p, R(x, 8 * i + 2 * d), R(x, 8 * i + 2 * d + 1), R(xr[i], d))
    p.stamp(1)
    X = [R(x, i) for i in range(32)]
    def wg_reduce(a, ldsoff):
        ror_add(p, a, 8); xor16_add(p, a, R(t[5])); xor32_add(p, a, R(t[5]))
        p('ds_write_b32 %s, %s offset:%d' % (R(v_so), a, ldsoff))
        p('s_waitcnt lgkmcnt(0)')
        p('s_barrier')
        p('ds_read_b128 %s, %s offset:%d' % (R(xr[0], 0, 4), R(t[4]), ldsoff))
        p('v_add_f32 %s, %s, %s' % (a, R(xr[0], 0), R(xr[0], 1)))
        p('v_add_f32 %s, %s, %s' % (R(xr[0], 2), R(xr[0], 2), R(xr[0], 3)))
        p('v_add_f32 %s, %s, %s' % (a, a, R(xr[0], 2)))
    p('v_lshlrev_b32 %s, 4, %s' % (R(t[4]), R(v_r)))
    p('v_lshl_add_u32 %s, %s, 2, %s' % (R(v_so), R(v_w), R(t[4])))
    mean, var, sd, rcp = R(t[0]), R(t[1]), R(t[2]), R(t[3])
    p('v_add_f32 %s, %s, %s' % (mean, X[0], X[1]))
    for i in range(2, 32): p('v_add_f32 %s, %s, %s' % (mean, mean, X[i]))
    wg_reduce(mean, 0)
    p('v_mul_f32 %s, 0x%x, %s' % (mean, f2u(1.0 / 1024), mean))
    p('v_sub_f32 %s, %s, %s' % (sd, X[0], mean))
    p('v_mul_f32 %s, %s, %s' % (var, sd, sd))
    for i in range(1, 32):
        p('v_sub_f32 %s, %s, %s' % (sd if i % 2 else rcp, X[i], mean))
        p('v_fmac_f32 %s, %s, %s' % (var, sd if i % 2 else rcp, sd if i % 2 else rcp))
    wg_reduce(var, 128)
    p('v_mul_f32 %s, 0x%x, %s' % (var, f2u(1.0 / 1024), var))
    p.stamp(2)
    p('s_lshl_b32 s23, s3, 5')
    p('s_add_u32 s23, s23, 0x%x' % (WS_STAT + 3 * 8192))
    p('v_lshlrev_b32 %s, 2, v0' % R(t[4]))
    p('v_cmp_gt_u32 vcc, 8, v0')
    p('s_and_saveexec_b64 s[24:25], vcc')
    p('buffer_store_dword %s, %s, s[8:11], s23 offen' % (mean, R(t[4])))
    p('s_mov_b64 exec, s[24:25]')
    for i in range(4):
        for d in range(4):
            unpack(p, R(c1, 8 * i + 2 * d), R(c1, 8 * i + 2 * d + 1), R(cr[i], d))
            unpack(p, R(sh, 8 * i + 2 * d), R(sh, 8 * i + 2 * d + 1), R(sr[i], d))
    p.stamp(5)
    ln_scalars(p, mean, var, sd, rcp)
    ln_apply(p, X, 32, mean, sd, rcp, [R(c1, i) for i in range(32)], [R(sh, i) for i in range(32)], R(t[4]), R(t[5]))
    p.stamp(6)
    p('v_lshlrev_b32 %s, 5, %s' % (R(v_so), R(v_mo)))
    p('v_lshl_add_u32 %s, %s, 4, %s' % (R(v_so), R(v_r), R(v_so)))
    p('s_lshr_b32 s23, s3, 2')
    p('s_lshl_b32 s23, s23, 16')
    p('s_and_b32 s24, s3, 3')
    p('s_lshl_b32 s24, s24, 7')
    p('s_add_u32 s23, s23, s24')
    if WS_H: p('s_add_u32 s23, s23, 0x%x' % WS_H)
    for i in range(4):
        for d in range(4):
            p('v_cvt_pk_bf16_f32 %s, %s, %s' % (R(xr[i], d), X[8 * i + 2 * d], X[8 * i + 2 * d + 1]))
        p('s_add_u32 s24, s23, %d' % (i * 4096))
        p('buffer_store_dwordx4 %s, %s, s[8:11], s24 offen' % (R(xr[i], 0, 4), R(v_so)))
    p.label('%s_end' % name)
    p('s_endpgm')
    nv = max(nv1, V.n)
    return p.emit(), dict(vgpr=nv, accum=(nv + 3) // 4 * 4, sgpr=48, lds=4096, block=256, grid=NWG)
```

```python
from fz import gen_fz
from k2d import gen_k2
from pre3 import gen_k1
from k34 import gen_k34
from build import assemble, add_dbgrt
def mk(path, wave, stamps, kw):
    a = add_dbgrt('fz_kernel', *gen_fz('fz_kernel', **kw), wave, stamps)
    b = ('k34_kernel',) + gen_k34('k34_kernel')
    assemble([a, b], path)
mk('dA.s', 0, [0, 1, 13, 2, 3, 4, 5, 6, 7, 8, 9, 10, 11], dict(wqpos=3, zfirst=False))
mk('dB.s', 4, [0, 1, 12, 13, 2, 3, 4, 5, 7, 8, 9, 10, 11], dict(wqpos=3, zfirst=False))
a = add_dbgrt('k1_kernel', *gen_k1('k1_kernel'), 0, [0, 1, 2, 3, 4, 5, 6])
assemble([a, ('k2_kernel',) + gen_k2('k2_kernel'), ('k34_kernel',) + gen_k34('k34_kernel')], 'dK.s')
```

```python
import sys
HEADER = open('adaLN_cond__sliding_block_cached__moe_arch_mod__prompt.s.ref').read().split('; Override')[0]
WS_PROF = 0x3800000
NSTAMP = 16
def add_prof(k, name, body, info):
    pre = """    s_memrealtime s[90:91]
    s_memtime s[92:93]
    v_readfirstlane_b32 s95, v0
    s_lshr_b32 s95, s95, 6
    s_mov_b32 s94, s2
    s_waitcnt lgkmcnt(0)
""" + ''.join('    s_mov_b32 s%d, s92\n' % (72 + i) for i in range(NSTAMP))
    post = """    s_waitcnt vmcnt(0) lgkmcnt(0)
    s_memrealtime s[4:5]
    s_memtime s[6:7]
    s_load_dwordx2 s[8:9], s[0:1], 112
    s_mov_b32 s10, 0x5000000
    s_mov_b32 s11, 0x20000
    s_mov_b64 exec, 1
    s_lshl_b32 s94, s94, 4
    s_add_u32 s94, s94, s95
    s_lshl_b32 s94, s94, 4
    s_add_u32 s94, s94, 0x%x
    s_waitcnt lgkmcnt(0)
    s_sub_u32 s6, s6, s92
    v_mov_b32 v0, s90
    v_mov_b32 v1, s4
    v_mov_b32 v2, s6
    v_mov_b32 v3, 0x1234
    v_mov_b32 v4, 0
    buffer_store_dwordx4 v[0:3], v4, s[8:11], s94 offen
""" % (WS_PROF + k * 0x40000)
    for q in range(NSTAMP // 4):
        post += '    s_add_u32 s94, s94, 0x400000\n    s_nop 4\n'
        for i in range(4):
            post += '    s_sub_u32 s%d, s%d, s92\n' % (72 + 4 * q + i, 72 + 4 * q + i)
            post += '    v_mov_b32 v%d, s%d\n' % (i, 72 + 4 * q + i)
        post += '    buffer_store_dwordx4 v[0:3], v4, s[8:11], s94 offen\n'
    post += '    s_endpgm\n'
    assert body.rstrip().endswith('s_endpgm')
    import re
    body = re.sub(r'; STAMP (\d+)', lambda m: 's_memtime s[88:89]\n    s_waitcnt lgkmcnt(0)\n    s_mov_b32 s%d, s88' % (72 + int(m.group(1))), body)
    body = pre + body.rstrip()[:-len('s_endpgm')].rstrip() + '\n' + post
    info = dict(info); info['sgpr'] = 102
    return name, body, info

def assemble(kernels, path, prof=False):
    if prof:
        kernels = [add_prof(k, *x) for k, x in enumerate(kernels)]
    out = HEADER
    for name, body, info in kernels:
        out += '; @launch kernel=%s grid=(%d,1,1) block=(%d,1,1) lds=%d\n' % (name, info['grid'], info['block'], info['lds'])
    out += '.amdgcn_target "amdgcn-amd-amdhsa--gfx950"\n.text\n'
    seen = set()
    for name, body, info in kernels:
        if name in seen: continue
        seen.add(name)
        out += '.globl %s\n.p2align 8\n.type %s,@function\n%s:\n' % (name, name, name)
        out += body
    out += '.section .rodata,"a"\n'
    seen = set()
    for name, body, info in kernels:
        if name in seen: continue
        seen.add(name)
        out += '.p2align 6\n.amdhsa_kernel %s\n' % name
        out += '  .amdhsa_next_free_vgpr %d\n  .amdhsa_next_free_sgpr %d\n  .amdhsa_accum_offset %d\n' % (info['vgpr'], info['sgpr'], info['accum'])
        out += '  .amdhsa_group_segment_fixed_size 0\n  .amdhsa_kernarg_size 120\n  .amdhsa_user_sgpr_count 2\n'
        out += '  .amdhsa_user_sgpr_kernarg_segment_ptr 1\n  .amdhsa_system_sgpr_workgroup_id_x 1\n'
        out += '  .amdhsa_float_denorm_mode_32 3\n'
        out += '.end_amdhsa_kernel\n'
    open(path, 'w').write(out)

def add_dbgtime(kernels):
    out = []
    for k, (name, body, info) in enumerate(kernels):
        pre = """    s_cmp_lg_u32 s2, 0
    s_cbranch_scc1 %s_dbgskip
    s_memrealtime s[80:81]
    s_load_dwordx2 s[84:85], s[0:1], 112
    s_mov_b32 s86, 0x5000000
    s_mov_b32 s87, 0x20000
    s_mov_b32 s78, 0x%x
    s_waitcnt lgkmcnt(0)
    v_mov_b32 v1, s80
    v_mov_b32 v2, 0
    buffer_store_dword v1, v2, s[84:87], s78 offen
    s_waitcnt vmcnt(0)
%s_dbgskip:
""" % (name, WS_PROF + 4 * k, name)
        info = dict(info); info['sgpr'] = 100
        out.append((name, pre + body, info))
    body = """    s_memrealtime s[80:81]
    s_load_dwordx2 s[84:85], s[0:1], 112
    s_load_dwordx2 s[88:89], s[0:1], 104
    s_mov_b32 s86, 0x5000000
    s_mov_b32 s87, 0x20000
    s_mov_b32 s90, 64
    s_mov_b32 s91, 0x20000
    s_mov_b32 s78, 0x%x
    v_lshlrev_b32 v1, 2, v0
    v_mov_b32 v4, 0
    s_waitcnt lgkmcnt(0)
    buffer_load_dword v2, v1, s[84:87], s78 offen
    buffer_load_dword v3, v4, s[84:87], s78 offen
    v_mov_b32 v5, s80
    v_cmp_eq_u32 vcc, %d, v0
    s_waitcnt vmcnt(0)
    v_cndmask_b32 v2, v2, v5, vcc
    v_sub_u32 v2, v2, v3
    v_cmp_ge_u32 vcc, %d, v0
    s_and_saveexec_b64 s[4:5], vcc
    buffer_store_dword v2, v1, s[88:91], 0 offen
    s_endpgm
""" % (WS_PROF, len(kernels), len(kernels))
    out.append(('dbg_kernel', body, dict(vgpr=8, accum=8, sgpr=100, lds=0, block=64, grid=1)))
    return out

def add_dbgrt(name, body, info, wave, stamps):
    import re
    pre = """    s_memrealtime s[90:91]
    v_readfirstlane_b32 s95, v0
    s_lshr_b32 s95, s95, 6
    s_waitcnt lgkmcnt(0)
""" + ''.join('    s_mov_b32 s%d, s90\n' % (72 + i) for i in range(16))
    post = """    s_waitcnt vmcnt(0) lgkmcnt(0)
    s_cmp_lg_u32 s95, %d
    s_cbranch_scc1 %s_dbgx
    s_memrealtime s[4:5]
    s_load_dwordx2 s[8:9], s[0:1], 104
    s_mov_b32 s10, 256
    s_mov_b32 s11, 0x20000
    s_mov_b64 exec, 1
    s_waitcnt lgkmcnt(0)
    s_not_b32 s90, s90
    v_mov_b32 v0, s90
    buffer_atomic_umax v0, off, s[8:11], 0
    v_mov_b32 v1, s4
    buffer_atomic_umax v1, off, s[8:11], 0 offset:60
""" % (wave, name)
    for i, st in enumerate(stamps):
        post += '    v_mov_b32 v%d, s%d\n    buffer_atomic_umax v%d, off, s[8:11], 0 offset:%d\n' % (2 + i, 72 + st, 2 + i, 4 + 4 * i)
    post += '%s_dbgx:\n    s_endpgm\n' % name
    body = re.sub(r'; STAMP (\d+)', lambda m: 's_memrealtime s[88:89]\n    s_waitcnt lgkmcnt(0)\n    s_mov_b32 s%d, s88' % (72 + int(m.group(1))), body)
    assert body.rstrip().endswith('s_endpgm')
    body = pre + body.rstrip()[:-len('s_endpgm')].rstrip() + '\n' + post
    info = dict(info); info['sgpr'] = 102
    return name, body, info

def add_prof_rt(k, name, body, info):
    n, b, i = add_prof(k, name, body, info)
    b = b.replace('s_memtime s[88:89]', 's_memrealtime s[88:89]').replace('s_memtime s[92:93]', 's_memrealtime s[92:93]').replace('s_memtime s[6:7]', 's_memrealtime s[6:7]')
    return n, b, i

def dbg_reduce_kernel(k, wave, stamps):
    base = WS_PROF + k * 0x40000
    t = """    s_load_dwordx2 s[8:9], s[0:1], 112
    s_load_dwordx2 s[12:13], s[0:1], 104
    s_mov_b32 s10, 0x5000000
    s_mov_b32 s11, 0x20000
    s_mov_b32 s14, 64
    s_mov_b32 s15, 0x20000
    s_cmp_lg_u32 s2, 0
    s_cbranch_scc1 dbg_kernel_end
    v_lshlrev_b32 v1, 8, v0
    v_add_u32 v1, %d, v1
    v_lshlrev_b32 v2, 2, v0
    v_mov_b32 v3, -1
    v_mov_b32 v4, 0
    v_cmp_eq_u32 vcc, 0, v0
    v_cndmask_b32 v3, v4, v3, vcc
    ds_write_b32 v2, v3
    s_waitcnt lgkmcnt(0)
    s_mov_b32 s20, 0x%x
    buffer_load_dwordx4 v[8:11], v1, s[8:11], s20 offen
""" % (wave * 16, base)
    for q in range(4):
        t += '    s_add_u32 s20, s20, 0x400000\n    buffer_load_dwordx4 v[%d:%d], v1, s[8:11], s20 offen\n' % (12 + 4 * q, 15 + 4 * q)
    t += """    s_waitcnt vmcnt(0)
    s_barrier
    ds_min_u32 v4, v8
    s_waitcnt lgkmcnt(0)
    s_barrier
    ds_read_b32 v5, v4
    s_waitcnt lgkmcnt(0)
    v_sub_u32 v6, v8, v5
    v_sub_u32 v7, v9, v5
    s_barrier
    ds_max_u32 v4, v7 offset:124
"""
    for i, st in enumerate(stamps):
        t += '    v_add_u32 v30, v%d, v6\n    ds_max_u32 v4, v30 offset:%d\n' % (12 + st, 68 + 4 * i)
    t += """    s_waitcnt lgkmcnt(0)
    s_barrier
    ds_read_b32 v5, v2 offset:64
    s_waitcnt lgkmcnt(0)
    v_cmp_gt_u32 vcc, 16, v0
    s_and_saveexec_b64 s[4:5], vcc
    s_cbranch_execz dbg_kernel_end
    buffer_store_dword v5, v2, s[12:15], 0 offen
dbg_kernel_end:
    s_endpgm
"""
    return ('dbg_kernel', t, dict(vgpr=32, accum=32, sgpr=32, lds=2048, block=256, grid=1))
```

```python
from fz import gen_fz
from k2d import gen_k2
from pre3 import gen_k1
from k34 import gen_k34
from build import assemble, add_prof_rt, dbg_reduce_kernel
def mk(path, wave, stamps, kw):
    a = add_prof_rt(0, 'fz_kernel', *gen_fz('fz_kernel', **kw))
    b = ('k34_kernel',) + gen_k34('k34_kernel')
    assemble([a, b, dbg_reduce_kernel(0, wave, stamps)], path)
mk('dA.s', 0, [0, 1, 13, 2, 3, 4, 5, 6, 7, 8, 9, 10, 11], dict(wqpos=3, zfirst=False))
mk('dB.s', 4, [0, 1, 12, 13, 2, 3, 4, 5, 7, 8, 9, 10, 11], dict(wqpos=3, zfirst=False))
a = add_prof_rt(0, 'k1_kernel', *gen_k1('k1_kernel'))
assemble([a, ('k2_kernel',) + gen_k2('k2_kernel'), ('k34_kernel',) + gen_k34('k34_kernel'), dbg_reduce_kernel(0, 0, [0, 1, 2, 3, 4, 5, 6])], 'dK.s')
b = add_prof_rt(0, 'k2_kernel', *gen_k2('k2_kernel'))
assemble([('k1_kernel',) + gen_k1('k1_kernel'), b, ('k34_kernel',) + gen_k34('k34_kernel'), dbg_reduce_kernel(0, 0, [4, 5, 6, 0, 1, 2, 3])], 'dK2.s')
```

```python
import sys
HEADER = open('adaLN_cond__sliding_block_cached__moe_arch_mod__prompt.s.ref').read().split('; Override')[0]
WS_PROF = 0x3800000
NSTAMP = 16
def add_prof(k, name, body, info):
    pre = """    s_memrealtime s[90:91]
    s_memtime s[92:93]
    v_readfirstlane_b32 s95, v0
    s_lshr_b32 s95, s95, 6
    s_mov_b32 s94, s2
    s_waitcnt lgkmcnt(0)
""" + ''.join('    s_mov_b32 s%d, s92\n' % (72 + i) for i in range(NSTAMP))
    post = """    s_waitcnt vmcnt(0) lgkmcnt(0)
    s_memrealtime s[4:5]
    s_memtime s[6:7]
    s_load_dwordx2 s[8:9], s[0:1], 112
    s_mov_b32 s10, 0x5000000
    s_mov_b32 s11, 0x20000
    s_mov_b64 exec, 1
    s_lshl_b32 s94, s94, 4
    s_add_u32 s94, s94, s95
    s_lshl_b32 s94, s94, 4
    s_add_u32 s94, s94, 0x%x
    s_waitcnt lgkmcnt(0)
    s_sub_u32 s6, s6, s92
    v_mov_b32 v0, s90
    v_mov_b32 v1, s4
    v_mov_b32 v2, s6
    v_mov_b32 v3, 0x1234
    v_mov_b32 v4, 0
    buffer_store_dwordx4 v[0:3], v4, s[8:11], s94 offen
""" % (WS_PROF + k * 0x40000)
    for q in range(NSTAMP // 4):
        post += '    s_add_u32 s94, s94, 0x400000\n    s_nop 4\n'
        for i in range(4):
            post += '    s_sub_u32 s%d, s%d, s92\n' % (72 + 4 * q + i, 72 + 4 * q + i)
            post += '    v_mov_b32 v%d, s%d\n' % (i, 72 + 4 * q + i)
        post += '    buffer_store_dwordx4 v[0:3], v4, s[8:11], s94 offen\n'
    post += '    s_endpgm\n'
    assert body.rstrip().endswith('s_endpgm')
    import re
    body = re.sub(r'; STAMP (\d+)', lambda m: 's_memtime s[88:89]\n    s_waitcnt lgkmcnt(0)\n    s_mov_b32 s%d, s88' % (72 + int(m.group(1))), body)
    body = pre + body.rstrip()[:-len('s_endpgm')].rstrip() + '\n' + post
    info = dict(info); info['sgpr'] = 102
    return name, body, info

def assemble(kernels, path, prof=False):
    if prof:
        kernels = [add_prof(k, *x) for k, x in enumerate(kernels)]
    out = HEADER
    for name, body, info in kernels:
        out += '; @launch kernel=%s grid=(%d,1,1) block=(%d,1,1) lds=%d\n' % (name, info['grid'], info['block'], info['lds'])
    out += '.amdgcn_target "amdgcn-amd-amdhsa--gfx950"\n.text\n'
    seen = set()
    for name, body, info in kernels:
        if name in seen: continue
        seen.add(name)
        out += '.globl %s\n.p2align 8\n.type %s,@function\n%s:\n' % (name, name, name)
        out += body
    out += '.section .rodata,"a"\n'
    seen = set()
    for name, body, info in kernels:
        if name in seen: continue
        seen.add(name)
        out += '.p2align 6\n.amdhsa_kernel %s\n' % name
        out += '  .amdhsa_next_free_vgpr %d\n  .amdhsa_next_free_sgpr %d\n  .amdhsa_accum_offset %d\n' % (info['vgpr'], info['sgpr'], info['accum'])
        out += '  .amdhsa_group_segment_fixed_size 0\n  .amdhsa_kernarg_size 120\n  .amdhsa_user_sgpr_count 2\n'
        out += '  .amdhsa_user_sgpr_kernarg_segment_ptr 1\n  .amdhsa_system_sgpr_workgroup_id_x 1\n'
        out += '  .amdhsa_float_denorm_mode_32 3\n'
        out += '.end_amdhsa_kernel\n'
    open(path, 'w').write(out)

def add_dbgtime(kernels):
    out = []
    for k, (name, body, info) in enumerate(kernels):
        pre = """    s_cmp_lg_u32 s2, 0
    s_cbranch_scc1 %s_dbgskip
    s_memrealtime s[80:81]
    s_load_dwordx2 s[84:85], s[0:1], 112
    s_mov_b32 s86, 0x5000000
    s_mov_b32 s87, 0x20000
    s_mov_b32 s78, 0x%x
    s_waitcnt lgkmcnt(0)
    v_mov_b32 v1, s80
    v_mov_b32 v2, 0
    buffer_store_dword v1, v2, s[84:87], s78 offen
    s_waitcnt vmcnt(0)
%s_dbgskip:
""" % (name, WS_PROF + 4 * k, name)
        info = dict(info); info['sgpr'] = 100
        out.append((name, pre + body, info))
    body = """    s_memrealtime s[80:81]
    s_load_dwordx2 s[84:85], s[0:1], 112
    s_load_dwordx2 s[88:89], s[0:1], 104
    s_mov_b32 s86, 0x5000000
    s_mov_b32 s87, 0x20000
    s_mov_b32 s90, 64
    s_mov_b32 s91, 0x20000
    s_mov_b32 s78, 0x%x
    v_lshlrev_b32 v1, 2, v0
    v_mov_b32 v4, 0
    s_waitcnt lgkmcnt(0)
    buffer_load_dword v2, v1, s[84:87], s78 offen
    buffer_load_dword v3, v4, s[84:87], s78 offen
    v_mov_b32 v5, s80
    v_cmp_eq_u32 vcc, %d, v0
    s_waitcnt vmcnt(0)
    v_cndmask_b32 v2, v2, v5, vcc
    v_sub_u32 v2, v2, v3
    v_cmp_ge_u32 vcc, %d, v0
    s_and_saveexec_b64 s[4:5], vcc
    buffer_store_dword v2, v1, s[88:91], 0 offen
    s_endpgm
""" % (WS_PROF, len(kernels), len(kernels))
    out.append(('dbg_kernel', body, dict(vgpr=8, accum=8, sgpr=100, lds=0, block=64, grid=1)))
    return out
```

```python
import sys
from fz import gen_fz
from k34 import gen_k34
from build import assemble
def make(path, prof, fz={}, k34={}):
    ks = []
    for name, fn, kw in [('fz_kernel', gen_fz, fz), ('k34_kernel', gen_k34, k34)]:
        body, info = fn(name, **kw)
        ks.append((name, body, info))
    assemble(ks, path, prof=prof)
if __name__ == '__main__':
    make('fz.s', False)
    make('fzp.s', True)
```

```python
import sys
HEADER = open('adaLN_cond__sliding_block_cached__moe_arch_mod__prompt.s.ref').read().split('; Override')[0]
WS_PROF = 0x3800000
NSTAMP = 16
def add_prof(k, name, body, info):
    pre = """    s_memrealtime s[90:91]
    s_memtime s[92:93]
    v_readfirstlane_b32 s95, v0
    s_lshr_b32 s95, s95, 6
    s_mov_b32 s94, s2
    s_waitcnt lgkmcnt(0)
""" + ''.join('    s_mov_b32 s%d, s92\n' % (72 + i) for i in range(NSTAMP))
    post = """    s_waitcnt vmcnt(0) lgkmcnt(0)
    s_memrealtime s[4:5]
    s_memtime s[6:7]
    s_load_dwordx2 s[8:9], s[0:1], 112
    s_mov_b32 s10, 0x5000000
    s_mov_b32 s11, 0x20000
    s_mov_b64 exec, 1
    s_lshl_b32 s94, s94, 4
    s_add_u32 s94, s94, s95
    s_lshl_b32 s94, s94, 4
    s_add_u32 s94, s94, 0x%x
    s_waitcnt lgkmcnt(0)
    s_sub_u32 s6, s6, s92
    v_mov_b32 v0, s90
    v_mov_b32 v1, s4
    v_mov_b32 v2, s6
    v_mov_b32 v3, 0x1234
    v_mov_b32 v4, 0
    buffer_store_dwordx4 v[0:3], v4, s[8:11], s94 offen
""" % (WS_PROF + k * 0x40000)
    for q in range(NSTAMP // 4):
        post += '    s_add_u32 s94, s94, 0x400000\n    s_nop 4\n'
        for i in range(4):
            post += '    s_sub_u32 s%d, s%d, s92\n' % (72 + 4 * q + i, 72 + 4 * q + i)
            post += '    v_mov_b32 v%d, s%d\n' % (i, 72 + 4 * q + i)
        post += '    buffer_store_dwordx4 v[0:3], v4, s[8:11], s94 offen\n'
    post += '    s_endpgm\n'
    assert body.rstrip().endswith('s_endpgm')
    import re
    body = re.sub(r'; STAMP (\d+)', lambda m: 's_memtime s[88:89]\n    s_waitcnt lgkmcnt(0)\n    s_mov_b32 s%d, s88' % (72 + int(m.group(1))), body)
    body = pre + body.rstrip()[:-len('s_endpgm')].rstrip() + '\n' + post
    info = dict(info); info['sgpr'] = 102
    return name, body, info

def assemble(kernels, path, prof=False, keep=None, rt=False, single=False):
    if keep is not None:
        import re
        kernels = [(n, re.sub(r'; STAMP (\d+)', lambda m: m.group(0) if int(m.group(1)) in keep else '; stamp off', b), i) for n, b, i in kernels]
    if prof:
        kernels = [(add_prof_rt if rt else add_prof)(k, *x) for k, x in enumerate(kernels)]
    out = HEADER
    for name, body, info in kernels:
        if single: out += '; @launch grid=(%d,1,1) block=(%d,1,1) lds=%d\n' % (info['grid'], info['block'], info['lds'])
        else: out += '; @launch kernel=%s grid=(%d,1,1) block=(%d,1,1) lds=%d\n' % (name, info['grid'], info['block'], info['lds'])
    out += '.amdgcn_target "amdgcn-amd-amdhsa--gfx950"\n.text\n'
    seen = set()
    for name, body, info in kernels:
        if name in seen: continue
        seen.add(name)
        out += '.globl %s\n.p2align 8\n.type %s,@function\n%s:\n' % (name, name, name)
        out += body
    out += '.section .rodata,"a"\n'
    seen = set()
    for name, body, info in kernels:
        if name in seen: continue
        seen.add(name)
        out += '.p2align 6\n.amdhsa_kernel %s\n' % name
        out += '  .amdhsa_next_free_vgpr %d\n  .amdhsa_next_free_sgpr %d\n  .amdhsa_accum_offset %d\n' % (info['vgpr'], info['sgpr'], info['accum'])
        out += '  .amdhsa_group_segment_fixed_size 0\n  .amdhsa_kernarg_size 120\n  .amdhsa_user_sgpr_count 2\n'
        out += '  .amdhsa_user_sgpr_kernarg_segment_ptr 1\n  .amdhsa_system_sgpr_workgroup_id_x 1\n'
        out += '  .amdhsa_float_denorm_mode_32 3\n'
        out += '.end_amdhsa_kernel\n'
    open(path, 'w').write(out)

def add_dbgtime(kernels):
    out = []
    for k, (name, body, info) in enumerate(kernels):
        pre = """    s_cmp_lg_u32 s2, 0
    s_cbranch_scc1 %s_dbgskip
    s_memrealtime s[80:81]
    s_load_dwordx2 s[84:85], s[0:1], 112
    s_mov_b32 s86, 0x5000000
    s_mov_b32 s87, 0x20000
    s_mov_b32 s78, 0x%x
    s_waitcnt lgkmcnt(0)
    v_mov_b32 v1, s80
    v_mov_b32 v2, 0
    buffer_store_dword v1, v2, s[84:87], s78 offen
    s_waitcnt vmcnt(0)
%s_dbgskip:
""" % (name, WS_PROF + 4 * k, name)
        info = dict(info); info['sgpr'] = 100
        out.append((name, pre + body, info))
    body = """    s_memrealtime s[80:81]
    s_load_dwordx2 s[84:85], s[0:1], 112
    s_load_dwordx2 s[88:89], s[0:1], 104
    s_mov_b32 s86, 0x5000000
    s_mov_b32 s87, 0x20000
    s_mov_b32 s90, 64
    s_mov_b32 s91, 0x20000
    s_mov_b32 s78, 0x%x
    v_lshlrev_b32 v1, 2, v0
    v_mov_b32 v4, 0
    s_waitcnt lgkmcnt(0)
    buffer_load_dword v2, v1, s[84:87], s78 offen
    buffer_load_dword v3, v4, s[84:87], s78 offen
    v_mov_b32 v5, s80
    v_cmp_eq_u32 vcc, %d, v0
    s_waitcnt vmcnt(0)
    v_cndmask_b32 v2, v2, v5, vcc
    v_sub_u32 v2, v2, v3
    v_cmp_ge_u32 vcc, %d, v0
    s_and_saveexec_b64 s[4:5], vcc
    buffer_store_dword v2, v1, s[88:91], 0 offen
    s_endpgm
""" % (WS_PROF, len(kernels), len(kernels))
    out.append(('dbg_kernel', body, dict(vgpr=8, accum=8, sgpr=100, lds=0, block=64, grid=1)))
    return out

def add_dbgrt(name, body, info, wave, stamps):
    import re
    pre = """    s_memrealtime s[90:91]
    v_readfirstlane_b32 s95, v0
    s_lshr_b32 s95, s95, 6
    s_waitcnt lgkmcnt(0)
""" + ''.join('    s_mov_b32 s%d, s90\n' % (72 + i) for i in range(16))
    post = """    s_waitcnt vmcnt(0) lgkmcnt(0)
    s_cmp_lg_u32 s95, %d
    s_cbranch_scc1 %s_dbgx
    s_memrealtime s[4:5]
    s_load_dwordx2 s[8:9], s[0:1], 104
    s_mov_b32 s10, 256
    s_mov_b32 s11, 0x20000
    s_mov_b64 exec, 1
    s_waitcnt lgkmcnt(0)
    s_not_b32 s90, s90
    v_mov_b32 v0, s90
    buffer_atomic_umax v0, off, s[8:11], 0
    v_mov_b32 v1, s4
    buffer_atomic_umax v1, off, s[8:11], 0 offset:60
""" % (wave, name)
    for i, st in enumerate(stamps):
        post += '    v_mov_b32 v%d, s%d\n    buffer_atomic_umax v%d, off, s[8:11], 0 offset:%d\n' % (2 + i, 72 + st, 2 + i, 4 + 4 * i)
    post += '%s_dbgx:\n    s_endpgm\n' % name
    body = re.sub(r'; STAMP (\d+)', lambda m: 's_memrealtime s[88:89]\n    s_waitcnt lgkmcnt(0)\n    s_mov_b32 s%d, s88' % (72 + int(m.group(1))), body)
    assert body.rstrip().endswith('s_endpgm')
    body = pre + body.rstrip()[:-len('s_endpgm')].rstrip() + '\n' + post
    info = dict(info); info['sgpr'] = 102
    return name, body, info

def add_prof_rt(k, name, body, info):
    n, b, i = add_prof(k, name, body, info)
    b = b.replace('s_memtime s[88:89]', 's_memrealtime s[88:89]').replace('s_memtime s[92:93]', 's_memrealtime s[92:93]').replace('s_memtime s[6:7]', 's_memrealtime s[6:7]')
    return n, b, i

def dbg_reduce_kernel(k, wave, stamps):
    base = WS_PROF + k * 0x40000
    t = """    s_load_dwordx2 s[8:9], s[0:1], 112
    s_load_dwordx2 s[12:13], s[0:1], 104
    s_mov_b32 s10, 0x5000000
    s_mov_b32 s11, 0x20000
    s_mov_b32 s14, 64
    s_mov_b32 s15, 0x20000
    s_cmp_lg_u32 s2, 0
    s_cbranch_scc1 dbg_kernel_end
    v_lshlrev_b32 v1, 8, v0
    v_add_u32 v1, %d, v1
    v_lshlrev_b32 v2, 2, v0
    v_mov_b32 v3, -1
    v_mov_b32 v4, 0
    v_cmp_eq_u32 vcc, 0, v0
    v_cndmask_b32 v3, v4, v3, vcc
    ds_write_b32 v2, v3
    s_waitcnt lgkmcnt(0)
    s_mov_b32 s20, 0x%x
    buffer_load_dwordx4 v[8:11], v1, s[8:11], s20 offen
""" % (wave * 16, base)
    for q in range(4):
        t += '    s_add_u32 s20, s20, 0x400000\n    buffer_load_dwordx4 v[%d:%d], v1, s[8:11], s20 offen\n' % (12 + 4 * q, 15 + 4 * q)
    t += """    s_waitcnt vmcnt(0)
    s_barrier
    ds_min_u32 v4, v8
    s_waitcnt lgkmcnt(0)
    s_barrier
    ds_read_b32 v5, v4
    s_waitcnt lgkmcnt(0)
    v_sub_u32 v6, v8, v5
    v_sub_u32 v7, v9, v5
    s_barrier
    ds_max_u32 v4, v7 offset:124
"""
    for i, st in enumerate(stamps):
        t += '    v_add_u32 v30, v%d, v6\n    ds_max_u32 v4, v30 offset:%d\n' % (12 + st, 68 + 4 * i)
    t += """    s_waitcnt lgkmcnt(0)
    s_barrier
    ds_read_b32 v5, v2 offset:64
    s_waitcnt lgkmcnt(0)
    v_cmp_gt_u32 vcc, 16, v0
    s_and_saveexec_b64 s[4:5], vcc
    s_cbranch_execz dbg_kernel_end
    buffer_store_dword v5, v2, s[12:15], 0 offen
dbg_kernel_end:
    s_endpgm
"""
    return ('dbg_kernel', t, dict(vgpr=32, accum=32, sgpr=32, lds=2048, block=256, grid=1))
```

```python
from asmdsl import Prog, Inst
from layout2 import *
from k2 import RA, R, Sched
from small import silu, rb1, rb2, unpack, ror_add, f2u, xor16_add, xor32_add, ln_scalars, ln_apply, LOG2E
import math
SPIN_MAX = 1 << 16
WS_GU2 = WS_YP2 + 0x10000
WS_MODF = WS_YP2 + 0x20000
WS_HF2, WS_OF2, WS_AF2 = 0x600000, 0x640000, 0x680000
WS_AP4 = 0x2000000
S_HEAD, S_QB, S_NON, S_MARK = 's12', 's13', 's14', 's15'
S_ROW, S_LDS, S_KV = 's16', 's17', 's18'
PTR = dict(x=32, k=34, v=36, wq=38, wo=40, bx=42, wr=44, wg=46, wu=48, wd=50, c=52, wmod=54, out=56, dbg=58, ws=60)
QX, QY, QZ = 64, 68, 28
def mksrd(p, q, ptr, size):
    return ['s_mov_b64 s[%d:%d], s[%d:%d]' % (q, q + 1, PTR[ptr], PTR[ptr] + 1), 's_mov_b32 s%d, 0x%x' % (q + 2, size), 's_mov_b32 s%d, 0x20000' % (q + 3)]
def SR(q): return 's[%d:%d]' % (q, q + 3)

def gen_fz(name='fz_kernel', mlp2=False, D1=4, D2=4, NH=3, ost='sc1', pf_list=('wg', 'wu'), endprio=('A', 2), burst=7, pf_lo=7,
           stage=1, hsleep=4, gsleep=1, wq_early=2, wqpos=5, b0=True, zfirst=False, mimic=2, spf_pos=1, spf_rows=0, tpf=0, fack=False, kvpos=(33, 97, 161), mc_at=(4, 6), wo_at=13, NS3=8, AH3=4, LA3=3, NL=3, opoll=63, oflag=-1, g_at=(14, 15), tsleep=1, prio_reset=True, cpf=True, wopf=None, pf_hi=15, wl_at=(130, 260), AH1=2, hord=True, nbrot=1, wA_at=(20, 60), wB_at=(124, 190), KD=2, jb2=15, sb3=None, prio3=False, aplin=False, apmod='sc1', bfirst=False, fl128='', wqpf=0, fast0=False, hslots=((1, 3), (1, 3)), dsp=(2, 4), dsplit=False, apsent=0, kscale=False, opk=False, wbl=(), wbslot=0):
    p = Prog()
    Z_YP = WS_YP2
    Z_MODF = WS_YP2 + (0xE0000 if mlp2 else 0x20000)
    Z_KEY = WS_YP2 + (0xE4000 if mlp2 else 0x70000)
    V = RA('v', 0, 256)
    v_tid = V.alloc(1); v_l16 = V.alloc(1); v_wqoff = V.alloc(1); v_tr = V.alloc(1); v_hoff = V.alloc(1)
    v_kvoff = V.alloc(1); v_pf = V.alloc(1); v_pfd = V.alloc(1); v_id = V.alloc(1)
    v_t = [V.alloc(1) for _ in range(6)]
    v_l = [V.alloc(1) for _ in range(2)]
    v_wt = [V.alloc(1) for _ in range(3)]
    v_tr2 = v_l[0]; v_wq2 = v_l[1]
    BASE = V.n
    acc = [V.alloc(16, 4) for _ in range(4)]
    NRA = max(D1, D2) + 2
    fr = [V.alloc(4, 4) for _ in range(NRA)]
    qf = [V.alloc(4, 4) for _ in range(8)]
    S = [V.alloc(16, 4) for _ in range(2)]
    negm = V.alloc(16, 4)
    Pb = V.alloc(16, 4)
    P = [[(Pb[0], Pb[1] + 8 * b + 4 * u) for u in range(2)] for b in range(2)]
    Hx = [V.alloc(16, 4) for _ in range(2)]
    mx = V.alloc(16, 4)
    ones = V.alloc(4, 4)
    nv = V.n
    pool = [Hx[0], Hx[1], S[0], negm, Pb, mx][:NH]
    H = [[(b[0], b[1] + 4 * t) for t in range(4)] for b in pool]
    WQ_RING = 0; KV_RING = 65536; NKV = 6
    lane = R(v_tid); vid = R(v_id)
    L_GP = 131072; L_ST = L_GP + 1024; L_MOD = L_GP + 4096
    def slot1(s): return (s % 4) if AH1 == 2 else (s + 4) % 8

    p.label('%s_start' % name)
    p('s_cmp_ge_u32 s2, 256')
    p('s_cbranch_scc1 %s_end' % name)
    p('s_load_dwordx16 s[32:47], s[0:1], 0')
    p('s_load_dwordx8 s[48:55], s[0:1], 64')
    p('s_load_dwordx4 s[56:59], s[0:1], 96')
    p('s_load_dwordx2 s[60:61], s[0:1], 112')
    p('s_and_b32 s12, s2, 3')
    p('s_lshl_b32 s12, s12, 3')
    p('s_bfe_u32 s13, s2, 0x30003')
    p('s_add_u32 s12, s12, s13')
    p('s_bfe_u32 s13, s2, 0x10002')
    p('s_lshl_b32 s13, s13, 2')
    p('s_lshr_b32 s19, s2, 6')
    p('s_add_u32 s13, s13, s19')
    p('s_mov_b32 s15, 0')
    p('v_and_b32 %s, 255, v0' % vid)
    p('v_lshrrev_b32 %s, 6, v0' % R(v_t[0]))
    p('v_and_b32 %s, 63, v0' % lane)
    p('v_readfirstlane_b32 s3, %s' % R(v_t[0]))
    p('v_lshlrev_b32 %s, 4, %s' % (R(v_l16), lane))
    p('s_mov_b32 s10, 0x%x' % WS_SIZE)
    p('s_mov_b32 s11, 0x20000')
    p('s_lshl_b32 s19, s13, 3')
    p('s_add_u32 s19, s19, s3')
    p('s_lshl_b32 s20, s19, 16')
    p('v_add_u32 %s, s20, %s' % (R(v_hoff), R(v_l16)))
    p('v_bfe_u32 %s, %s, 2, 2' % (R(v_t[0]), lane))
    p('v_lshrrev_b32 %s, 4, %s' % (R(v_t[1]), lane))
    p('v_and_b32 %s, 3, %s' % (R(v_t[2]), lane))
    p('v_bfe_u32 %s, %s, 4, 1' % (R(v_t[4]), lane))
    p('v_lshlrev_b32 %s, 11, %s' % (R(v_tr), R(v_t[1])))
    p('v_lshl_add_u32 %s, %s, 6, %s' % (R(v_tr), R(v_t[0]), R(v_tr)))
    p('v_lshl_add_u32 %s, %s, 3, %s' % (R(v_tr), R(v_t[2]), R(v_tr)))
    p('v_lshlrev_b32 %s, 5, %s' % (R(v_wq2), R(v_t[4])))
    p('v_sub_u32 %s, %s, %s' % (R(v_tr2), R(v_tr), R(v_wq2)))
    p('v_add_u32 %s, %s, %s' % (R(v_tr), R(v_tr), R(v_wq2)))
    p('v_lshlrev_b32 %s, 6, %s' % (R(v_wqoff), R(v_t[1])))
    p('v_lshl_add_u32 %s, %s, 4, %s' % (R(v_wqoff), R(v_t[2]), R(v_wqoff)))
    p('v_lshl_add_u32 %s, %s, 13, %s' % (R(v_wqoff), R(v_t[0]), R(v_wqoff)))
    p('v_xor_b32 %s, 32, %s' % (R(v_wq2), R(v_wqoff)))
    p('s_lshr_b32 s18, s12, 3')
    p('s_lshl_b32 s18, s18, 18')
    p('s_add_u32 s18, s18, 0x%x' % WS_KV)
    p('v_add_u32 %s, s18, %s' % (R(v_kvoff), R(v_l16)))
    for r_ in v_wt: p('v_mov_b32 %s, 0' % R(r_))
    p('s_lshl_b32 s16, s3, 17')
    p('s_lshl_b32 s17, s3, 12')

    def dma_wq(s):
        out = []
        for i in range(4):
            out.append(('s_add_u32 s22, s16, 0x%x' % (s * 64 * 8192 + i * 32768), None))
            out.append(('s_add_u32 m0, s17, 0x%x' % (slot1(s) * 16384 + i * 1024), None))
            out.append(('buffer_load_dwordx4 %s, s[4:7], s22 offen lds' % R(v_wq2 if i >= 2 else v_wqoff), 'wq%d' % s))
        return out
    def dma_kv(j):
        out = []
        for i in range(4):
            out.append(('s_add_u32 s22, s17, 0x%x' % (j * 16384 + i * 1024), None))
            out.append(('s_add_u32 m0, s17, 0x%x' % (KV_RING + (j % NKV) * 16384 + i * 1024), None))
            out.append(('buffer_load_dwordx4 %s, s[8:11], s22 offen sc1 lds' % R(v_kvoff), 'kv%d' % j))
        return out
    def hload(s, t):
        return [('s_mov_b32 s23, 0x%x' % (WS_H + s * 2048 + (t % 2) * 32768), None),
                ('buffer_load_dwordx4 %s, %s, s[8:11], s23 offen offset:%d sc1' % (R(H[s % NH][t], 0, 4), R(v_hoff), (t // 2) * 1024), None)]
    def trread(f):
        r = fr[f % NRA]
        s, T, n = f // 16, (f // 8) % 2, f % 8
        base = slot1(s) * 16384 + T * 8192 + (n // 2) * 256 + (n % 2) * 32
        va = R(v_tr2 if n % 2 else v_tr)
        if base >= 65536: va = R(v_t[4 + n % 2]); base -= 65536
        return ['ds_read_b64_tr_b16 %s, %s offset:%d' % (R(r, 0, 2), va, base),
                'ds_read_b64_tr_b16 %s, %s offset:%d' % (R(r, 2, 2), va, base + 1024)]
    class L:
        def __init__(self): self.l = []
        def __call__(self, t, tag=None): self.l.append(t)
    def poll(tag, loads, test, sleep=0):
        p('s_mov_b32 s27, 0')
        p.label('%s_%sp' % (name, tag))
        loads(); test()
        p('s_add_u32 s27, s27, 1')
        p('s_cmp_ge_u32 s27, %d' % SPIN_MAX)
        p('s_cbranch_scc1 %s_%sg' % (name, tag))
        p('s_cbranch_vccz %s_%sg' % (name, tag))
        if sleep: p('s_sleep %d' % sleep)
        p('s_branch %s_%sp' % (name, tag))
        p.label('%s_%sg' % (name, tag))

    def epoch_load(dst, zero):
        p('s_mov_b32 s27, 0x%x' % WS_EPOCH)
        p('buffer_load_dword %s, %s, s[8:11], s27 offen sc1' % (dst, zero))
    def nonce_from(src):
        p('v_readfirstlane_b32 s14, %s' % src)
        p('s_add_u32 s14, s14, 1')

    L_CNT = L_GP + 512
    def early():
        for s in range(wq_early):
            for it, tag in dma_wq(s): p(it, tag)
    def front_A():
        F = RA('v', BASE, 256)
        v_r = F.alloc(1); v_xo = F.alloc(1); v_mo = F.alloc(1); v_so = F.alloc(1); v_e = F.alloc(1); zero = F.alloc(1)
        t = [F.alloc(1, 2 if i in (0, 2) else 1) for i in range(10)]
        xr = [F.alloc(4, 4) for _ in range(4)]
        x = F.alloc(32, 4); c1 = F.alloc(32, 4); sh = F.alloc(32, 4)
        red = F.alloc(8, 4)
        p('v_and_b32 %s, 7, %s' % (R(v_r), vid))
        p('v_bfe_u32 %s, %s, 3, 3' % (R(t[0]), vid))
        p('v_lshlrev_b32 %s, 4, %s' % (R(v_mo), R(t[0])))
        p('s_lshl_b32 s19, s3, 9')
        p('v_add_u32 %s, s19, %s' % (R(v_mo), R(v_mo)))
        p('v_lshl_add_u32 %s, %s, 11, %s' % (R(v_xo), R(v_r), R(v_mo)))
        p('v_mov_b32 %s, 0' % R(zero))
        p('s_lshl_b32 s25, s2, 14')
        p('s_waitcnt lgkmcnt(0)')
        p.stamp(0)
        p('s_mov_b64 s[8:9], s[60:61]')
        for l in mksrd(p, QZ, 'x', 4194304): p(l)
        if b0: p('s_barrier')
        for i in range(4):
            p('buffer_load_dwordx4 %s, %s, %s, s25 offen offset:%d' % (R(xr[i], 0, 4), R(v_xo), SR(QZ), i * 128))
        epoch_load(R(v_e), R(zero))
        if tpf:
            for l in mksrd(p, QX, 'wq', 0x800000): p(l)
            p('v_lshrrev_b32 %s, 4, %s' % (R(t[8]), lane))
            p('v_lshlrev_b32 %s, 13, %s' % (R(t[8]), R(t[8])))
            p('v_and_b32 %s, 15, %s' % (R(t[9]), lane))
            p('v_lshl_add_u32 %s, %s, 7, %s' % (R(t[8]), R(t[9]), R(t[8])))
            p('v_cmp_gt_u32 vcc, 32, %s' % lane)
            p('v_bfrev_b32 %s, -2' % R(t[9]))
            p('v_cndmask_b32 %s, %s, %s, vcc' % (R(t[8]), R(t[9]), R(t[8])))
            p('s_lshr_b32 s19, s2, 3'); p('s_lshl_b32 s19, s19, 2'); p('s_add_u32 s19, s19, s3'); p('s_lshl_b32 s19, s19, 14')
            p('s_and_b32 s20, s2, 3'); p('s_lshl_b32 s20, s20, 11'); p('s_add_u32 s19, s19, s20')
            for n in range(tpf // 256):
                if n: p('s_add_u32 s19, s19, 0x200000')
                p('buffer_load_dword %s, %s, %s, s19 offen' % (R(v_pfd), R(t[8]), SR(QX)), 'pf')
        if not b0: p('s_barrier')
        p('s_lshl_b32 s19, s12, 8')
        p('s_add_u32 s4, s38, s19')
        p('s_addc_u32 s5, s39, 0')
        p('s_sub_u32 s6, 0x800000, s19')
        p('s_mov_b32 s7, 0x20000')
        for i in range(4):
            for d in range(4): unpack(p, R(x, 8 * i + 2 * d), R(x, 8 * i + 2 * d + 1), R(xr[i], d))
        nonce_from(R(v_e))
        p.stamp(1)
        if wqpos == 0: early()
        X = [R(x, i) for i in range(32)]
        p('v_lshlrev_b32 %s, 5, %s' % (R(t[4]), R(v_r)))
        p('s_lshl_b32 s19, s3, 3')
        p('v_add_u32 %s, s19, %s' % (R(v_so), R(t[4])))
        mean, var, sd, rcp = R(t[0]), R(t[1]), R(t[2]), R(t[3])
        a0, a1 = R(t[5]), R(t[6])
        tmp = R(red, 0)
        p('v_add_f32 %s, %s, %s' % (a0, X[0], X[1])); p('v_add_f32 %s, %s, %s' % (a1, X[2], X[3]))
        for i in range(4, 32, 2):
            p('v_add_f32 %s, %s, %s' % (a0, a0, X[i])); p('v_add_f32 %s, %s, %s' % (a1, a1, X[i + 1]))
        p('v_add_f32 %s, %s, %s' % (mean, a0, a1))
        ror_add(p, mean, 8); xor16_add(p, mean, tmp); xor32_add(p, mean, tmp)
        p('v_mul_f32 %s, 0x%x, %s' % (mean, f2u(1.0 / 256), mean))
        p('v_sub_f32 %s, %s, %s' % (sd, X[0], mean)); p('v_mul_f32 %s, %s, %s' % (a0, sd, sd))
        p('v_sub_f32 %s, %s, %s' % (rcp, X[1], mean)); p('v_mul_f32 %s, %s, %s' % (a1, rcp, rcp))
        for i in range(2, 32, 2):
            p('v_sub_f32 %s, %s, %s' % (sd, X[i], mean)); p('v_sub_f32 %s, %s, %s' % (rcp, X[i + 1], mean))
            p('v_fmac_f32 %s, %s, %s' % (a0, sd, sd)); p('v_fmac_f32 %s, %s, %s' % (a1, rcp, rcp))
        p('v_add_f32 %s, %s, %s' % (var, a0, a1))
        ror_add(p, var, 8); xor16_add(p, var, tmp); xor32_add(p, var, tmp)
        p('v_add_u32 %s, 0x%x, %s' % (R(v_so), L_ST, R(v_so)))
        p('ds_write_b64 %s, %s' % (R(v_so), R(t[0], 0, 2)))
        p('v_add_u32 %s, 0x%x, %s' % (R(t[4]), L_ST, R(t[4])))
        p('s_waitcnt lgkmcnt(0)')
        p.stamp(13)
        p('s_barrier')
        p.stamp(2)
        if wqpos == 1: early()
        p('ds_read_b128 %s, %s' % (R(red, 0, 4), R(t[4])))
        p('ds_read_b128 %s, %s offset:16' % (R(red, 4, 4), R(t[4])))
        m = [R(red, 2 * k) for k in range(4)]; q = [R(red, 2 * k + 1) for k in range(4)]
        p('v_add_f32 %s, %s, %s' % (a0, m[0], m[1])); p('v_add_f32 %s, %s, %s' % (a1, m[2], m[3]))
        p('v_add_f32 %s, %s, %s' % (mean, a0, a1)); p('v_mul_f32 %s, 0x%x, %s' % (mean, f2u(0.25), mean))
        p('v_add_f32 %s, %s, %s' % (a0, q[0], q[1])); p('v_add_f32 %s, %s, %s' % (a1, q[2], q[3]))
        p('v_add_f32 %s, %s, %s' % (var, a0, a1))
        for k in range(4): p('v_sub_f32 %s, %s, %s' % (m[k], m[k], mean))
        p('v_mul_f32 %s, %s, %s' % (a0, m[0], m[0]))
        for k in range(1, 4): p('v_fmac_f32 %s, %s, %s' % (a0, m[k], m[k]))
        p('v_fmamk_f32 %s, %s, 0x%x, %s' % (var, a0, f2u(256.0), var))
        p('v_mul_f32 %s, 0x%x, %s' % (var, f2u(1.0 / 1024), var))
        if mimic == 0:
            p('v_add_f32 %s, 0x%x, %s' % (var, f2u(1e-5), var))
            p('v_rsq_f32 %s, %s' % (sd, var))
        else:
            ln_scalars(p, mean, var, sd, rcp)
            if mimic < 3: p('v_mov_b32 %s, %s' % (sd, rcp))
        for i in range(0, 32, 2): p('v_pk_add_f32 %s, %s, %s op_sel_hi:[1,0] neg_lo:[0,1] neg_hi:[0,1]' % (R(x, i, 2), R(x, i, 2), R(t[0], 0, 2)))
        if mimic >= 2:
            for i in range(0, 32, 2): rb2(p, X[i], X[i + 1], a0)
        if mimic < 3:
            for i in range(0, 32, 2): p('v_pk_mul_f32 %s, %s, %s op_sel_hi:[1,0]' % (R(x, i, 2), R(x, i, 2), R(t[2], 0, 2)))
        else:
            for i in range(32):
                tt = R(red, i % 4)
                p('v_mul_f32 %s, %s, %s' % (tt, X[i], rcp))
                p('v_fma_f32 %s, -%s, %s, %s' % (X[i], tt, sd, X[i]))
                p('v_fma_f32 %s, %s, %s, %s' % (X[i], X[i], rcp, tt))
        if mimic >= 2:
            for i in range(0, 32, 2): rb2(p, X[i], X[i + 1], a0)
        v16 = R(t[7])
        p('v_lshlrev_b32 %s, 1, %s' % (v16, R(v_mo)))
        p('v_add_u32 %s, 0x%x, %s' % (v16, L_MOD, v16))
        p('v_lshlrev_b32 %s, 4, %s' % (R(v_so), R(v_mo)))
        p('v_lshl_add_u32 %s, %s, 4, %s' % (R(v_so), R(v_r), R(v_so)))
        p('s_lshr_b32 s23, s2, 1'); p('s_lshl_b32 s23, s23, 15')
        p('s_and_b32 s24, s2, 1'); p('s_lshl_b32 s24, s24, 7')
        p('s_add_u32 s23, s23, s24')
        if WS_H: p('s_add_u32 s23, s23, 0x%x' % WS_H)
        if wqpos == 2: early()
        p.stamp(3)
        p('s_barrier')
        p.stamp(4)
        for i in range(4):
            for hf in range(2):
                p('ds_read_b128 %s, %s offset:%d' % (R(c1, 8 * i + 4 * hf, 4), v16, 4096 + i * 256 + hf * 16))
                p('ds_read_b128 %s, %s offset:%d' % (R(sh, 8 * i + 4 * hf, 4), v16, i * 256 + hf * 16))
        for i in range(4):
            if mimic >= 2:
                for k in range(0, 8, 2): p('v_pk_mul_f32 %s, %s, %s' % (R(x, 8 * i + k, 2), R(x, 8 * i + k, 2), R(c1, 8 * i + k, 2)))
                for k in range(0, 8, 2): rb2(p, X[8 * i + k], X[8 * i + k + 1], a0)
                for k in range(0, 8, 2): p('v_pk_add_f32 %s, %s, %s' % (R(x, 8 * i + k, 2), R(x, 8 * i + k, 2), R(sh, 8 * i + k, 2)))
            else:
                for k in range(0, 8, 2): p('v_pk_fma_f32 %s, %s, %s, %s' % (R(x, 8 * i + k, 2), R(x, 8 * i + k, 2), R(c1, 8 * i + k, 2), R(sh, 8 * i + k, 2)))
            for d in range(4):
                p('v_cvt_pk_bf16_f32 %s, %s, %s' % (R(xr[i], d), X[8 * i + 2 * d], X[8 * i + 2 * d + 1]))
            p('s_add_u32 s24, s23, %d' % (i * 2048))
            p('buffer_store_dwordx4 %s, %s, s[8:11], s24 offen sc1' % (R(xr[i], 0, 4), R(v_so)), 'hst')
        p.stamp(5)
        if wqpos == 3: early()
        if 'h' in fl128:
            p('s_lshl_b32 s26, s2, 2'); p('s_add_u32 s26, s26, s3'); p('s_lshl_b32 s26, s26, 7'); p('s_add_u32 s26, s26, 0x%x' % WS_HF2)
        else:
            p('s_lshl_b32 s26, s2, 7'); p('s_lshl_b32 s27, s3, 2'); p('s_add_u32 s26, s26, s27'); p('s_add_u32 s26, s26, 0x%x' % WS_HF)
        p('v_mov_b32 %s, s14' % R(v_e))
        p.wait_tag('hst')
        p('s_mov_b64 exec, 1')
        p('buffer_store_dword %s, %s, s[8:11], s26 offen sc1' % (R(v_e), R(zero)), 'hfl')
        p('s_mov_b64 exec, -1')
        if wqpos == 5: early()
        if fack: p.wait_tag('hfl')
        p.stamp(6)

    def spf():
        if not spf_rows: return
        p('s_lshr_b32 s22, s2, 3'); p('s_lshl_b32 s22, s22, 2'); p('s_add_u32 s22, s22, s19')
        p('s_lshl_b32 s22, s22, 13')
        p('s_and_b32 s23, s2, 3'); p('s_lshl_b32 s23, s23, 11'); p('s_add_u32 s22, s22, s23')
        for n in range(spf_rows // 128):
            if n: p('s_add_u32 s22, s22, 0x100000')
            for l in range(16):
                p.raw('s_load_dword s63, s[38:39], s22 offset:0x%x' % (l * 128))
    def front_B():
        F = RA('v', BASE, 256)
        v_e = F.alloc(1); zero = F.alloc(4, 4); v_wo = F.alloc(1); v_co = F.alloc(1); v_m = F.alloc(1)
        t = [F.alloc(1) for _ in range(10)]
        w = [F.alloc(4, 4) for _ in range(4)]
        cs = F.alloc(4, 4); ac = F.alloc(8, 4); u = F.alloc(8, 4)
        g = [F.alloc(4, 4) for _ in range(4)]
        mp = F.alloc(32, 4)
        p('s_and_b32 s20, s2, 7'); p('s_lshl_b32 s20, s20, 3'); p('s_bfe_u32 s21, s2, 0x30003'); p('s_add_u32 s20, s20, s21')
        p('s_lshr_b32 s21, s2, 6')
        p('v_lshrrev_b32 %s, 2, %s' % (R(t[0]), vid))
        p('v_mul_u32_u24 %s, %d, %s' % (R(v_wo), 4 * 12288, R(t[0])))
        p('v_and_b32 %s, 3, %s' % (R(t[1]), vid))
        p('v_lshl_add_u32 %s, %s, 4, %s' % (R(v_wo), R(t[1]), R(v_wo)))
        p('v_lshlrev_b32 %s, 3, %s' % (R(v_co), R(t[0])))
        p('s_mul_i32 s22, s21, %d' % (256 * 12288))
        p('s_lshl_b32 s23, s20, 6')
        p('s_add_u32 s22, s22, s23')
        p('s_lshl_b32 s24, s21, 9')
        for i in range(4): p('v_mov_b32 %s, 0' % R(zero, i))
        p('v_lshlrev_b32 %s, %d, %s' % (R(t[2]), 4 if mlp2 else 3, vid))
        p('s_lshl_b32 s26, s2, %d' % (12 if mlp2 else 11))
        p('s_add_u32 s26, s26, 0x%x' % WS_YP2)
        p('s_sub_u32 s19, s3, 4')
        p('v_mov_b32 %s, 0x%x' % (R(t[8]), L_CNT))
        p('ds_write_b32 %s, %s' % (R(t[8]), R(zero)))
        p('s_waitcnt lgkmcnt(0)')
        p.stamp(0)
        p('s_mov_b64 s[8:9], s[60:61]')
        for l in mksrd(p, QX, 'c', 2048): p(l)
        for l in mksrd(p, QY, 'wmod', 1024 * 6144 * 2): p(l)
        for l in mksrd(p, 4, 'wq', 0x800000): p(l)
        zst = 'buffer_store_dwordx%d %s, %s, s[8:11], s26 offen sc1' % (4 if mlp2 else 2, R(zero, 0, 4 if mlp2 else 2), R(t[2]))
        if zfirst: p(zst)
        p('buffer_load_dwordx2 %s, %s, %s, s24 offen' % (R(cs, 0, 2), R(v_co), SR(QX)))
        for i in range(4):
            p('s_add_u32 s25, s22, %d' % (i * 12288))
            p('buffer_load_dwordx4 %s, %s, %s, s25 offen' % (R(w[i], 0, 4), R(v_wo), SR(QY)))
        epoch_load(R(v_e), R(zero))
        if not zfirst: p(zst)
        if cpf:
            p('s_cmp_lg_u32 s3, 4')
            p('s_cbranch_scc1 %s_ncp' % name)
            p.raw('s_getpc_b64 s[22:23]')
            p.label('%s_pc' % name)
            p.raw('s_add_u32 s22, s22, %s_start-%s_pc' % (name, name))
            p.raw('s_addc_u32 s23, s23, -1')
            p('s_lshr_b32 s24, s2, 3'); p('s_lshl_b32 s24, s24, 12')
            p('v_lshl_add_u32 %s, %s, 7, s24' % (R(t[4]), lane))
            p('v_min_u32 %s, %s_end-%s_start, %s' % (R(t[4]), name, name, R(t[4])))
            p('s_mov_b64 exec, 0xffffffff')
            p.raw('global_load_dword %s, %s, s[22:23]' % (R(v_pfd), R(t[4])))
            p('s_mov_b64 exec, -1')
            p.label('%s_ncp' % name)
        p('s_barrier')
        p('v_lshrrev_b32 %s, 4, %s' % (R(t[3]), lane))
        p.stamp(1)
        unpack(p, R(cs, 2), R(cs, 3), R(cs, 1))
        unpack(p, R(cs, 0), R(cs, 1), R(cs, 0))
        for i in range(4): silu(p, R(cs, i), R(u, i))
        rb2(p, R(cs, 0), R(cs, 1), R(u, 0)); rb2(p, R(cs, 2), R(cs, 3), R(u, 1))
        p.stamp(12)
        for i in range(4):
            for d in range(4): unpack(p, R(u, 2 * d), R(u, 2 * d + 1), R(w[i], d))
            for e in range(8):
                if i == 0: p('v_mul_f32 %s, %s, %s' % (R(ac, e), R(cs, i), R(u, e)))
                else: p('v_fmac_f32 %s, %s, %s' % (R(ac, e), R(cs, i), R(u, e)))
        for e in range(4): p('v_permlane32_swap_b32 %s, %s' % (R(ac, e), R(ac, 4 + e)))
        for e in range(4): p('v_add_f32 %s, %s, %s' % (R(ac, e), R(ac, e), R(ac, 4 + e)))
        for e in range(2): p('v_permlane16_swap_b32 %s, %s' % (R(ac, e), R(ac, 2 + e)))
        for e in range(2): p('v_add_f32 %s, %s, %s' % (R(ac, e), R(ac, e), R(ac, 2 + e)))
        for n in (8, 4):
            for e in range(2): ror_add(p, R(ac, e), n)
        p('v_lshlrev_b32 %s, 5, %s' % (R(t[5]), R(t[1])))
        p('v_lshl_add_u32 %s, %s, 3, %s' % (R(t[5]), R(t[3]), R(t[5])))
        p('s_lshl_b32 s26, s19, 7'); p('s_add_u32 s26, s26, 0x%x' % L_GP)
        p('v_add_u32 %s, s26, %s' % (R(t[5]), R(t[5])))
        p('ds_write_b64 %s, %s' % (R(t[5]), R(ac, 0, 2)))
        p('v_mov_b32 %s, 1' % R(t[9]))
        p('s_mov_b64 exec, 1')
        p('ds_add_rtn_u32 %s, %s, %s' % (R(t[9]), R(t[8]), R(t[9])))
        p('s_mov_b64 exec, -1')
        nonce_from(R(v_e))
        p('v_add_u32 %s, 0x%x, %s' % (R(t[6]), L_GP, R(v_l16)))
        p('v_readfirstlane_b32 s26, %s' % R(t[9]))
        p.stamp(13)
        if spf_pos == 0: spf()
        p('s_cmp_lg_u32 s26, 3')
        p('s_cbranch_scc1 %s_np' % name)
        for k in range(4): p('ds_read_b128 %s, %s offset:%d' % (R(g[k], 0, 4), R(t[6]), k * 128))
        p('v_mov_b32 %s, 0xff' % R(v_m))
        p('s_lshl_b32 s26, s21, 13'); p('s_lshl_b32 s27, s20, 7'); p('s_add_u32 s26, s26, s27')
        p('s_add_u32 s26, s26, 0x%x' % WS_MG)
        for a, b in ((0, 1), (2, 3), (0, 2)):
            for h in range(2): p('v_pk_add_f32 %s, %s, %s' % (R(g[a], 2 * h, 2), R(g[a], 2 * h, 2), R(g[b], 2 * h, 2)))
        for k in range(4):
            if k: p('s_lshr_b32 s27, s14, %d' % (8 * k))
            p('v_bfi_b32 %s, %s, %s, %s' % (R(g[0], k), R(v_m), 's27' if k else 's14', R(g[0], k)))
        p('s_mov_b64 exec, 0xff')
        p('buffer_store_dwordx4 %s, %s, s[8:11], s26 offen sc1' % (R(g[0], 0, 4), R(v_l16)))
        p('s_mov_b64 exec, -1')
        p.stamp(14)
        p('s_waitcnt vmcnt(0)')
        p.label('%s_np' % name)
        if spf_pos == 1: spf()
        p('s_waitcnt vmcnt(0)')
        p.stamp(2)
        p('s_barrier')
        p.stamp(3)
        v16 = R(t[7]); bad = R(t[4]); pa, pb = R(t[5]), R(t[6]); tmp = R(t[0])
        p('v_lshlrev_b32 %s, 4, %s' % (v16, vid))
        p('s_mov_b32 s24, 0x0c0c0400'); p('s_mov_b32 s25, 0x04000c0c')
        def gl():
            for k in range(4):
                for hf in range(2):
                    p('s_mov_b32 s21, 0x%x' % (WS_MG + k * 8192 + hf * 4096))
                    p('buffer_load_dwordx4 %s, %s, s[8:11], s21 offen sc1' % (R(mp, (k * 2 + hf) * 4, 4), v16))
        def gt():
            for g in range(8):
                p('v_perm_b32 %s, %s, %s, s24' % (pa, R(mp, 4 * g + 1), R(mp, 4 * g)))
                p('v_perm_b32 %s, %s, %s, s25' % (pb, R(mp, 4 * g + 3), R(mp, 4 * g + 2)))
                p('v_or_b32 %s, %s, %s' % (pa, pa, pb))
                if g == 0: p('v_xor_b32 %s, s14, %s' % (bad, pa))
                else:
                    p('v_xor_b32 %s, s14, %s' % (pa, pa))
                    p('v_or_b32 %s, %s, %s' % (bad, bad, pa))
            p('v_cmp_ne_u32 vcc, 0, %s' % bad)
        poll('g', gl, gt, gsleep)
        p.stamp(4)
        for i in range(32): p('v_and_b32 %s, 0xffffff00, %s' % (R(mp, i), R(mp, i)))
        for step in (16, 8):
            for i in range(0, step, 2): p('v_pk_add_f32 %s, %s, %s' % (R(mp, i, 2), R(mp, i, 2), R(mp, step + i, 2)))
        for i in range(0, 8, 2): rb2(p, R(mp, i), R(mp, i + 1), tmp)
        for i in range(4, 8): p('v_add_f32 %s, 1.0, %s' % (R(mp, i), R(mp, i)))
        for i in range(4, 8, 2): rb2(p, R(mp, i), R(mp, i + 1), tmp)
        p('v_add_u32 %s, 0x%x, %s' % (v16, L_MOD, v16))
        p('ds_write_b128 %s, %s' % (v16, R(mp, 0, 4)))
        p('ds_write_b128 %s, %s offset:4096' % (v16, R(mp, 4, 4)))
        p('s_waitcnt lgkmcnt(0)')
        p.stamp(5)
        p('s_barrier')
        if wqpos == 4:
            p('s_sub_u32 s19, s3, 4')
            p('s_lshl_b32 s16, s19, 17'); p('s_lshl_b32 s17, s19, 12')
            p('s_lshl_b32 s19, s12, 8')
            p('s_add_u32 s4, s38, s19'); p('s_addc_u32 s5, s39, 0'); p('s_sub_u32 s6, 0x800000, s19'); p('s_mov_b32 s7, 0x20000')
            early()

    def add_kv(sc):
        kd = (S[1][0], S[1][1]); ke = (S[1][0], S[1][1] + 4); tt = [R(S[1], 12 + i) for i in range(4)]
        def issue(p):
            p('s_sub_u32 s19, s3, 4')
            p('s_lshl_b32 s25, s2, 2'); p('s_add_u32 s63, s25, s19')
            p('s_lshr_b32 s20, s63, 8')
            p('s_bfe_u32 s21, s63, 0x40004')
            p('s_and_b32 s24, s63, 15')
            p('s_lshl_b32 s20, s20, 19'); p('s_lshl_b32 s21, s21, 13'); p('s_add_u32 s20, s20, s21')
            p('s_add_u32 s20, s20, %d' % (1536 * 256))
            p('v_and_b32 %s, 15, %s' % (tt[0], lane))
            p('v_lshrrev_b32 %s, 4, %s' % (tt[1], lane))
            for l in mksrd(p, QZ, 'k', 2097152): p(l)
            p('s_cmp_lt_u32 s24, 8'); p('s_cselect_b32 s%d, s%d, 0' % (QZ + 2, QZ + 2))
            p('v_lshlrev_b32 %s, 8, %s' % (tt[2], tt[0]))
            p('v_lshl_add_u32 %s, %s, 3, %s' % (tt[2], tt[1], tt[2]))
            p('s_and_b32 s26, s24, 1'); p('s_lshl_b32 s26, s26, 12'); p('s_add_u32 s21, s20, s26')
            p('s_bfe_u32 s26, s24, 0x20001'); p('s_lshl_b32 s26, s26, 6'); p('s_add_u32 s21, s21, s26')
            p('buffer_load_dwordx2 %s, %s, %s, s21 offen' % (R(kd, 0, 2), tt[2], SR(QZ)))
            p('buffer_load_dwordx2 %s, %s, %s, s21 offen offset:32' % (R(kd, 2, 2), tt[2], SR(QZ)))
            for l in mksrd(p, QX, 'v', 2097152): p(l)
            p('s_cmp_ge_u32 s24, 8'); p('s_cselect_b32 s%d, s%d, 0' % (QX + 2, QX + 2))
            p('s_and_b32 s26, s24, 7'); p('s_lshl_b32 s26, s26, 5'); p('s_add_u32 s20, s20, s26')
            p('s_add_u32 s26, s20, 4096')
            p('v_lshlrev_b32 %s, 10, %s' % (tt[3], tt[1]))
            p('v_lshl_add_u32 %s, %s, 1, %s' % (tt[3], tt[0], tt[3]))
            for e in range(8):
                p('buffer_load_ushort %s, %s, %s, %s offen offset:%d' % (R(ke, e), tt[3], SR(QX), 's26' if e >= 4 else 's20', (e % 4) * 256))
        def store(p):
            if kscale:
                p('s_mov_b32 s26, 0x%x' % f2u((128 ** -0.5) * math.log2(math.e)))
                for d in range(4):
                    a_, b_ = tt[(2 * d) % 4], tt[(2 * d + 1) % 4]
                    unpack(p, a_, b_, R(kd, d))
                    p('v_mul_f32 %s, s26, %s' % (a_, a_)); p('v_mul_f32 %s, s26, %s' % (b_, b_))
                    p('v_cvt_pk_bf16_f32 %s, %s, %s' % (R(kd, d), a_, b_))
            for d in range(4):
                p('v_lshl_or_b32 %s, %s, 16, %s' % (R(ke, 2 * d), R(ke, 2 * d + 1), R(ke, 2 * d)))
                p('v_or_b32 %s, %s, %s' % (R(kd, d), R(kd, d), R(ke, 2 * d)))
            p('s_lshl_b32 s27, s63, 10'); p('s_add_u32 s27, s27, 0x%x' % WS_KV)
            p('buffer_store_dwordx4 %s, %s, s[8:11], s27 offen sc1' % (R(kd, 0, 4), R(v_l16)), 'kvst')
        def flag(p):
            p('s_lshl_b32 s26, s63, 2'); p('s_add_u32 s26, s26, 0x%x' % WS_KVF)
            p('v_mov_b32 %s, s14' % tt[0]); p('v_mov_b32 %s, 0' % tt[1])
            p.wait_tag('kvst')
            p('s_mov_b64 exec, 1')
            p('buffer_store_dword %s, %s, s[8:11], s26 offen sc1' % (tt[0], tt[1]))
            p('s_mov_b64 exec, -1')
            p('s_nop 3')
        sc.place(kvpos[0], issue); sc.place(kvpos[1], store); sc.place(kvpos[2], flag)

    def wait_h(role):
        a, b = R(v_t[0]), R(v_t[1])
        p('s_lshl_b32 s26, s13, 5'); p('s_lshl_b32 s25, s3, 2'); p('s_add_u32 s26, s26, s25')
        if 'h' in fl128:
            p('v_and_b32 %s, 15, %s' % (a, lane)); p('v_lshlrev_b32 %s, 7, %s' % (a, a))
            p('s_lshl_b32 s26, s26, 9'); p('s_add_u32 s26, s26, 0x%x' % WS_HF2)
        else:
            p('v_bfe_u32 %s, %s, 2, 2' % (a, lane)); p('v_lshlrev_b32 %s, 7, %s' % (a, a))
            p('v_and_b32 %s, 3, %s' % (b, lane)); p('v_lshl_add_u32 %s, %s, 2, %s' % (a, b, a))
            p('s_lshl_b32 s26, s26, 7'); p('s_add_u32 s26, s26, 0x%x' % WS_HF)
        poll('h' + role, lambda: p('buffer_load_dword %s, %s, s[8:11], s26 offen sc1' % (b, a)),
             lambda: p('v_cmp_ne_u32 vcc, s14, %s' % b), hsleep)
    kva = [R(v_wt[0]), R(v_wt[1]), R(v_wt[2]), R(v_pf)]
    def kv_flag_loads(p_):
        p('s_lshr_b32 s26, s12, 3'); p('s_lshl_b32 s26, s26, 10'); p('s_add_u32 s62, s26, 0x%x' % WS_KVF)
        for k in range(4): p('buffer_load_dword %s, %s, s[8:11], s62 offen offset:%d sc1' % (kva[k], R(v_l16), 4 * k))
    def kv_flag_check(p_):
        a = kva
        def ts(q):
            for k in range(4): q('v_xor_b32 %s, s14, %s' % (a[k], a[k]))
            q('v_or3_b32 %s, %s, %s, %s' % (a[0], a[0], a[1], a[2])); q('v_or_b32 %s, %s, %s' % (a[0], a[0], a[3]))
            q('v_cmp_ne_u32 vcc, 0, %s' % a[0])
        ts(p)
        p('s_cbranch_vccz %s_kvg' % name)
        q = p.raw
        q('s_mov_b32 s27, 0')
        p.label('%s_kvp' % name)
        for k in range(4): q('buffer_load_dword %s, %s, s[8:11], s62 offen offset:%d sc1' % (a[k], R(v_l16), 4 * k))
        q('s_waitcnt vmcnt(0)')
        ts(q)
        q('s_add_u32 s27, s27, 1'); q('s_cmp_ge_u32 s27, %d' % SPIN_MAX)
        q('s_nop 4')
        q('s_cbranch_scc1 %s_kvg' % name)
        q('s_cbranch_vccnz %s_kvp' % name)
        p.label('%s_kvg' % name)

    XR = [(Hx[i // 4][0], Hx[i // 4][1] + 4 * (i % 4)) for i in range(8)]
    Wt = XR + [(mx[0], mx[1] + 4 * i) for i in range(4)] + [ones, (negm[0], negm[1] + 8), (negm[0], negm[1] + 12), (negm[0], negm[1])]
    def wsetup(p, A_):
        t0, t1, t2 = R(v_pf), R(v_pfd), R(v_wt[2])
        p('v_lshrrev_b32 %s, 3, %s' % (t0, vid)); p('v_and_b32 %s, 7, %s' % (t1, vid))
        if not A_:
            p('s_bfe_u32 s25, s2, 0x10002'); p('s_mul_i32 s25, s25, 28'); p('s_lshr_b32 s26, s2, 3'); p('s_add_u32 s25, s25, s26')
            p('s_lshl_b32 s25, s25, 7')
            p('s_bfe_u32 s24, s2, 0x10001'); p('s_mul_i32 s24, s24, %d' % (512 * 7168)); p('s_add_u32 s24, s24, s25')
            p('s_mov_b32 s26, %d' % (16 * 7168))
            p('v_mul_lo_u32 %s, s26, %s' % (t2, t0))
            p('v_lshl_add_u32 %s, %s, 4, %s' % (t2, t1, t2))
            p('s_bitcmp0_b32 s2, 0')
            p('s_cselect_b32 s%d, s46, s48' % QX); p('s_cselect_b32 s%d, s47, s49' % (QX + 1))
            p('s_cmp_lt_u32 s2, 224'); p('s_cselect_b32 s%d, 0x%x, 0' % (QX + 2, 1024 * 3584 * 2)); p('s_mov_b32 s%d, 0x20000' % (QX + 3))
        else:
            for l in mksrd(p, QX, 'wd', 7340032): p(l)
            p('v_mul_u32_u24 %s, %d, %s' % (t2, 7 * 2048, t0))
            p('v_lshl_add_u32 %s, %s, 4, %s' % (t2, t1, t2))
            p('s_and_b32 s24, s2, 7'); p('s_lshl_b32 s24, s24, 1'); p('s_lshr_b32 s26, s2, 7'); p('s_add_u32 s24, s24, s26')
            p('s_mul_i32 s24, s24, %d' % (224 * 2048))
            p('s_bfe_u32 s25, s2, 0x40003'); p('s_lshl_b32 s25, s25, 7'); p('s_add_u32 s24, s24, s25')
    def strip_of(dst, tmp):
        return ['s_and_b32 %s, s2, 7' % dst, 's_mul_i32 %s, %s, 28' % (dst, dst), 's_lshr_b32 %s, s2, 3' % tmp, 's_add_u32 %s, %s, %s' % (dst, dst, tmp)]
    def wsetup2(p):
        t0 = R(v_pfd)
        p('v_mov_b32 %s, s3' % t0); p('v_lshl_add_u32 %s, %s, 6, %s' % (t0, t0, lane))
        p('v_lshlrev_b32 %s, 2, %s' % (R(v_pf), t0))
        p('v_and_b32 %s, 1, %s' % (R(v_wt[2]), t0)); p('v_lshlrev_b32 %s, 4, %s' % (R(v_wt[2]), R(v_wt[2])))
        p('v_lshrrev_b32 %s, 1, %s' % (t0, t0)); p('v_mul_u32_u24 %s, %d, %s' % (t0, 4 * 7168, t0))
        p('v_add_u32 %s, %s, %s' % (R(v_wt[2]), R(v_wt[2]), t0))
        for l in strip_of('s24', 's26'): p(l)
        p('s_lshr_b32 s26, s2, 3'); p('s_cmp_lt_u32 s26, 28'); p('s_cselect_b32 s27, 7340032, 0')
        for q_, b_ in ((QX, 'wg'), (QY, 'wu'), (QZ, 'wd')):
            for l in mksrd(p, q_, b_, 0)[:1]: p(l)
            p('s_mov_b32 s%d, s27' % (q_ + 2)); p('s_mov_b32 s%d, 0x20000' % (q_ + 3))
    def wloads2():
        out = []
        for i in range(4):
            for mat, q_ in ((0, QX), (1, QY)):
                out.append((['s_lshl_b32 s25, s24, 5', 's_add_u32 s25, s25, %d' % (i * 7168)], 'buffer_load_dwordx4 %s, %s, %s, s25 offen' % (R(XR[4 * mat + i], 0, 4), R(v_wt[2]), SR(q_))))
        for r_ in range(16):
            out.append((['s_lshl_b32 s25, s24, 15', 's_add_u32 s25, s25, %d' % (r_ * 2048)], 'buffer_load_dword %s, %s, %s, s25 offen' % (R(mx, r_), R(v_pf), SR(QZ))))
        return out
    def wloads(A_):
        st = 2048 if A_ else 7168
        return [('s_add_u32 s25, s24, %d' % (i * st), 'buffer_load_dwordx4 %s, %s, %s, s25 offen' % (R(Wt[i], 0, 4), R(v_wt[2]), SR(QX))) for i in range(7 if A_ else 16)]
    SB_W, SB_SRC, SB_LDS, SB_DST, SB_STRIP, SB_KQ = 's96', 's97', 's98', 's99', 's100', 's101'
    def add_wot(sc):
        va, vb = R(v_wt[0]), R(v_wt[1])
        for i in range(8):
            at = 3 + 8 * burst + burst * i
            if i == 0:
                for l in mksrd(p, QZ, 'wo', 0x800000): sc.place(at, l)
            sc.place(at, 's_add_u32 s26, %s, %d' % (SB_SRC, i * 4 * 2048))
            sc.place(at, 's_add_u32 m0, %s, %d' % (SB_LDS, i * 1024))
            sc.place(at, 'buffer_load_dwordx4 %s, %s, s26 offen lds' % (va, SR(QZ)), 'wot')
        at0 = 16 * 12 + 1
        sc.place(at0, lambda p: p.wait_tag('wot'))
        for N in range(8):
            reg = XR[N]
            at = at0 + 4 * N
            for e in range(2):
                off = e * 4096 + (N // 2) * 256 + (N % 2) * 8
                sc.place(at, 'ds_read_b64_tr_b16 %s, %s offset:%d' % (R(reg, 2 * e, 2), vb, off))
            sc.place(at + 5, 's_add_u32 s26, %s, 0x%x' % (SB_DST, (N // 4) * 4096))
            sc.place(at + 5, 'buffer_store_dwordx4 %s, %s, s[8:11], s26 offen offset:%d %s' % (R(reg, 0, 4), R(v_l16), (N % 4) * 1024, ost))
    def setup_B():
        va, vb = R(v_wt[0]), R(v_wt[1])
        LB = 4096
        r_, g_, c_ = R(v_t[0]), R(v_t[1]), R(v_t[2])
        p('v_bfe_u32 %s, %s, 2, 2' % (r_, lane)); p('v_lshrrev_b32 %s, 4, %s' % (g_, lane)); p('v_and_b32 %s, 3, %s' % (c_, lane))
        p('v_lshlrev_b32 %s, 6, %s' % (va, g_)); p('v_lshl_add_u32 %s, %s, 4, %s' % (va, c_, va)); p('v_lshl_add_u32 %s, %s, 11, %s' % (va, r_, va))
        p('s_sub_u32 %s, s3, 4' % SB_W)
        p('s_lshr_b32 %s, s2, 1' % SB_SRC); p('s_lshl_b32 s27, %s, 13' % SB_SRC); p('s_lshl_b32 %s, %s, 16' % (SB_SRC, SB_SRC))
        p('s_and_b32 %s, s2, 1' % SB_DST); p('s_lshl_b32 %s, %s, 2' % (SB_DST, SB_DST)); p('s_add_u32 %s, %s, %s' % (SB_DST, SB_DST, SB_W))
        p('s_lshl_b32 %s, %s, 8' % (SB_LDS, SB_DST)); p('s_add_u32 %s, %s, %s' % (SB_SRC, SB_SRC, SB_LDS))
        p('s_mul_i32 %s, %s, %d' % (SB_DST, SB_DST, W_STRIDE)); p('s_add_u32 %s, %s, s27' % (SB_DST, SB_DST)); p('s_add_u32 %s, %s, 0x%x' % (SB_DST, SB_DST, WS_WOF))
        p('s_lshl_b32 %s, %s, 13' % (SB_LDS, SB_W))
        p('s_add_u32 %s, %s, %d' % (SB_LDS, SB_LDS, LB))
        p('v_lshlrev_b32 %s, 6, %s' % (vb, r_))
        p('v_lshl_add_u32 %s, %s, 4, %s' % (vb, c_, vb))
        p('v_lshl_add_u32 %s, %s, 10, %s' % (vb, g_, vb))
        p('v_add_u32 %s, %s, %s' % (vb, SB_LDS, vb))
        p('s_and_b32 %s, s2, 63' % SB_STRIP); p('s_lshr_b32 %s, s2, 6' % SB_KQ)
    def add_modcols(sc):
        w = XR
        cs = (mx[0], mx[1]); ma = (mx[0], mx[1] + 8)
        mu = [R(v_hoff), R(v_t[1]), R(v_kvoff), R(v_t[3])]
        ta, tb = R(v_t[4]), R(v_t[5])
        def issue(p):
            for l in mksrd(p, QX, 'c', 2048): p(l)
            for l in mksrd(p, QY, 'wmod', 1024 * 6144 * 2): p(l)
            p('v_lshrrev_b32 %s, 3, %s' % (ta, vid))
            p('v_lshlrev_b32 %s, 4, %s' % (tb, ta))
            p('s_lshl_b32 s26, %s, 9' % SB_KQ)
            p('buffer_load_dwordx4 %s, %s, %s, s26 offen' % (R(ma, 0, 4), tb, SR(QX)))
            p('s_mov_b32 s26, %d' % (8 * 12288))
            p('v_mul_lo_u32 %s, s26, %s' % (ta, ta))
            p('v_and_b32 %s, 7, %s' % (tb, vid))
            p('v_lshl_add_u32 %s, %s, 4, %s' % (ta, tb, ta))
            p('s_mul_i32 s27, %s, %d' % (SB_KQ, 256 * 12288))
            p('s_lshl_b32 s26, %s, 7' % SB_STRIP)
            p('s_add_u32 s27, s27, s26')
            p('s_add_u32 s25, s27, 4096')
        sc.place(1, issue)
        for i in range(8):
            at = 3 + burst * i
            sc.place(at, 's_add_u32 s26, s25, %d' % (i * 12288))
            sc.place(at, 'buffer_load_dwordx4 %s, %s, %s, s26 offen' % (R(w[i], 0, 4), ta, SR(QY)))
        q = L()
        for d in range(4): unpack(q, R(cs, 2 * d), R(cs, 2 * d + 1), R(ma, d))
        for i in range(8): silu(q, R(cs, i), mu[i % 4])
        for i in range(0, 8, 2): rb2(q, R(cs, i), R(cs, i + 1), mu[0])
        for i in range(8):
            for hf in range(2):
                for d in range(2): unpack(q, mu[2 * d], mu[2 * d + 1], R(w[i], 2 * hf + d))
                for e in range(4):
                    if i == 0: q('v_mul_f32 %s, %s, %s' % (R(ma, 4 * hf + e), R(cs, i), mu[e]))
                    else: q('v_fmac_f32 %s, %s, %s' % (R(ma, 4 * hf + e), R(cs, i), mu[e]))
        for e in range(4): q('v_permlane32_swap_b32 %s, %s' % (R(ma, e), R(ma, 4 + e)))
        for e in range(4): q('v_add_f32 %s, %s, %s' % (R(ma, e), R(ma, e), R(ma, 4 + e)))
        for e in range(2): q('v_permlane16_swap_b32 %s, %s' % (R(ma, e), R(ma, 2 + e)))
        for e in range(2): q('v_add_f32 %s, %s, %s' % (R(ma, e), R(ma, e), R(ma, 2 + e)))
        for e in range(2): ror_add(q, R(ma, e), 8)
        q('v_lshrrev_b32 %s, 6, %s' % (ta, vid))
        q('v_lshlrev_b32 %s, 8, %s' % (ta, ta))
        q('v_lshl_add_u32 %s, %s, 5, %s' % (ta, tb, ta))
        q('v_bfe_u32 %s, %s, 4, 2' % (tb, vid))
        q('v_lshl_add_u32 %s, %s, 3, %s' % (ta, tb, ta))
        q('ds_write_b64 %s, %s' % (ta, R(ma, 0, 2)))
        lo, hi = 16 * 9, 16 * 12 - 1
        for i, o in enumerate(q.l): sc.place(lo + (i * (hi - lo)) // len(q.l), o)
        sc.place(hi + 4, 's_waitcnt lgkmcnt(0)')
        def fin(p):
            p('v_lshlrev_b32 %s, 2, %s' % (ta, lane))
            for i in range(4): p('ds_read_b32 %s, %s offset:%d' % (R(ma, i), ta, i * 256))
        sc.place(16 * 13 + 2, fin)
        def fin2(p):
            for i in range(2): p('v_add_f32 %s, %s, %s' % (R(ma, i), R(ma, i), R(ma, 2 + i)))
            p('v_add_f32 %s, %s, %s' % (R(ma, 0), R(ma, 0), R(ma, 1)))
            p('s_lshl_b32 s26, %s, 14' % SB_KQ)
            p('s_lshl_b32 s27, %s, 8' % SB_STRIP)
            p('s_add_u32 s26, s26, s27')
            p('s_add_u32 s26, s26, 0x%x' % WS_MODP2)
            p('s_cmp_eq_u32 s3, 4'); p('s_cselect_b32 s26, s26, 0x7ffffff0')
            p('buffer_store_dword %s, %s, s[8:11], s26 offen sc1' % (R(ma, 0), ta))
        sc.place(16 * 13 + 8, fin2)

    L_MC = 49152
    def add_modcols2(sc):
        w = XR
        cs = (mx[0], mx[1]); ma = (mx[0], mx[1] + 8)
        mu = [R(v_hoff), R(v_t[1]), R(v_kvoff), R(v_t[3])]
        ta, tb = R(v_t[4]), R(v_t[5])
        SL = SB_STRIP
        def issue(p):
            for l in mksrd(p, QX, 'c', 2048): p(l)
            for l in mksrd(p, QY, 'wmod', 1024 * 6144 * 2): p(l)
            p('s_and_b32 %s, s2, 7' % SL); p('s_lshl_b32 %s, %s, 5' % (SL, SL)); p('s_lshr_b32 s26, s2, 3'); p('s_add_u32 %s, %s, s26' % (SL, SL))
            p('v_lshrrev_b32 %s, 1, %s' % (ta, vid))
            p('v_lshlrev_b32 %s, 4, %s' % (tb, ta))
            p('buffer_load_dwordx4 %s, %s, %s, 0 offen' % (R(ma, 0, 4), tb, SR(QX)))
            p('s_mov_b32 s26, %d' % (8 * 12288))
            p('v_mul_lo_u32 %s, s26, %s' % (ta, ta))
            p('v_and_b32 %s, 1, %s' % (tb, vid))
            p('v_lshl_add_u32 %s, %s, 4, %s' % (ta, tb, ta))
            p('s_lshl_b32 s25, %s, 5' % SL)
            p('s_add_u32 s25, s25, 4096')
        sc.place(1, issue)
        for i in range(8):
            at = 3 + burst * i
            sc.place(at, 's_add_u32 s26, s25, %d' % (i * 12288))
            sc.place(at, 'buffer_load_dwordx4 %s, %s, %s, s26 offen' % (R(w[i], 0, 4), ta, SR(QY)))
        q = L()
        for d in range(4): unpack(q, R(cs, 2 * d), R(cs, 2 * d + 1), R(ma, d))
        for i in range(8): silu(q, R(cs, i), mu[i % 4])
        for i in range(0, 8, 2): rb2(q, R(cs, i), R(cs, i + 1), mu[0])
        for i in range(8):
            for hf in range(2):
                for d in range(2): unpack(q, mu[2 * d], mu[2 * d + 1], R(w[i], 2 * hf + d))
                for e in range(4):
                    if i == 0: q('v_mul_f32 %s, %s, %s' % (R(ma, 4 * hf + e), R(cs, i), mu[e]))
                    else: q('v_fmac_f32 %s, %s, %s' % (R(ma, 4 * hf + e), R(cs, i), mu[e]))
        for e in range(4): q('v_permlane32_swap_b32 %s, %s' % (R(ma, e), R(ma, 4 + e)))
        for e in range(4): q('v_add_f32 %s, %s, %s' % (R(ma, e), R(ma, e), R(ma, 4 + e)))
        for e in range(2): q('v_permlane16_swap_b32 %s, %s' % (R(ma, e), R(ma, 2 + e)))
        for e in range(2): q('v_add_f32 %s, %s, %s' % (R(ma, e), R(ma, e), R(ma, 2 + e)))
        for n_ in (8, 4, 2):
            for e in range(2): ror_add(q, R(ma, e), n_)
        q('v_lshrrev_b32 %s, 6, %s' % (ta, vid))
        q('v_lshlrev_b32 %s, 6, %s' % (ta, ta))
        q('v_lshl_add_u32 %s, %s, 5, %s' % (ta, tb, ta))
        q('v_bfe_u32 %s, %s, 4, 2' % (tb, vid))
        q('v_lshl_add_u32 %s, %s, 3, %s' % (ta, tb, ta))
        q('ds_write_b64 %s, %s offset:%d' % (ta, R(ma, 0, 2), L_MC))
        lo, hi = 16 * mc_at[0], 16 * mc_at[1] - 1
        for i, o in enumerate(q.l): sc.place(lo + (i * (hi - lo)) // len(q.l), o)
        sc.place(hi + 4, 's_waitcnt lgkmcnt(0)')
        def fin(p):
            p('v_and_b32 %s, 15, %s' % (ta, lane))
            p('v_lshlrev_b32 %s, 2, %s' % (ta, ta))
            for i in range(4): p('ds_read_b32 %s, %s offset:%d' % (R(ma, i), ta, L_MC + i * 64))
        sc.place(16 * (mc_at[1] + 1) + 2, fin)
        def fin2(p):
            for i in range(2): p('v_add_f32 %s, %s, %s' % (R(ma, i), R(ma, i), R(ma, 2 + i)))
            p('v_add_f32 %s, %s, %s' % (R(ma, 0), R(ma, 0), R(ma, 1)))
            rb1(p, R(ma, 0))
            p('s_lshr_b32 s26, %s, 6' % SL)
            p('s_cmp_eq_u32 s26, 2'); p('s_cselect_b32 s26, 1.0, 0')
            p('v_add_f32 %s, s26, %s' % (R(ma, 0), R(ma, 0)))
            rb1(p, R(ma, 0))
            p('v_or_b32 %s, 1, %s' % (R(ma, 0), R(ma, 0)))
            p('s_lshl_b32 s26, %s, 6' % SL)
            p('s_add_u32 s26, s26, 0x%x' % Z_MODF)
            p('s_cmp_eq_u32 s3, 4'); p('s_cselect_b32 s26, s26, 0x7ffffff0')
            p('s_mov_b64 exec, 0xffff')
            p('buffer_store_dword %s, %s, s[8:11], s26 offen sc1' % (R(ma, 0), ta))
            p('s_mov_b64 exec, -1')
            p('s_nop 3')
        sc.place(16 * (mc_at[1] + 1) + 8, fin2)

    L_MODS = 131072; L_GA = L_MODS + 8192
    def add_gather(sc, at1, at2):
        g = mx; pk = (negm[0], negm[1] + 8)
        tg, t0, t3 = R(v_pf), R(v_pfd), R(v_t[4])
        def ld(q):
            for v in range(4):
                q('s_mov_b32 s26, 0x%x' % (Z_MODF + v * 4096))
                q('buffer_load_dwordx4 %s, %s, s[8:11], s26 offen sc1' % (R(g, 4 * v, 4), tg))
        def ts(q):
            q('v_min3_u32 %s, %s, %s, %s' % (t3, R(g, 0), R(g, 1), R(g, 2)))
            for i in range(3, 15, 2): q('v_min3_u32 %s, %s, %s, %s' % (t3, t3, R(g, i), R(g, i + 1)))
            q('v_min_u32 %s, %s, %s' % (t3, t3, R(g, 15)))
            q('v_cmp_eq_u32 vcc, 0, %s' % t3)
        def issue(p):
            p('v_lshlrev_b32 %s, 4, %s' % (tg, vid))
            for l in mksrd(p, QY, 'wr', 2048): p(l)
            p('v_lshlrev_b32 %s, 3, %s' % (t0, vid))
            p('buffer_load_dwordx2 %s, %s, %s, 0 offen' % (R(pk, 6, 2), t0, SR(QY)))
            ld(p)
        def fin(p):
            ts(p)
            p('s_cbranch_vccz %s_mfg' % name)
            q = p.raw
            q('s_mov_b32 s27, 0')
            p.label('%s_mfp' % name)
            ld(q); q('s_waitcnt vmcnt(0)'); ts(q)
            q('s_add_u32 s27, s27, 1'); q('s_cmp_ge_u32 s27, %d' % SPIN_MAX); q('s_nop 4')
            q('s_cbranch_scc1 %s_mfg' % name)
            q('s_cbranch_vccnz %s_mfp' % name)
            p.label('%s_mfg' % name)
            p('s_mov_b32 s26, 0x07060302')
            for v in range(1, 4):
                for i in range(2): p('v_perm_b32 %s, %s, %s, s26' % (R(pk, 2 * (v - 1) + i), R(g, 4 * v + 2 * i + 1), R(g, 4 * v + 2 * i)))
            p('v_add_u32 %s, 0x%x, %s' % (t0, L_MODS, t0))
            for v in range(4): p('ds_write_b64 %s, %s offset:%d' % (t0, R(pk, 2 * v, 2), v * 2048))
            for i in range(4): p('v_and_b32 %s, 0xffff0000, %s' % (R(g, i), R(g, i)))
            p('v_add_u32 %s, 0x%x, %s' % (tg, L_GA, tg))
            p('ds_write_b128 %s, %s' % (tg, R(g, 0, 4)))
            p('s_waitcnt lgkmcnt(0)')
        sc.place(at1, issue); sc.place(at2, fin)

    def add_gather2(sc, at1, step):
        g = ones; pk = (negm[0], negm[1] + 8)
        tg, t0, t3 = R(v_t[4]), R(v_t[5]), R(negm, 12)
        def setup(p):
            p('v_lshlrev_b32 %s, 4, %s' % (tg, vid))
            p('v_lshlrev_b32 %s, 3, %s' % (t0, vid))
            for l in mksrd(p, 20, 'wr', 2048): p(l)
            p('buffer_load_dwordx2 %s, %s, s[20:23], 0 offen' % (R(pk, 2, 2), t0))
            p('v_add_u32 %s, 0x%x, %s' % (t0, L_MODS, t0))
        sc.place(at1 - 1, setup)
        for v in range(4):
            def ld(q, v=v):
                q('s_mov_b32 s26, 0x%x' % (Z_MODF + v * 4096))
                q('buffer_load_dwordx4 %s, %s, s[8:11], s26 offen sc1' % (R(g, 0, 4), tg))
            def ts(q):
                q('v_min3_u32 %s, %s, %s, %s' % (t3, R(g, 0), R(g, 1), R(g, 2)))
                q('v_min_u32 %s, %s, %s' % (t3, t3, R(g, 3)))
                q('v_cmp_eq_u32 vcc, 0, %s' % t3)
            def fin(p, v=v, ld=ld, ts=ts):
                ts(p)
                p('s_cbranch_vccz %s_mg%d' % (name, v))
                q = p.raw
                q('s_mov_b32 s27, 0')
                p.label('%s_mp%d' % (name, v))
                ld(q); q('s_waitcnt vmcnt(0)'); ts(q)
                q('s_add_u32 s27, s27, 1'); q('s_cmp_ge_u32 s27, %d' % SPIN_MAX); q('s_nop 4')
                q('s_cbranch_scc1 %s_mg%d' % (name, v))
                q('s_cbranch_vccnz %s_mp%d' % (name, v))
                p.label('%s_mg%d' % (name, v))
                if v == 0:
                    for i in range(4): p('v_and_b32 %s, 0xffff0000, %s' % (R(g, i), R(g, i)))
                    p('v_add_u32 %s, 0x%x, %s' % (t3, L_GA, tg))
                    p('ds_write_b128 %s, %s' % (t3, R(g, 0, 4)))
                    p('ds_write_b64 %s, %s offset:%d' % (t0, R(pk, 2, 2), 3 * 2048))
                else:
                    p('s_mov_b32 s26, 0x07060302')
                    for i in range(2): p('v_perm_b32 %s, %s, %s, s26' % (R(pk, i), R(g, 2 * i + 1), R(g, 2 * i)))
                    p('ds_write_b64 %s, %s offset:%d' % (t0, R(pk, 0, 2), (v - 1) * 2048))
                p('s_waitcnt lgkmcnt(0)')
            sc.place(at1 + v * step, ld)
            sc.place(at1 + v * step + step - 1, fin)

    S_KQ8, S_HD = 's62', 's63'
    v_wo, v_wo2 = v_wt[0], v_wt[1]
    S_ORD = 's42'
    def hd_of(t, dst):
        return ['s_bfe_u32 %s, %s, 0x%x' % (dst, S_ORD, (4 * t) | (3 << 16)), 's_or_b32 %s, %s, %s' % (dst, dst, S_KQ8)]
    def order_setup(p):
        p('s_and_b32 %s, s12, 24' % S_KQ8)
        p('s_and_b32 s19, s12, 7')
        if hord:
            p('s_lshl_b32 s20, s19, 2'); p('s_lshr_b32 s20, 0x54732160, s20'); p('s_and_b32 s20, s20, 7'); p('s_lshl_b32 s20, s20, 2')
            p('s_bfm_b32 s21, s20, 0')
            p('s_and_b32 s22, s21, 0x51764320'); p('s_lshl_b32 s22, s22, 4')
            p('s_lshl_b32 s21, s21, 4'); p('s_or_b32 s21, s21, 15'); p('s_andn2_b32 s21, 0x51764320, s21')
            p('s_or_b32 %s, s21, s22' % S_ORD); p('s_or_b32 %s, %s, s19' % (S_ORD, S_ORD))
        else:
            p('s_mul_i32 s20, s19, 0x11111111'); p('s_add_u32 s20, s20, 0x76543210'.replace('0x76543210', '0x76543210'))
            p('s_and_b32 %s, s20, 0x77777777' % S_ORD)
    def nb_of(dst):
        return ['s_add_u32 %s, s12, %d' % (dst, nbrot), 's_and_b32 %s, %s, 7' % (dst, dst)]
    def dma_wo(s):
        pieces = []
        for i in range(4):
            pieces.append([(l, None) for l in hd_of(s // 2, 's22')] +
                          [('s_lshl_b32 s22, s22, 18', None), ('s_add_u32 s22, s22, s16', None),
                           ('s_add_u32 s22, s22, 0x%x' % ((s % 2) * 64 * 2048 + i * 4 * 2048), None),
                           ('s_add_u32 m0, s17, 0x%x' % ((s % NS3) * 16384 + i * 1024), None),
                           ('buffer_load_dwordx4 %s, s[4:7], s22 offen lds' % R(v_wo2 if i % 2 else v_wo), 'wo%d' % s)])
        return pieces
    def setup_wo(p, A_=True):
        r_, g_, c_ = R(v_t[0]), R(v_t[1]), R(v_t[2])
        order_setup(p)
        for l in nb_of('s19'): p(l)
        p('s_lshl_b32 s19, s19, 8')
        p('s_add_u32 s4, s40, s19'); p('s_addc_u32 s5, s41, 0'); p('s_sub_u32 s6, 0x800000, s19'); p('s_mov_b32 s7, 0x20000')
        if A_: p('s_lshl_b32 s16, s3, 15')
        else:
            p('s_sub_u32 s19, s3, 4'); p('s_lshl_b32 s16, s19, 15'); p('s_lshl_b32 s17, s19, 12')
        p('v_bfe_u32 %s, %s, 2, 2' % (r_, lane)); p('v_lshrrev_b32 %s, 4, %s' % (g_, lane)); p('v_and_b32 %s, 3, %s' % (c_, lane))
        p('v_lshlrev_b32 %s, 6, %s' % (R(v_wo), g_)); p('v_lshl_add_u32 %s, %s, 4, %s' % (R(v_wo), c_, R(v_wo)))
        p('v_lshl_add_u32 %s, %s, 11, %s' % (R(v_wo), r_, R(v_wo)))
        p('v_xor_b32 %s, 32, %s' % (R(v_wo2), R(v_wo)))

    def phase1(role):
        A_ = role == 'A'
        p('s_barrier')
        p.stamp(7)
        wait_h(role)
        p.stamp(8)
        if dsplit and not A_:
            p('s_sub_u32 s19, s3, 4'); p('s_lshl_b32 s16, s19, 17'); p('s_lshl_b32 s17, s19, 12')
            p('s_lshl_b32 s19, s12, 8')
            p('s_add_u32 s4, s38, s19'); p('s_addc_u32 s5, s39, 0'); p('s_sub_u32 s6, 0x800000, s19'); p('s_mov_b32 s7, 0x20000')
        late = []
        for s in range(NH - 1):
            for t in range(4):
                for it, tag in hload(s, t):
                    if (fast0 and s >= 1) or s >= 2: late.append((it, tag))
                    else: p(it, tag)
        if AH1 > 2:
            p('v_add_u32 %s, 0x10000, %s' % (R(v_t[4]), R(v_tr))); p('v_add_u32 %s, 0x10000, %s' % (R(v_t[5]), R(v_tr2)))
        if A_:
            for s in range(wq_early, AH1 + 1):
                for it, tag in dma_wq(s):
                    if fast0: late.append((it, tag))
                    else: p(it, tag)
        elif stage == 1:
            setup_B()
        if A_ != (wqpos == 4): p.wait_tag('wq0')
        p('s_barrier')
        p.stamp(9)
        for f in range(D1):
            for x in trread(f): p(x)
        sc = Sched()
        k_ = 0
        for it, tag in late:
            sc.place(k_, it, tag)
            if it.startswith('buffer'): k_ += 2
        hnext = [4 * (NH - 1)]
        for f in range(256):
            s, t, dt = f // 16, (f // 4) % 4, f % 4
            T, n = (f // 8) % 2, f % 8
            for qs in range(2):
                d = R(acc[n // 2], (n % 2) * 8 + qs * 4, 4)
                idx = sc.mfma('v_mfma_f32_16x16x32_bf16 %s, %s, %s, %s' % (d, R(fr[f % NRA], 0, 4), R(H[s % NH][T * 2 + qs], 0, 4), '0' if f < 8 else d))
            g = f + D1
            if g < 256:
                if g % 16 == 0:
                    sn = g // 16
                    if dsplit or A_ != (wqpos == 4 and sn < wq_early): sc.place(idx, lambda p, sn=sn: p.wait_tag('wq%d' % sn))
                    sc.place(idx, 's_barrier')
                    if dsplit and sn + AH1 < 16:
                        nx = dma_wq(sn + AH1)
                        for k2, i in enumerate((0, 1) if A_ else (2, 3)):
                            for it, tag in nx[3 * i:3 * i + 3]: sc.place(idx + dsp[0] + (0 if A_ else dsp[1] // 2) + dsp[1] * 2 * k2, it, tag)
                    if A_:
                        if sn == 11: sc.place(idx + 1, kv_flag_loads)
                        if sn + 2 == 16: sc.place(idx, kv_flag_check)
                        nxt = ([] if dsplit else dma_wq(sn + AH1)) if sn + AH1 < 16 else (dma_kv(sn + 2 - 16) if sn + 2 >= 16 else [])
                        for i in range(4):
                            for it, tag in nxt[3 * i:3 * i + 3]: sc.place(idx + dsp[0] + dsp[1] * i, it, tag)
                tr = trread(g)
                if g % 16 != 0:
                    sc.place(idx - 1, tr[0]); sc.place(idx, tr[1])
                else:
                    for x in tr: sc.place(idx, x)
            if dt in hslots[0 if A_ else 1]:
                lim = min(64, (s + NH - 1) * 4 + t + 1)
                if hnext[0] < lim:
                    for it, tag in hload(hnext[0] // 4, hnext[0] % 4): sc.place(idx, it, tag)
                    hnext[0] += 1
            if A_ and s >= 14 and t >= 2:
                j = 2 + (s - 14) * 2 + (t - 2)
                for it, tag in dma_kv(j)[3 * dt:3 * dt + 3]: sc.place(idx, it, tag)
        if not A_: add_kv(sc)
        if not A_ and wqpf:
            va = R(v_wt[0]); vd = R(v_wt[1])
            def setup(p):
                p('s_sub_u32 s26, s3, 4'); p('s_lshl_b32 s26, s26, 3')
                p('v_add_u32 %s, s26, %s' % (va, lane))
                p('v_lshrrev_b32 %s, 4, %s' % (vd, va)); p('v_lshlrev_b32 %s, 13, %s' % (vd, vd))
                p('v_and_b32 %s, 15, %s' % (va, va)); p('v_lshl_add_u32 %s, %s, 7, %s' % (va, va, vd))
                p('s_lshr_b32 s26, s2, 3'); p('s_lshl_b32 s26, s26, 14'); p('s_and_b32 s27, s2, 3'); p('s_lshl_b32 s27, s27, 11'); p('s_add_u32 s26, s26, s27')
                p('v_add_u32 %s, s26, %s' % (va, va))
                p('v_cmp_gt_u32 vcc, 8, %s' % lane); p('v_bfrev_b32 %s, -2' % vd)
                p('v_cndmask_b32 %s, %s, %s, vcc' % (va, vd, va))
                for l in mksrd(p, QY, 'wq', 0x800000): p(l)
            sc.place(0, setup)
            first = AH1 + 1
            sts = list(range(first, 16))
            for k_, st_ in enumerate(sts):
                at = max(1 + 3 * k_, 32 * (st_ - AH1 - wqpf) + 7)
                sc.place(at, 's_mov_b32 s26, 0x%x' % (st_ * 64 * 8192))
                sc.place(at, 'buffer_load_dword %s, %s, %s, s26 offen' % (vd, va, SR(QY)), 'pf')
        sc.emit(p)
        p.stamp(10)
        p('s_mov_b32 s24, 0x%x' % f2u((128 ** -0.5) * math.log2(math.e)))
        for dt in range(4):
            for r in range(0, 16, 2):
                ta, tb = R(v_t[(r // 2 % 2) * 2]), R(v_t[(r // 2 % 2) * 2 + 1])
                dst = R(qf[((r // 4) % 2) * 4 + dt], (r // 8) * 2 + (r % 4) // 2)
                if kscale:
                    p('v_cvt_pk_bf16_f32 %s, %s, %s' % (dst, R(acc[dt], r), R(acc[dt], r + 1)))
                    continue
                p('v_mul_f32 %s, s24, %s' % (ta, R(acc[dt], r)))
                p('v_mul_f32 %s, s24, %s' % (tb, R(acc[dt], r + 1)))
                p('v_cvt_pk_bf16_f32 %s, %s, %s' % (dst, ta, tb))
        p('v_add_u32 %s, 0x10000, %s' % (R(v_l16b), R(v_l16)))
        p('v_add_u32 %s, 0x20000, %s' % (R(v_l16c), R(v_l16)))
        if stage == 2 and A_: setup_wo(p)

    v_l16b = v_wqoff; v_l16c = v_tr
    def kaddr(j, t): return KV_RING + (j % NKV) * 16384 + t * 1024
    def vaddr(j, n): return KV_RING + (j % NKV) * 16384 + 8192 + n * 1024
    def lds_read(dst, addr):
        if addr >= 0x20000: return 'ds_read_b128 %s, %s offset:%d' % (R(dst, 0, 4), R(v_l16c), addr - 0x20000)
        return 'ds_read_b128 %s, %s offset:%d' % (R(dst, 0, 4), R(v_l16b), addr - 0x10000)
    def softmax_ops(j, sub, first):
        ops = []
        s = S[j % 2]
        for r in range(0, 16, 2):
            a, qs = r // 8, (r // 4) % 2
            if sub:
                ops.append('v_add_f32 %s, %s, %s' % (R(s, r), R(s, r), R(negm, 4 * qs)))
                ops.append('v_add_f32 %s, %s, %s' % (R(s, r + 1), R(s, r + 1), R(negm, 4 * qs)))
            ops.append('v_exp_f32 %s, %s' % (R(s, r), R(s, r)))
            ops.append('v_exp_f32 %s, %s' % (R(s, r + 1), R(s, r + 1)))
            if first and r % 4 == 0 and a == 0:
                ops.append('v_add_f32 %s, %s, %s' % (R(v_l[qs]), R(s, r), R(s, r + 1)))
            else:
                ops.append('v_add_f32 %s, %s, %s' % (R(v_l[qs]), R(v_l[qs]), R(s, r)))
                ops.append('v_add_f32 %s, %s, %s' % (R(v_l[qs]), R(v_l[qs]), R(s, r + 1)))
            ops.append('v_cvt_pk_bf16_f32 %s, %s, %s' % (R(P[j % 2][qs], a * 2 + (r % 4) // 2), R(s, r), R(s, r + 1)))
        return ops
    def xl_red(m, m2, op):
        return ['v_mov_b32 %s, %s' % (m2, m), 'v_permlane16_swap_b32 %s, %s' % (m, m2), '%s %s, %s, %s' % (op, m, m, m2),
                'v_mov_b32 %s, %s' % (m2, m), 'v_permlane32_swap_b32 %s, %s' % (m, m2), '%s %s, %s, %s' % (op, m, m, m2)]
    def finish_max(ms, m2s):
        ops = []
        a, b = xl_red(ms[0], m2s[0], 'v_max_f32'), xl_red(ms[1], m2s[1], 'v_max_f32')
        for x, y in zip(a, b): ops += [x, y]
        for r in range(8): ops.append('v_sub_f32 %s, 0, %s' % (R(negm, r), ms[r // 4]))
        return ops
    def mf_k(j, i, f, cz):
        T, a = i // 2, i % 2
        out = []
        for qs in range(2):
            d = R(S[j % 2], (a * 2 + qs) * 4, 4)
            c = d if T > 0 else ('0' if cz else R(negm, 4 * qs, 4))
            out.append('v_mfma_f32_16x16x32_bf16 %s, %s, %s, %s' % (d, f, R(qf[qs * 4 + T], 0, 4), c))
        return out
    def mf_v(j, n, f, cz):
        out = []
        for qs in range(2):
            d = R(acc[n // 2], (n % 2) * 8 + qs * 4, 4)
            out.append('v_mfma_f32_16x16x32_bf16 %s, %s, %s, %s' % (d, f, R(P[j % 2][qs], 0, 4), '0' if cz else d))
        return out

    def phase2(role):
        seq = [('k', 0, t) for t in range(8)] + [('k', 1, t) for t in range(8)]
        marks = {}
        for j in range(1, 17):
            marks[j] = len(seq)
            if j + 1 < 16: seq += [('k', j + 1, t) for t in range(8)]
            seq += [('v', j - 1, i) for i in range(8)]
        marks[17] = len(seq)
        sc0 = Sched()
        for n, (k, j, i) in enumerate(seq):
            f = R(fr[n % NRA], 0, 4)
            for m_ in (mf_k(j, i, f, j < 2) if k == 'k' else mf_v(j, i, f, j == 0)): sc0.mfma(m_)
        class SC:
            def place(self, at, item, tag=None): sc0.place(2 * at + 1 if at >= 0 else -1, item, tag)
            def emit(self, p): sc0.emit(p)
        sc = SC()
        ready = set()
        for n, (k, j, i) in enumerate(seq):
            at = n - D2 if n - D2 >= 0 else -1
            if k == 'k' and j not in ready:
                ready.add(j)
                if j <= jb2:
                    if role == 'A': sc.place(at, lambda p, j=j: p.wait_tag(['kv%d' % q_ for q_ in (range(j, 16) if j == jb2 else [j])]))
                    sc.place(at, 's_barrier')
                if endprio and role == endprio[0] and j == endprio[1]: sc.place(at, 's_setprio 3')
                jn = j + KD
                assert jn >= 16 or j < jb2 or j < 6 - KD
                if role == 'A' and jn >= 6 and jn < 16:
                    nxt = dma_kv(jn)
                    for q in range(4):
                        for it, tag in nxt[3 * q:3 * q + 3]: sc.place(at + 1 + 2 * q, it, tag)
            sc.place(at, lds_read(fr[n % NRA], kaddr(j, i) if k == 'k' else vaddr(j, i)))
        ms, m2s = [R(v_t[0]), R(v_t[1])], [R(v_t[2]), R(v_t[3])]
        ops = []
        for qs in range(2):
            rg = [R(S[0], (a * 2 + qs) * 4 + k) for a in range(2) for k in range(4)]
            ops.append('v_max3_f32 %s, %s, %s, %s' % (ms[qs], rg[0], rg[1], rg[2]))
            for i in range(3, 7, 2): ops.append('v_max3_f32 %s, %s, %s, %s' % (ms[qs], ms[qs], rg[i], rg[i + 1]))
            ops.append('v_max_f32 %s, %s, %s' % (ms[qs], ms[qs], rg[7]))
        for i, o in enumerate(ops): sc0.place(22 + i, o)
        ops = []
        for qs in range(2):
            rg = [R(S[1], (a * 2 + qs) * 4 + k) for a in range(2) for k in range(4)]
            for i in range(0, 8, 2): ops.append('v_max3_f32 %s, %s, %s, %s' % (ms[qs], ms[qs], rg[i], rg[i + 1]))
        ops += finish_max(ms, m2s) + softmax_ops(0, True, True)
        for o in ops: sc.place(15, o)
        for j in range(1, 16):
            lo, hi = 2 * marks[j], 2 * marks[j + 1] - 1
            ops = softmax_ops(j, j < 2, False)
            nm = hi - lo + 1
            for i, o in enumerate(ops): sc0.place(lo + min(nm - 1, (i * nm) // len(ops)), o)
        if role == 'A' and stage == 2:
            if mlp2: add_gather2(sc, marks[12] + 4, 12)
            else: add_gather(sc, marks[g_at[0]], marks[g_at[1]])
            for s_ in range(3):
                for q_, pc in enumerate(dma_wo(s_)):
                    for it, tag in pc: sc.place(marks[wo_at + s_] + 5 + 2 * q_, it, tag)
        if role == 'B':
            if stage == 1:
                add_modcols(sc)
                add_wot(sc)
            else:
                add_modcols2(sc)
        if stage == 2 and apsent:
            def sent(p):
                z = (negm[0], negm[1] + 8)
                for i in range(4): p('v_mov_b32 %s, -1' % R(z, i))
                for l in nb_of('s19'): p(l)
                p('s_lshr_b32 s20, s12, 3'); p('s_lshl_b32 s20, s20, 22')
                p('s_lshl_b32 s26, s13, 3'); p('s_add_u32 s26, s26, s3'); p('s_lshl_b32 s26, s26, 16')
                p('s_add_u32 s20, s20, s26'); p('s_lshl_b32 s19, s19, 12'); p('s_add_u32 s20, s20, s19'); p('s_add_u32 s20, s20, 0x%x' % WS_AP4)
                p('s_add_u32 s21, s20, 0x8000')
                for qs in range(2):
                    for m in range(4):
                        p('buffer_store_dwordx4 %s, %s, s[8:11], %s offen offset:%d sc1' % (R(z, 0, 4), R(v_l16), 's21' if qs else 's20', m * 1024), 'sent')
            sc.place(apsent, sent)
        if stage == 2:
            A_ = role == 'A'
            lo, hi = wA_at if A_ else wB_at
            if mlp2:
                sc.place(lo - 1, wsetup2)
                wl = wloads2()
                for i, (a_, b_) in enumerate(wl):
                    at = lo + (i * (hi - lo)) // len(wl)
                    for l in a_: sc.place(at, l)
                    sc.place(at, b_)
            else:
                sc.place(lo - 1, lambda p: wsetup(p, A_))
                wl = wloads(A_)[:15]
                for i, (a_, b_) in enumerate(wl):
                    at = lo + (i * (hi - lo)) // len(wl)
                    sc.place(at, a_); sc.place(at, b_)
        if role == 'B':
            def pfsetup(p):
                p('s_lshl_b32 s27, s2, 12')
                p('v_lshrrev_b32 %s, 6, %s' % (R(v_pf), vid))
                p('v_lshlrev_b32 %s, 10, %s' % (R(v_pf), R(v_pf)))
                p('v_lshl_add_u32 %s, %s, 7, %s' % (R(v_pf), lane, R(v_pf)))
                p('v_add_u32 %s, s27, %s' % (R(v_pf), R(v_pf)))
                p('v_cmp_gt_u32 vcc, 8, %s' % lane)
                p('v_bfrev_b32 %s, -2' % R(v_pfd))
                p('v_cndmask_b32 %s, %s, %s, vcc' % (R(v_pf), R(v_pfd), R(v_pf)))
            if pf_list: sc.place(2, pfsetup)
            if wopf is not None:
                va = R(v_wt[0]); vd = R(v_wt[1])
                def wopf_setup(p):
                    p('s_and_b32 s26, s12, 24'); p('s_lshl_b32 s26, s26, 18')
                    p('s_lshr_b32 s27, s2, 3'); p('s_lshl_b32 s27, s27, 16'); p('s_add_u32 s26, s26, s27')
                    p('v_lshrrev_b32 %s, 6, %s' % (va, vid)); p('v_lshlrev_b32 %s, 10, %s' % (va, va))
                    p('v_lshl_add_u32 %s, %s, 7, %s' % (va, lane, va)); p('v_add_u32 %s, s26, %s' % (va, va))
                    p('v_cmp_gt_u32 vcc, 8, %s' % lane); p('v_bfrev_b32 %s, -2' % vd)
                    p('v_cndmask_b32 %s, %s, %s, vcc' % (va, vd, va))
                sc.place(wopf[0] - 1, wopf_setup)
                for n_ in range(16):
                    at = wopf[0] + (n_ * (wopf[1] - wopf[0])) // 16
                    for l in mksrd(p, 20, 'wo', 0x800000): sc.place(at, l)
                    sc.place(at, 's_mov_b32 s26, 0x%x' % (n_ * 4096))
                    sc.place(at, 'buffer_load_dword %s, %s, s[20:23], s26 offen' % (vd, va), 'pf')
            items = [(b, i * 0x100000) for b in pf_list for i in range(7)]
            lo, hi = marks[max(1, pf_lo)], marks[pf_hi]
            last = None
            for i, (b, off) in enumerate(items):
                at = lo + (i * (hi - lo)) // len(items)
                if b != last:
                    for l in mksrd(p, QX, b, 7340032): sc.place(at, l)
                    last = b
                sc.place(at, 's_mov_b32 s26, 0x%x' % off)
                sc.place(at, 'buffer_load_dword %s, %s, %s, s26 offen' % (R(v_pfd), R(v_pf), SR(QX)), 'pf')
        sc.emit(p)


    pool3 = [S[0], S[1], Pb, (qf[0][0], qf[0][1])]
    H3 = [[(b_[0], b_[1] + 4 * t) for t in range(4)] for b_ in pool3]
    v_tr3, v_tr3b, v_oo = v_tr, v_wqoff, v_hoff
    def mlp_ids(strip, mt, kh, cb, kb):
        p('s_bfe_u32 %s, s2, 0x10002' % strip); p('s_mul_i32 %s, %s, 28' % (strip, strip)); p('s_lshr_b32 s26, s2, 3'); p('s_add_u32 %s, %s, s26' % (strip, strip))
        p('s_and_b32 %s, s2, 1' % mt)
        p('s_bfe_u32 %s, s2, 0x10001' % kh)
        p('s_bfe_u32 %s, s2, 0x40003' % cb)
        p('s_and_b32 %s, s2, 7' % kb); p('s_lshl_b32 %s, %s, 1' % (kb, kb)); p('s_lshr_b32 s26, s2, 7'); p('s_add_u32 %s, %s, s26' % (kb, kb))
    T_STRIP, T_MT, T_KH, T_CB, T_KB, T_WIN = 's96', 's97', 's98', 's99', 's100', 's101'
    def oload(s, t):
        return [('s_add_u32 s23, s21, 0x%x' % (WS_O + (t % 2) * O_STRIDE + (s % 2) * 2048), None),
                ('buffer_load_dwordx4 %s, %s, s[8:11], s23 offen offset:%d sc1' % (R(H3[(s - 2) % len(H3)][t], 0, 4), R(v_oo), (t // 2) * 1024), None)]
    def ohead(s):
        return [(l, None) for l in hd_of(s // 2, 's21')] + [('s_lshl_b32 s21, s21, 12', None)]
    def phase3(role):
        A_ = role == 'A'
        t0, t1, t2, t3 = [R(v_t[i]) for i in range(4)]
        p('v_bfe_u32 %s, %s, 2, 2' % (t0, lane)); p('v_lshrrev_b32 %s, 4, %s' % (t1, lane)); p('v_and_b32 %s, 3, %s' % (t2, lane))
        p('v_lshlrev_b32 %s, 10, %s' % (R(v_tr3), t1))
        p('v_lshl_add_u32 %s, %s, 6, %s' % (R(v_tr3), t0, R(v_tr3)))
        p('v_lshl_add_u32 %s, %s, 3, %s' % (R(v_tr3), t2, R(v_tr3)))
        p('v_bfe_u32 %s, %s, 4, 1' % (t3, lane)); p('v_lshlrev_b32 %s, 5, %s' % (t3, t3))
        p('v_sub_u32 %s, %s, %s' % (R(v_tr3b), R(v_tr3), t3))
        p('v_add_u32 %s, %s, %s' % (R(v_tr3), R(v_tr3), t3))
        p('s_lshl_b32 s19, s13, 3'); p('s_add_u32 s19, s19, s3'); p('s_mul_i32 s19, s19, %d' % (2 * O_STRIDE))
        p('v_add_u32 %s, s19, %s' % (R(v_oo), R(v_l16)))
        if dsplit and not A_: setup_wo(p, False)
        order_setup(p)
        mlp_ids(T_STRIP, T_MT, T_KH, T_CB, T_KB)
        def publish(p):
            p('s_lshl_b32 s26, s13, 3'); p('s_add_u32 s26, s26, s3'); p('s_lshl_b32 s26, s26, 2'); p('s_lshr_b32 s27, s12, 3'); p('s_add_u32 s26, s26, s27')
            fo = 7 if 'o' in fl128 else 2
            p('s_lshl_b32 s26, s26, %d' % (10 if fo == 7 else 7)); p('s_add_u32 s20, s26, 0x%x' % (WS_OF2 if fo == 7 else WS_OF))
            p('s_and_b32 s27, s12, 7'); p('s_lshl_b32 s27, s27, %d' % fo); p('s_add_u32 s26, s20, s27')
            p('v_mov_b32 %s, s14' % t0); p('v_mov_b32 %s, 0' % t1)
            p.wait_tag('ost')
            p('s_mov_b64 exec, 1')
            p('buffer_store_dword %s, %s, s[8:11], s26 offen sc1' % (t0, t1))
            p('s_mov_b64 exec, -1')
            p.stamp(14)
        tga, tst = R(v_t[4]), R(v_t[5])
        p('v_lshrrev_b32 %s, 4, %s' % (t0, lane)); p('v_lshlrev_b32 %s, 4, %s' % (tga, t0))
        for l in nb_of('s19'): p(l)
        p('s_lshl_b32 s26, s19, 9'); p('s_add_u32 s26, s26, 0x%x' % L_GA)
        p('v_add_u32 %s, s26, %s' % (tga, tga))
        p('v_and_b32 %s, 15, %s' % (tst, lane)); p('v_lshlrev_b32 %s, 6, %s' % (tst, tst)); p('v_lshl_add_u32 %s, %s, 4, %s' % (tst, t0, tst))
        if aplin: p('v_mov_b32 %s, %s' % (tst, R(v_l16)))
        p('s_lshr_b32 s18, s12, 3'); p('s_lshl_b32 s18, s18, 22')
        p('s_lshl_b32 s26, s13, 3'); p('s_add_u32 s26, s26, s3'); p('s_lshl_b32 s26, s26, 16')
        p('s_add_u32 s18, s18, s26'); p('s_lshl_b32 s19, s19, 12'); p('s_add_u32 s18, s18, s19'); p('s_add_u32 s18, s18, 0x%x' % WS_AP4)
        p('s_add_u32 s19, s18, 0x8000')
        p('v_add_u32 %s, 0x10000, %s' % (R(v_l[0]), R(v_tr3))); p('v_add_u32 %s, 0x10000, %s' % (R(v_l[1]), R(v_tr3b)))
        p.stamp(13)
        if oflag < 0: publish(p)
        if A_: p.wait_tag('wo0')
        p('s_waitcnt lgkmcnt(0)')
        p('s_barrier')
        frs = [(s, T, n) for s in range(16 - NL) for T in range(2) for n in range(8)]
        frs += [(s, T, 2 * m + b) for m in range(4) for s in range(16 - NL, 16) for T in range(2) for b in range(2)]
        def rd(f):
            s, T, n = frs[f]
            r = fr[f % NRA]
            base = (s % NS3) * 16384 + T * 8192 + (n // 2) * 256 + (n % 2) * 32
            va = R([v_tr3, v_tr3b][n % 2]) if base < 65536 else R(v_l[n % 2])
            base %= 65536
            return ['ds_read_b64_tr_b16 %s, %s offset:%d' % (R(r, 0, 2), va, base),
                    'ds_read_b64_tr_b16 %s, %s offset:%d' % (R(r, 2, 2), va, base + 4096)]
        for f in range(D1):
            for x in rd(f): p(x)
        sc = Sched()
        if A_:
            for s_ in range(3, AH3 + 1):
                for i, pc in enumerate(dma_wo(s_)):
                    for it, tag in pc: sc.place(1 + 12 * (s_ - 3) + 3 * i, it, tag)
        NP = len(H3)
        hnext = [8 + 12]
        def wait_o(p):
            p('v_and_b32 %s, 7, %s' % (t0, lane)); p('v_lshlrev_b32 %s, %d, %s' % (t0, 7 if 'o' in fl128 else 2, t0))
            def ts():
                p('v_cmp_ne_u32 vcc, s14, %s' % t1)
                if hord: p('s_and_b32 vcc_lo, vcc_lo, 0xdd'); p('s_mov_b32 vcc_hi, 0')
            poll('o' + role, lambda: p('buffer_load_dword %s, %s, s[8:11], s20 offen sc1' % (t1, t0)), ts, tsleep)
            p.stamp(15)
            for s_ in range(2, 5):
                if s_ % 2 == 0:
                    for it, tag in ohead(s_): p(it, tag)
                for t in range(4):
                    for it, tag in oload(s_, t): p(it, tag)
        gav = (qf[4][0], qf[4][1]); u = (qf[4][0], qf[4][1] + 8)
        def epi(m):
            ops = []
            for qs in range(2):
                for b in range(2):
                    for k in range(0, 4, 2):
                        ops.append('v_pk_mul_f32 %s, %s, %s' % (R(u, 4 * b + k, 2), R(acc[m], b * 8 + qs * 4 + k, 2), R(gav, 4 * b + k, 2)))
                for d in range(4): ops.append('v_cvt_pk_bf16_f32 %s, %s, %s' % (R(u, d), R(u, 2 * d), R(u, 2 * d + 1)))
                for i in range(2): ops.append('v_permlane32_swap_b32 %s, %s' % (R(u, i), R(u, 2 + i)))
                for i in range(2): ops.append('v_permlane16_swap_b32 %s, %s' % (R(u, i), R(u, 2 + i)))
                ops.append(('buffer_store_dwordx4 %s, %s, s[8:11], %s offen offset:%d %s' % (R(u, 0, 4), tst, 's19' if qs else 's18', m * 1024, apmod), 'ap'))
            return ops
        def gard(m): return ['ds_read_b128 %s, %s offset:%d' % (R(gav, 4 * b, 4), tga, (2 * m + b) * 64) for b in range(2)]
        first = {}
        for f, (s, T, n) in enumerate(frs): first.setdefault(s, f)
        SB3 = min(15, 16 - NL) if sb3 is None else sb3
        assert SB3 + AH3 >= 16 + (0 if sb3 is None else 1) or sb3 is None
        bars = {first[s]: s for s in range(1, SB3 + 1)}
        seen = set()
        F0 = first[16 - NL] if NL else 256
        GL = NL * 4
        for f, (s, T, n) in enumerate(frs):
            for qs in range(2):
                d = R(acc[n // 2], (n % 2) * 8 + qs * 4, 4)
                bop = R(qf[qs * 4 + 2 * s + T], 0, 4) if s < 2 else R(H3[(s - 2) % NP][T * 2 + qs], 0, 4)
                cz = (n, qs) not in seen; seen.add((n, qs))
                idx = sc.mfma('v_mfma_f32_16x16x32_bf16 %s, %s, %s, %s' % (d, R(fr[f % NRA], 0, 4), bop, '0' if cz else d))
            g = f + D1
            if g < 256:
                if g in bars:
                    sn = bars[g]
                    last = (sn == SB3)
                    if A_ or dsplit: sc.place(idx, lambda p, sn=sn, last=last: p.wait_tag(['wo%d' % k for k in (range(sn, 16) if last else [sn])]))
                    sc.place(idx, 's_barrier')
                    if last and prio3 and A_: sc.place(idx, 's_setprio 3')
                    if dsplit and sn + AH3 < 16:
                        pcs = dma_wo(sn + AH3)
                        for k2, i in enumerate((0, 1) if A_ else (2, 3)):
                            for it, tag in pcs[i]: sc.place(idx + dsp[0] + (0 if A_ else dsp[1] // 2) + dsp[1] * 2 * k2, it, tag)
                    elif A_ and sn + AH3 < 16:
                        for i, pc in enumerate(dma_wo(sn + AH3)):
                            for it, tag in pc: sc.place(idx + dsp[0] + dsp[1] * i, it, tag)
                tr = rd(g)
                if g not in bars:
                    sc.place(idx - 1, tr[0]); sc.place(idx, tr[1])
                else:
                    for x in tr: sc.place(idx, x)
            if f < F0 and n % 4 in hslots[0 if A_ else 1] and s >= 2:
                t = (T * 8 + n) // 4
                lim = min(60 if NL == 4 else 64, (s + LA3) * 4 + t + 1)
                if hnext[0] < lim:
                    sn_, tn_ = hnext[0] // 4, hnext[0] % 4
                    if tn_ == 0 and sn_ % 2 == 0:
                        for it, tag in ohead(sn_): sc.place(idx, it, tag)
                    for it, tag in oload(sn_, tn_): sc.place(idx, it, tag)
                    hnext[0] += 1
            if NL == 4 and F0 <= f < F0 + 4:
                for it, tag in oload(15, f - F0): sc.place(idx, it, tag)
                hnext[0] += 1
            if NL and f >= F0:
                m, k = (f - F0) // GL, (f - F0) % GL
                if k == GL - 3:
                    pass
                if k == 0 and m > 0:
                    ops = epi(m - 1)
                    nm = 2 * GL - 6
                    for i, o in enumerate(ops):
                        at = idx + 3 + (i * nm) // len(ops)
                        if isinstance(o, tuple): sc.place(at, o[0], o[1])
                        else: sc.place(at, o)
                if k == GL - 1 and m < 3:
                    for x in gard(m): sc.place(idx, x)
        assert hnext[0] == 64, hnext
        if hord:
            def chk2(p):
                p('v_cmp_ne_u32 vcc, s14, %s' % t1)
                p('s_cbranch_vccz %s_o2g%s' % (name, role))
                q = p.raw
                q('s_mov_b32 s27, 0')
                p.label('%s_o2p%s' % (name, role))
                q('buffer_load_dword %s, %s, s[8:11], s20 offen sc1' % (t1, t0)); q('s_waitcnt vmcnt(0)')
                q('v_cmp_ne_u32 vcc, s14, %s' % t1)
                q('s_add_u32 s27, s27, 1'); q('s_cmp_ge_u32 s27, %d' % SPIN_MAX); q('s_nop 4')
                q('s_cbranch_scc1 %s_o2g%s' % (name, role))
                q('s_cbranch_vccnz %s_o2p%s' % (name, role))
                p.label('%s_o2g%s' % (name, role))
            s2 = 12 - LA3
            sc.place(32 * (s2 - 2) + 5, 'buffer_load_dword %s, %s, s[8:11], s20 offen sc1' % (t1, t0))
            sc.place(32 * s2 - 1, chk2)
        if not A_:
            pass
        if wbl and not A_:
            for k_, at in enumerate(wbl):
                def wb(p, k_=k_):
                    p('s_lshr_b32 s26, s2, 3'); p('s_lshl_b32 s26, s26, 3'); p('s_add_u32 s26, s26, s3')
                    p('s_cmp_lg_u32 s26, %d' % (7 + 8 * wbslot))
                    p('s_cbranch_scc1 %s_nwb%d' % (name, k_))
                    p.raw('buffer_wbl2 sc1')
                    p.label('%s_nwb%d' % (name, k_))
                sc.place(at, wb)
        if oflag >= 0: sc.place(oflag, publish)
        sc.place(opoll, wait_o)
        sc.emit(p)
        p.stamp(0)
        if prio3 and A_: p('s_setprio 0')
        for m in (range(4) if NL == 0 else [3]):
            for x in gard(m): p(x)
            for o in epi(m):
                if isinstance(o, tuple): p(o[0], o[1])
                else: p(o)

    def phase3_and_tail():
        p('s_cmp_ge_u32 s3, 4')
        p('s_cbranch_scc1 %s_p3B' % name)
        p.alt_begin()
        phase3('A')
        p('s_branch %s_p3e' % name)
        p.alt_next()
        p.label('%s_p3B' % name)
        phase3('B')
        p.alt_end()
        p.label('%s_p3e' % name)
        tail2() if mlp2 else tail()

    def tail2():
        G = RA('v', BASE, 156)
        gr = G.alloc(4, 4); xf = G.alloc(16, 4); raw = G.alloc(32, 4); mods = G.alloc(32, 4); uf = G.alloc(16, 4)
        x = G.alloc(8, 4); u8 = G.alloc(8, 4); ac = G.alloc(16, 4)
        assert G.n <= S[1][1], G.n
        fin = (S[1][0], S[1][1]); sl = (S[1][0], S[1][1] + 8); yp = (Pb[0], Pb[1])
        free = [v_wqoff, v_tr, v_hoff, v_kvoff, v_pf, v_pfd, v_t[2], v_t[3], v_l[0], v_l[1], v_wt[0], v_wt[1], v_wt[2]]
        t = dict(enumerate(free))
        zero, v_w, v_tf = R(t[10]), R(t[11]), R(t[12])
        MSB, MC1, MGB, MWR = 0, 8, 16, 24
        MODS = L_MODS
        T_ROW, T_ROFF, T_WOFF = 's16', 's17', 's62'
        L_XS, L_X2S, L_GU, L_YR = 1024, 5120, 9216, 10240
        p.stamp(8)
        p('s_lshl_b32 s26, s13, 3'); p('s_add_u32 s26, s26, s3'); p('s_lshl_b32 s26, s26, 7'); p('s_lshl_b32 s27, s12, 2'); p('s_add_u32 s26, s26, s27')
        p('s_add_u32 s26, s26, 0x%x' % WS_AF)
        p('v_mov_b32 %s, s14' % R(t[6])); p('v_mov_b32 %s, 0' % zero)
        p('v_mov_b32 %s, s3' % v_w)
        p('v_lshl_add_u32 %s, %s, 6, %s' % (v_tf, v_w, lane))
        p('s_lshl_b32 %s, s13, 8' % T_ROW); p('s_lshl_b32 s27, s12, 3'); p('s_add_u32 %s, %s, s27' % (T_ROW, T_ROW)); p('s_add_u32 %s, %s, s3' % (T_ROW, T_ROW))
        p('s_lshl_b32 %s, %s, 11' % (T_ROFF, T_ROW))
        for l in mksrd(p, QZ, 'x', 4194304): p(l)
        for l in mksrd(p, QX, 'out', 4194304): p(l)
        p('v_add_u32 %s, 0x%x, %s' % (R(t[9]), MODS, R(v_l16)))
        for i in range(8): p('ds_read_b128 %s, %s offset:%d' % (R(mods, 4 * i, 4), R(t[9]), i * 1024))
        p.wait_tag('ap')
        p('s_mov_b64 exec, 1')
        p('buffer_store_dword %s, %s, s[8:11], s26 offen sc1' % (R(t[6]), zero))
        p('s_mov_b64 exec, -1')
        p.stamp(1)
        for hf in range(2):
            p('buffer_load_dwordx4 %s, %s, %s, %s offen offset:%d' % (R(x, 4 * hf, 4), R(v_l16), SR(QZ), T_ROFF, hf * 1024))
        a0, a1, b0_, b1_ = R(u8, 0), R(u8, 1), R(u8, 2), R(u8, 3)
        a01, b01 = R(u8, 0, 2), R(u8, 2, 2)
        b0v, usum = R(fin, 2), R(fin, 3)
        p('v_mov_b32 %s, 0' % b0v); p('v_mov_b32 %s, 0' % usum)
        for d in range(8):
            unpack(p, a0, a1, R(mods, MC1 + d)); unpack(p, b0_, b1_, R(mods, MWR + d))
            p('v_pk_mul_f32 %s, %s, %s' % (R(uf, 2 * d, 2), a01, b01))
            unpack(p, a0, a1, R(mods, MSB + d))
            p('v_fmac_f32 %s, %s, %s' % (b0v, a0, b0_)); p('v_fmac_f32 %s, %s, %s' % (b0v, a1, b1_))
            p('v_add_f32 %s, %s, %s' % (usum, usum, R(uf, 2 * d))); p('v_add_f32 %s, %s, %s' % (usum, usum, R(uf, 2 * d + 1)))
        for n in (1, 2, 4, 8):
            ror_add(p, b0v, n); ror_add(p, usum, n)
        xor16_add(p, b0v, a0); xor16_add(p, usum, a1); xor32_add(p, b0v, a0); xor32_add(p, usum, a1)
        p('v_lshlrev_b32 %s, 2, %s' % (R(t[4]), v_tf))
        p('v_add_u32 %s, 0x%x, %s' % (R(t[7]), MODS, R(t[4])))
        p('ds_read_b32 %s, %s offset:2048' % (R(sl, 4), R(t[7])))
        p('ds_read_b32 %s, %s' % (R(sl, 6), R(t[7])))
        unpack(p, R(sl, 4), R(sl, 5), R(sl, 4)); unpack(p, R(sl, 6), R(sl, 7), R(sl, 6))
        for d in range(8): unpack(p, R(xf, 2 * d), R(xf, 2 * d + 1), R(x, d))
        def aprow(dst, row):
            p('s_lshr_b32 %s, %s, 4' % (dst, row)); p('s_lshl_b32 %s, %s, 15' % (dst, dst))
            p('s_and_b32 s27, %s, 15' % row); p('s_lshl_b32 s27, s27, 6'); p('s_add_u32 %s, %s, s27' % (dst, dst))
            p('s_add_u32 %s, %s, 0x%x' % (dst, dst, WS_AP4))
        aprow('s24', T_ROW)
        p('v_lshrrev_b32 %s, 2, %s' % (R(t[1]), lane)); p('v_lshlrev_b32 %s, 10, %s' % (R(t[1]), R(t[1])))
        p('v_and_b32 %s, 3, %s' % (R(t[0]), lane)); p('v_lshl_add_u32 %s, %s, 4, %s' % (R(t[1]), R(t[0]), R(t[1])))
        p('v_lshrrev_b32 %s, 4, %s' % (R(t[8]), v_tf)); p('v_lshlrev_b32 %s, 10, %s' % (R(t[8]), R(t[8])))
        p('v_and_b32 %s, 15, %s' % (R(t[0]), v_tf)); p('v_lshl_add_u32 %s, %s, 2, %s' % (R(t[8]), R(t[0]), R(t[8])))
        p('v_and_b32 %s, 31, %s' % (R(t[7]), lane))
        p('v_lshlrev_b32 %s, 2, %s' % (R(t[7]), R(t[7])))
        p('s_lshl_b32 s22, s13, 3'); p('s_lshr_b32 s23, s12, 2'); p('s_add_u32 s22, s22, s23'); p('s_lshl_b32 s22, s22, 7'); p('s_add_u32 s22, s22, 0x%x' % WS_AF)
        p.stamp(10)
        poll('r', lambda: p('buffer_load_dword %s, %s, s[8:11], s22 offen sc1' % (a0, R(t[7]))),
             lambda: p('v_cmp_ne_u32 vcc, s14, %s' % a0), tsleep)
        p.stamp(2)
        for hf in range(2):
            for k in range(4):
                p('s_add_u32 s25, s24, 0x%x' % (k * 0x400000 + hf * 16384))
                p('buffer_load_dwordx4 %s, %s, s[8:11], s25 offen sc1' % (R(raw, 8 * k + 4 * hf, 4), R(t[1])))
        for d in range(8):
            k = (d % 2) * 4
            A0, A1, B0_, B1 = [R(u8, k + i) for i in range(4)]
            tt = R(t[5 + (d % 2)])
            unpack(p, A0, A1, R(raw, d)); unpack(p, B0_, B1, R(raw, 8 + d))
            p('v_pk_add_f32 %s, %s, %s' % (R(u8, k, 2), R(u8, k, 2), R(u8, k + 2, 2)))
            unpack(p, B0_, B1, R(raw, 16 + d))
            p('v_pk_add_f32 %s, %s, %s' % (R(u8, k, 2), R(u8, k, 2), R(u8, k + 2, 2)))
            unpack(p, B0_, B1, R(raw, 24 + d))
            p('v_pk_add_f32 %s, %s, %s' % (R(u8, k, 2), R(u8, k, 2), R(u8, k + 2, 2)))
            p('v_pk_add_f32 %s, %s, %s' % (R(xf, 2 * d, 2), R(xf, 2 * d, 2), R(u8, k, 2)))
            rb2(p, R(xf, 2 * d), R(xf, 2 * d + 1), tt)
        p.stamp(13)
        mean, var, s3v, rcp = R(fin, 4), R(fin, 5), R(fin, 6), R(fin, 7)
        p('v_readfirstlane_b32 s25, %s' % R(xf, 0))
        p('v_mov_b32 %s, s25' % R(fin, 0))
        for d in range(8): p('v_pk_add_f32 %s, %s, %s op_sel_hi:[1,0] neg_lo:[0,1] neg_hi:[0,1]' % (R(raw, 2 * d, 2), R(xf, 2 * d, 2), R(fin, 0, 2)))
        c01 = R(u8, 4, 2)
        p('v_pk_add_f32 %s, %s, %s' % (c01, R(raw, 0, 2), R(raw, 2, 2)))
        p('v_pk_mul_f32 %s, %s, %s' % (a01, R(raw, 0, 2), R(raw, 0, 2)))
        p('v_pk_mul_f32 %s, %s, %s' % (b01, R(raw, 0, 2), R(uf, 0, 2)))
        for d in range(1, 8):
            if d >= 2: p('v_pk_add_f32 %s, %s, %s' % (c01, c01, R(raw, 2 * d, 2)))
            p('v_pk_fma_f32 %s, %s, %s, %s' % (a01, R(raw, 2 * d, 2), R(raw, 2 * d, 2), a01))
            p('v_pk_fma_f32 %s, %s, %s, %s' % (b01, R(raw, 2 * d, 2), R(uf, 2 * d, 2), b01))
        p('v_add_f32 %s, %s, %s' % (mean, R(u8, 4), R(u8, 5)))
        p('v_add_f32 %s, %s, %s' % (var, a0, a1)); p('v_add_f32 %s, %s, %s' % (s3v, b0_, b1_))
        for n in (1, 2, 4, 8):
            ror_add(p, mean, n); ror_add(p, var, n); ror_add(p, s3v, n)
        xor16_add(p, mean, a0); xor16_add(p, var, a1); xor16_add(p, s3v, b0_)
        xor32_add(p, mean, a0); xor32_add(p, var, a1); xor32_add(p, s3v, b0_)
        p('v_mul_f32 %s, 0x%x, %s' % (mean, f2u(1.0 / 1024), mean))
        p('v_mul_f32 %s, 0x%x, %s' % (var, f2u(1.0 / 1024), var))
        p('v_fma_f32 %s, -%s, %s, %s' % (var, mean, mean, var))
        p('v_max_f32 %s, 0, %s' % (var, var))
        p('v_fma_f32 %s, -%s, %s, %s' % (s3v, mean, usum, s3v))
        p('v_add_f32 %s, s25, %s' % (mean, mean))
        p('v_add_f32 %s, 0x%x, %s' % (a0, f2u(1e-5), var))
        p('v_rsq_f32 %s, %s' % (a0, a0))
        p('v_fma_f32 %s, %s, %s, %s' % (R(gr, 3), s3v, a0, b0v))
        sd = s3v
        ln_scalars(p, mean, var, sd, rcp)
        p('v_mov_b32 %s, %s' % (R(gr, 1), mean))
        p('v_mov_b32 %s, %s' % (R(gr, 2), sd))
        p('v_ashrrev_i32 %s, 31, %s' % (R(t[6]), R(gr, 3)))
        p('v_or_b32 %s, 0x80000000, %s' % (R(t[6]), R(t[6])))
        p('v_xor_b32 %s, %s, %s' % (R(gr, 0), R(gr, 3), R(t[6])))
        p('v_and_b32 %s, 0xfffff800, %s' % (R(gr, 0), R(gr, 0)))
        p('v_max_u32 %s, 0x800, %s' % (R(gr, 0), R(gr, 0)))
        p('s_sub_u32 s24, 2047, %s' % T_ROW)
        p('v_or_b32 %s, s24, %s' % (R(gr, 0), R(gr, 0)))
        p('v_lshlrev_b32 %s, 4, %s' % (R(t[7]), v_w))
        p('ds_write_b128 %s, %s' % (R(t[7]), R(gr, 0, 4)))
        p('s_waitcnt lgkmcnt(0)')
        p('s_barrier')
        def best_of(ldsoff, n=8):
            p('v_and_b32 %s, %d, %s' % (R(t[7]), n - 1, lane))
            p('v_lshlrev_b32 %s, 4, %s' % (R(t[7]), R(t[7])))
            p('ds_read_b32 %s, %s offset:%d' % (R(u8, 0), R(t[7]), ldsoff))
            p('v_mov_b32 %s, %s' % (R(u8, 1), R(u8, 0)))
            for k in ((1, 2, 4) if n == 8 else (1, 2)): ror_add(p, R(u8, 1), k, 'v_max_u32')
            p('v_cmp_eq_u32 vcc, %s, %s' % (R(u8, 0), R(u8, 1)))
            p('s_ff1_i32_b64 s26, vcc')
            p('s_lshl_b32 s26, s26, 4')
            p('v_mov_b32 %s, s26' % R(t[7]))
            p('ds_read_b128 %s, %s offset:%d' % (R(gr, 0, 4), R(t[7]), ldsoff))
        p('s_cmp_lg_u32 s3, 0')
        p('s_cbranch_scc1 %s_nk' % name)
        best_of(0)
        p('s_lshl_b32 s24, s2, 4')
        p('s_add_u32 s24, s24, 0x%x' % Z_KEY)
        p('s_mov_b64 exec, 1')
        p('buffer_store_dwordx4 %s, %s, s[8:11], s24 offen sc1' % (R(gr, 0, 4), zero))
        p('s_mov_b64 exec, -1')
        p.label('%s_nk' % name)
        p('s_waitcnt lgkmcnt(0)')
        p.stamp(3)
        def out_rows():
            for hf in range(2):
                X = [R(raw, i) for i in range(8)]
                c1 = [R(raw, 8 + i) for i in range(8)]
                for i in range(8): p('v_sub_f32 %s, %s, %s' % (X[i], R(xf, 8 * hf + i), mean))
                for i in range(0, 8, 2): rb2(p, X[i], X[i + 1], R(t[6]))
                for i in range(8): p('v_mul_f32 %s, %s, %s' % (X[i], X[i], rcp))
                for i in range(0, 8, 2): rb2(p, X[i], X[i + 1], R(t[6]))
                for op, mo_ in (('v_pk_mul_f32', MC1), ('v_pk_add_f32', MSB), ('v_pk_mul_f32', MGB)):
                    for d in range(4): unpack(p, c1[2 * d], c1[2 * d + 1], R(mods, mo_ + 4 * hf + d))
                    for d in range(4): p('%s %s, %s, %s' % (op, R(raw, 2 * d, 2), R(raw, 2 * d, 2), R(raw, 8 + 2 * d, 2)))
                    for i in range(0, 8, 2): rb2(p, X[i], X[i + 1], R(t[6]))
                for d in range(4): p('v_pk_add_f32 %s, %s, %s' % (R(raw, 2 * d, 2), R(raw, 2 * d, 2), R(xf, 8 * hf + 2 * d, 2)))
                for d in range(4): p('v_cvt_pk_bf16_f32 %s, %s, %s' % (R(raw, 16 + 4 * hf + d), X[2 * d], X[2 * d + 1]))
        def out_store():
            p('s_cmp_lg_u32 %s, %s' % (T_WIN, T_ROW)); p('s_cselect_b32 s23, %s, 0x7ffffff0' % T_ROFF)
            for hf in range(2):
                p('buffer_store_dwordx4 %s, %s, %s, s23 offen offset:%d sc1' % (R(raw, 16 + 4 * hf, 4), R(v_l16), SR(QX), hf * 1024))
        p('s_cmp_lt_u32 s3, 4')
        p('s_cbranch_scc1 %s_kA' % name)
        p.alt_begin()
        p('v_lshlrev_b32 %s, 4, %s' % (R(t[7]), vid))
        p('s_mov_b32 s26, 0x%x' % Z_KEY)
        poll('w', lambda: p('buffer_load_dwordx4 %s, %s, s[8:11], s26 offen sc1' % (R(gr, 0, 4), R(t[7]))),
             lambda: p('v_cmp_eq_u32 vcc, 0, %s' % R(gr, 0)), tsleep)
        p('v_mov_b32 %s, %s' % (R(u8, 0), R(gr, 0)))
        for n in (1, 2, 4, 8): ror_add(p, R(u8, 0), n, 'v_max_u32')
        xor16_add(p, R(u8, 0), R(u8, 1), 'v_max_u32'); xor32_add(p, R(u8, 0), R(u8, 1), 'v_max_u32')
        p('v_cmp_eq_u32 vcc, %s, %s' % (R(u8, 0), R(gr, 0)))
        p('v_lshlrev_b32 %s, 4, %s' % (R(t[7]), v_w))
        p('s_and_saveexec_b64 s[26:27], vcc')
        p('ds_write_b128 %s, %s offset:192' % (R(t[7]), R(gr, 0, 4)))
        p('s_mov_b64 exec, s[26:27]')
        p('s_waitcnt lgkmcnt(0)')
        p('s_branch %s_kJ' % name)
        p.alt_next()
        p.label('%s_kA' % name)
        out_rows()
        p.alt_end()
        p.label('%s_kJ' % name)
        p('s_barrier')
        best_of(256, 4)
        p('v_and_b32 %s, 0x7ff, %s' % (R(u8, 0), R(gr, 0)))
        p('v_sub_u32 %s, 2047, %s' % (R(u8, 0), R(u8, 0)))
        p('v_readfirstlane_b32 %s, %s' % (T_WIN, R(u8, 0)))
        p('s_lshl_b32 %s, %s, 11' % (T_WOFF, T_WIN))
        p.stamp(4)
        aprow('s25', T_WIN)
        for k in range(4):
            p('s_add_u32 s26, s25, 0x%x' % (k * 0x400000))
            p('buffer_load_dword %s, %s, s[8:11], s26 offen sc1' % (R(ac, k), R(t[8])))
        p('buffer_load_dword %s, %s, %s, %s offen' % (R(ac, 4), R(t[4]), SR(QZ), T_WOFF))
        p('v_rcp_f32 %s, %s' % (R(sl, 3), R(gr, 2)))
        unpack(p, a0, a1, R(ac, 0)); unpack(p, b0_, b1_, R(ac, 1))
        p('v_pk_add_f32 %s, %s, %s' % (R(x, 0, 2), a01, b01))
        for k in (2, 3, 4):
            unpack(p, a0, a1, R(ac, k))
            p('v_pk_add_f32 %s, %s, %s' % (R(x, 0, 2), a01, R(x, 0, 2)))
        X = [R(x, 0), R(x, 1)]
        rb2(p, X[0], X[1], a0)
        p('v_lshlrev_b32 %s, 1, %s' % (R(t[7]), R(t[4])))
        p('ds_write_b64 %s, %s offset:%d' % (R(t[7]), R(x, 0, 2), L_X2S))
        p('s_nop 1')
        ln_apply(p, X, 2, R(gr, 1), R(gr, 2), R(sl, 3), [R(sl, 4), R(sl, 5)], [R(sl, 6), R(sl, 7)], R(u8, 0), R(u8, 1))
        rb2(p, X[0], X[1], a0)
        p('ds_write_b64 %s, %s offset:%d' % (R(t[7]), R(x, 0, 2), L_XS))
        p('v_lshrrev_b32 %s, 1, %s' % (R(t[7]), v_tf)); p('v_lshlrev_b32 %s, 4, %s' % (R(t[7]), R(t[7])))
        p('s_waitcnt lgkmcnt(0)')
        p('s_barrier')
        p('s_lshr_b32 s26, s2, 3'); p('s_cmp_ge_u32 s26, 28')
        p('s_cbranch_scc1 %s_fin' % name)
        p.alt_begin()
        p('ds_read_b128 %s, %s offset:%d' % (R(x, 0, 4), R(t[7]), L_XS))
        for i in range(4):
            xl = R(x, 4 + i)
            p('v_lshrrev_b32 %s, 16, %s' % (xl, R(x, i)))
            for mat in range(2):
                for d in range(4):
                    for h, xx in ((1, R(x, i)), (0, xl)):
                        a_ = R(ac, 8 * mat + 2 * d + h)
                        if i == 0: p('v_dot2_f32_bf16 %s, %s, %s, 0' % (a_, R(XR[4 * mat + i], d), xx))
                        else: p('v_dot2c_f32_bf16 %s, %s, %s' % (a_, R(XR[4 * mat + i], d), xx))
        for e in range(8): p('v_permlane32_swap_b32 %s, %s' % (R(ac, e), R(ac, 8 + e)))
        for e in range(8): p('v_add_f32 %s, %s, %s' % (R(ac, e), R(ac, e), R(ac, 8 + e)))
        for e in range(4): p('v_permlane16_swap_b32 %s, %s' % (R(ac, e), R(ac, 4 + e)))
        for e in range(4): p('v_add_f32 %s, %s, %s' % (R(ac, e), R(ac, e), R(ac, 4 + e)))
        for n in (8, 4, 2):
            for e in range(4): ror_add(p, R(ac, e), n)
        p('v_lshrrev_b32 %s, 5, %s' % (R(t[7]), lane)); p('v_lshlrev_b32 %s, 6, %s' % (R(t[7]), R(t[7])))
        p('v_and_b32 %s, 1, %s' % (R(t[6]), lane)); p('v_lshl_add_u32 %s, %s, 5, %s' % (R(t[7]), R(t[6]), R(t[7])))
        p('v_bfe_u32 %s, %s, 4, 1' % (R(t[6]), lane)); p('v_lshl_add_u32 %s, %s, 4, %s' % (R(t[7]), R(t[6]), R(t[7])))
        p('v_lshl_add_u32 %s, %s, 7, %s' % (R(t[7]), v_w, R(t[7])))
        p('s_mov_b32 s26, 0x00030003'); p('s_mov_b32 s27, 0x00030003')
        p('s_mov_b64 exec, s[26:27]')
        p('ds_write_b128 %s, %s offset:%d' % (R(t[7]), R(ac, 0, 4), L_GU))
        p('s_mov_b64 exec, -1')
        p('v_and_b32 %s, 31, %s' % (R(t[6]), lane)); p('v_lshlrev_b32 %s, 2, %s' % (R(t[6]), R(t[6])))
        p('s_waitcnt lgkmcnt(0)')
        p('s_barrier')
        for w_ in range(8): p('ds_read_b32 %s, %s offset:%d' % (R(ac, w_), R(t[6]), L_GU + w_ * 128))
        for step in (4, 2, 1):
            for k in range(step): p('v_add_f32 %s, %s, %s' % (R(ac, k), R(ac, k), R(ac, step + k)))
        g_, u_ = R(ac, 0), R(ac, 1)
        rb1(p, g_)
        p('v_mov_b32 %s, %s' % (u_, g_))
        p('v_permlane16_swap_b32 %s, %s' % (g_, u_))
        silu(p, g_, R(ac, 2))
        rb1(p, g_)
        p('v_mul_f32 %s, %s, %s' % (g_, g_, u_))
        rb1(p, g_)
        p.stamp(5)
        ya, yb = R(yp, 0), R(yp, 1)
        for r_ in range(16):
            sa_, sb_ = 's%d' % (20 + 2 * (r_ % 2)), 's%d' % (21 + 2 * (r_ % 2))
            p('v_readlane_b32 %s, %s, %d' % (sa_, g_, r_))
            p('s_lshr_b32 %s, %s, 16' % (sb_, sa_))
            if r_ == 0:
                p('v_dot2_f32_bf16 %s, %s, %s, 0' % (yb, R(mx, r_), sa_)); p('v_dot2_f32_bf16 %s, %s, %s, 0' % (ya, R(mx, r_), sb_))
            else:
                p('v_dot2_f32_bf16 %s, %s, %s, %s' % (yb, R(mx, r_), sa_, yb)); p('v_dot2_f32_bf16 %s, %s, %s, %s' % (ya, R(mx, r_), sb_, ya))
        p('v_or_b32 %s, 1, %s' % (ya, ya)); p('v_or_b32 %s, 1, %s' % (yb, yb))
        for l in strip_of('s24', 's26'): p(l)
        p('s_lshl_b32 s24, s24, 12'); p('s_add_u32 s24, s24, 0x%x' % Z_YP)
        p('v_lshlrev_b32 %s, 1, %s' % (R(t[7]), R(t[4])))
        p('buffer_store_dwordx2 %s, %s, s[8:11], s24 offen sc1' % (R(yp, 0, 2), R(t[7])))
        p.stamp(6)
        p('s_cmp_lt_u32 s3, 4')
        p('s_cbranch_scc1 %s_os' % name)
        out_rows()
        p.label('%s_os' % name)
        p('s_nop 1')
        out_store()
        p('s_branch %s_end' % name)
        p.alt_next()
        p.label('%s_fin' % name)
        p('s_and_b32 s24, s2, 7'); p('s_lshl_b32 s24, s24, 2'); p('s_lshr_b32 s26, s2, 3'); p('s_sub_u32 s26, s26, 28'); p('s_add_u32 s24, s24, s26')
        p('s_lshl_b32 s63, s24, 5')
        p('v_lshrrev_b32 %s, 3, %s' % (R(t[7]), v_tf)); p('v_lshlrev_b32 %s, 12, %s' % (R(t[7]), R(t[7])))
        p('v_and_b32 %s, 7, %s' % (R(t[6]), v_tf)); p('v_lshl_add_u32 %s, %s, 4, %s' % (R(t[7]), R(t[6]), R(t[7])))
        p('s_lshl_b32 s24, s63, 2'); p('s_add_u32 s24, s24, 0x%x' % Z_YP)
        p('v_and_b32 %s, 31, %s' % (R(t[5]), lane)); p('v_add_u32 %s, s63, %s' % (R(t[5]), R(t[5])))
        p('v_lshlrev_b32 %s, 2, %s' % (R(t[6]), R(t[5])))
        p('ds_read_b32 %s, %s offset:%d' % (R(fin, 8), R(t[6]), L_XS)); p('ds_read_b32 %s, %s offset:%d' % (R(fin, 9), R(t[6]), L_X2S))
        p('v_lshlrev_b32 %s, 1, %s' % (R(t[5]), R(t[5])))
        p('v_add_u32 %s, 0x%x, %s' % (R(t[6]), MODS, R(t[5])))
        p('ds_read_u16 %s, %s offset:4096' % (R(fin, 10), R(t[6])))
        rsel = R(fin, 11)
        p('v_mov_b32 %s, %s' % (rsel, R(gr, 3)))
        rb1(p, rsel)
        p('v_mul_f32 %s, 0x%x, %s' % (rsel, f2u(-LOG2E), rsel))
        p('v_exp_f32 %s, %s' % (rsel, rsel))
        p('v_add_f32 %s, 1.0, %s' % (rsel, rsel))
        p('v_rcp_f32 %s, %s' % (rsel, rsel))
        rb1(p, rsel)
        p('v_lshlrev_b32 %s, 16, %s' % (R(fin, 10), R(fin, 10)))
        p('s_cmp_lt_u32 s3, 4')
        p('s_cbranch_scc1 %s_os2' % name)
        out_rows()
        p.label('%s_os2' % name)
        p('s_nop 1')
        out_store()
        p('v_cmp_gt_u32 vcc, 256, %s' % v_tf)
        p('v_mov_b32 %s, 0x%x' % (R(u8, 0), 192 * 4096))
        p('v_cndmask_b32 %s, 0, %s, vcc' % (R(u8, 0), R(u8, 0)))
        p('v_add_u32 %s, %s, %s' % (R(u8, 0), R(u8, 0), R(t[7])))
        p('v_cndmask_b32 %s, 0, 1.0, vcc' % R(u8, 1))
        def ly():
            for i in range(3):
                p('s_add_u32 s25, s24, %d' % (i * 64 * 4096))
                p('buffer_load_dwordx4 %s, %s, s[8:11], s25 offen sc1' % (R(ac, 4 * i, 4), R(t[7])))
            p('buffer_load_dwordx4 %s, %s, s[8:11], s24 offen sc1' % (R(ac, 12, 4), R(u8, 0)))
        def ty():
            mn = R(u8, 2)
            p('v_min3_u32 %s, %s, %s, %s' % (mn, R(ac, 0), R(ac, 1), R(ac, 2)))
            for k in range(3, 15, 2): p('v_min3_u32 %s, %s, %s, %s' % (mn, mn, R(ac, k), R(ac, k + 1)))
            p('v_min_u32 %s, %s, %s' % (mn, mn, R(ac, 15)))
            p('v_cmp_eq_u32 vcc, 0, %s' % mn)
        poll('y', ly, ty, tsleep)
        p.stamp(7)
        for e in range(4):
            p('v_add_f32 %s, %s, %s' % (R(ac, e), R(ac, e), R(ac, 4 + e)))
            p('v_fma_f32 %s, %s, %s, %s' % (R(ac, 8 + e), R(ac, 12 + e), R(u8, 1), R(ac, 8 + e)))
        for e in range(4): p('v_add_f32 %s, %s, %s' % (R(ac, e), R(ac, e), R(ac, 8 + e)))
        for e in range(4): ror_add(p, R(ac, e), 8)
        for e in range(4): xor16_add(p, R(ac, e), R(u8, 4 + e))
        for e in range(4): xor32_add(p, R(ac, e), R(u8, 4 + e))
        p('v_and_b32 %s, 7, %s' % (R(t[7]), lane)); p('v_lshlrev_b32 %s, 4, %s' % (R(t[7]), R(t[7])))
        p('v_lshl_add_u32 %s, %s, 7, %s' % (R(t[7]), v_w, R(t[7])))
        p('s_mov_b64 exec, 0xff')
        p('ds_write_b128 %s, %s offset:%d' % (R(t[7]), R(ac, 0, 4), L_YR))
        p('s_mov_b64 exec, -1')
        p('s_waitcnt lgkmcnt(0)')
        p('s_barrier')
        p('s_cmp_lg_u32 s3, 0')
        p('s_cbranch_scc1 %s_end' % name)
        p('v_and_b32 %s, 31, %s' % (R(t[7]), lane)); p('v_lshlrev_b32 %s, 2, %s' % (R(t[7]), R(t[7])))
        for w_ in range(8): p('ds_read_b32 %s, %s offset:%d' % (R(ac, w_), R(t[7]), L_YR + w_ * 128))
        for step in (4, 2, 1):
            for k in range(step): p('v_add_f32 %s, %s, %s' % (R(ac, k), R(ac, k), R(ac, step + k)))
        y = R(ac, 0)
        rb1(p, y)
        p('v_mul_f32 %s, %s, %s' % (y, y, rsel))
        rb1(p, y)
        p('v_add_f32 %s, %s, %s' % (y, y, R(fin, 8)))
        rb1(p, y)
        p('v_mul_f32 %s, %s, %s' % (y, y, R(fin, 10)))
        rb1(p, y)
        p('v_add_f32 %s, %s, %s' % (y, y, R(fin, 9)))
        p('v_cvt_pk_bf16_f32 %s, %s, %s' % (y, y, y))
        p('s_mov_b64 exec, 0xffffffff')
        p('buffer_store_short %s, %s, %s, %s offen sc1' % (y, R(t[5]), SR(QX), T_WOFF))
        p('s_mov_b64 exec, -1')
        p('s_cmp_lg_u32 s63, 0')
        p('s_cbranch_scc1 %s_end' % name)
        p('s_mov_b32 s26, 0x%x' % WS_EPOCH)
        p('v_mov_b32 %s, s14' % R(t[6]))
        p('s_mov_b64 exec, 1')
        p('buffer_store_dword %s, %s, s[8:11], s26 offen sc1' % (R(t[6]), zero))
        p('s_mov_b64 exec, -1')
        p.alt_end()

    def tail():
        G = RA('v', BASE, 156)
        gr = G.alloc(4, 4); xf = G.alloc(16, 4); raw = G.alloc(32, 4); mods = G.alloc(32, 4); uf = G.alloc(16, 4); mg = G.alloc(8, 4)
        x = G.alloc(16, 4); u8 = G.alloc(8, 4)
        ac = (S[1][0], S[1][1]); sl = (S[1][0], S[1][1] + 8); fin = (Pb[0], Pb[1])
        assert G.n <= S[1][1]
        free = [v_wqoff, v_tr, v_hoff, v_kvoff, v_pf, v_pfd, v_t[2], v_t[3], v_t[4], v_t[5], v_l[0], v_l[1], v_wt[0], v_wt[1], v_wt[2]]
        t = {0: free[0], 1: free[1], 2: free[2], 4: free[3], 5: free[4], 6: free[5], 7: free[6], 8: free[7], 10: free[8], 11: free[9], 12: free[10]}
        v_w = free[11]; v_tf = free[12]
        w = Wt; wd = Wt; mu = uf
        MSB, MC1, MGB, MWR = 0, 8, 16, 24
        MODS = L_MODS
        T_ROW, T_ROFF, T_CBO, T_WOFF = 's16', 's17', 's18', 's62'
        fa = 7 if 'a' in fl128 else 2
        WAF = WS_AF2 if fa == 7 else WS_AF
        p('s_lshl_b32 s26, s13, 3'); p('s_add_u32 s26, s26, s3'); p('s_lshl_b32 s26, s26, %d' % (fa + 5)); p('s_lshl_b32 s27, s12, %d' % fa); p('s_add_u32 s26, s26, s27')
        p('s_add_u32 s26, s26, 0x%x' % WAF)
        p('v_mov_b32 %s, s14' % R(t[6])); p('v_mov_b32 %s, 0' % R(t[5]))
        p('v_mov_b32 %s, s3' % R(v_w))
        p('v_lshl_add_u32 %s, %s, 6, %s' % (R(v_tf), R(v_w), lane))
        p('v_lshlrev_b32 %s, 2, %s' % (R(t[4]), R(v_tf)))
        p('v_lshrrev_b32 %s, 3, %s' % (R(t[10]), vid)); p('v_and_b32 %s, 7, %s' % (R(t[11]), vid))
        p('s_lshl_b32 %s, s13, 8' % T_ROW); p('s_lshl_b32 s27, s12, 3'); p('s_add_u32 %s, %s, s27' % (T_ROW, T_ROW)); p('s_add_u32 %s, %s, s3' % (T_ROW, T_ROW))
        p('s_lshl_b32 %s, %s, 11' % (T_ROFF, T_ROW))
        for l in mksrd(p, QZ, 'x', 4194304): p(l)
        for l in mksrd(p, QX, 'out', 4194304): p(l)
        p('v_add_u32 %s, 0x%x, %s' % (R(t[12]), MODS, R(v_l16)))
        for i in range(8): p('ds_read_b128 %s, %s offset:%d' % (R(mods, 4 * i, 4), R(t[12]), i * 1024))
        if not apsent: p.wait_tag('ap')
        p('s_mov_b64 exec, 1')
        p('buffer_store_dword %s, %s, s[8:11], s26 offen sc1' % (R(t[6]), R(t[5])))
        p('s_mov_b64 exec, -1')
        p.stamp(1)
        if apsent:
            assert 'o' not in fl128
            p('v_bfe_u32 %s, %s, 3, 2' % (R(t[8]), lane)); p('v_lshlrev_b32 %s, 7, %s' % (R(t[8]), R(t[8])))
            p('v_and_b32 %s, 7, %s' % (R(t[7]), lane)); p('v_lshl_add_u32 %s, %s, 2, %s' % (R(t[8]), R(t[7]), R(t[8])))
            p('s_lshl_b32 s21, s13, 3'); p('s_lshr_b32 s23, s12, 2'); p('s_add_u32 s21, s21, s23'); p('s_lshl_b32 s21, s21, 9'); p('s_add_u32 s21, s21, 0x%x' % WS_OF)
            p('buffer_load_dword %s, %s, s[8:11], s21 offen sc1' % (R(gr, 0), R(t[8])))
        for hf in range(2):
            p('buffer_load_dwordx4 %s, %s, %s, %s offen offset:%d' % (R(x, 4 * hf, 4), R(v_l16), SR(QZ), T_ROFF, hf * 1024))

        def best_of(ldsoff, n=8):
            p('v_and_b32 %s, %d, %s' % (R(t[7]), n - 1, lane))
            p('v_lshlrev_b32 %s, 4, %s' % (R(t[7]), R(t[7])))
            p('ds_read_b32 %s, %s offset:%d' % (R(u8, 0), R(t[7]), ldsoff))
            p('v_mov_b32 %s, %s' % (R(u8, 1), R(u8, 0)))
            for k in ((1, 2, 4) if n == 8 else (1, 2)): ror_add(p, R(u8, 1), k, 'v_max_u32')
            p('v_cmp_eq_u32 vcc, %s, %s' % (R(u8, 0), R(u8, 1)))
            p('s_ff1_i32_b64 s26, vcc')
            p('s_lshl_b32 s26, s26, 4')
            p('v_mov_b32 %s, s26' % R(t[7]))
            p('ds_read_b128 %s, %s offset:%d' % (R(gr, 0, 4), R(t[7]), ldsoff))
        def gemv(ws_, n):
            for i in range(n):
                xl = R(u8, i % 8)
                p('v_lshrrev_b32 %s, 16, %s' % (xl, R(x, i)))
                for d in range(4):
                    for h, xx in ((1, R(x, i)), (0, xl)):
                        if i == 0: p('v_dot2_f32_bf16 %s, %s, %s, 0' % (R(ac, 2 * d + h), R(ws_[i], d), xx))
                        else: p('v_dot2c_f32_bf16 %s, %s, %s' % (R(ac, 2 * d + h), R(ws_[i], d), xx))
            for e in range(4): p('v_permlane32_swap_b32 %s, %s' % (R(ac, e), R(ac, 4 + e)))
            for e in range(4): p('v_add_f32 %s, %s, %s' % (R(ac, e), R(ac, e), R(ac, 4 + e)))
            for e in range(2): p('v_permlane16_swap_b32 %s, %s' % (R(ac, e), R(ac, 2 + e)))
            for e in range(2): p('v_add_f32 %s, %s, %s' % (R(ac, e), R(ac, e), R(ac, 2 + e)))
            for e in range(2): ror_add(p, R(ac, e), 8)
        def wg_sum(ldsoff):
            p('ds_write_b64 %s, %s offset:%d' % (R(t[0]), R(ac, 0, 2), ldsoff))
            p('s_waitcnt lgkmcnt(0)')
            p('s_barrier')
            for i in range(4): p('ds_read_b32 %s, %s offset:%d' % (R(ac, i), R(t[2]), ldsoff + i * 256))
            for i in range(2): p('v_add_f32 %s, %s, %s' % (R(ac, i), R(ac, i), R(ac, 2 + i)))
            p('v_add_f32 %s, %s, %s' % (R(ac, 0), R(ac, 0), R(ac, 1)))
            p('v_or_b32 %s, 1, %s' % (R(ac, 0), R(ac, 0)))

        a0, a1, b0_, b1_ = R(u8, 0), R(u8, 1), R(u8, 2), R(u8, 3)
        a01, b01 = R(u8, 0, 2), R(u8, 2, 2)
        b0v = R(fin, 2); usum = R(fin, 8)
        p('v_mov_b32 %s, 0' % b0v); p('v_mov_b32 %s, 0' % usum)
        for d in range(8):
            unpack(p, a0, a1, R(mods, MC1 + d)); unpack(p, b0_, b1_, R(mods, MWR + d))
            p('v_pk_mul_f32 %s, %s, %s' % (R(uf, 2 * d, 2), a01, b01))
            unpack(p, a0, a1, R(mods, MSB + d))
            p('v_fmac_f32 %s, %s, %s' % (b0v, a0, b0_)); p('v_fmac_f32 %s, %s, %s' % (b0v, a1, b1_))
            p('v_add_f32 %s, %s, %s' % (usum, usum, R(uf, 2 * d))); p('v_add_f32 %s, %s, %s' % (usum, usum, R(uf, 2 * d + 1)))
        for n in (1, 2, 4, 8):
            ror_add(p, b0v, n); ror_add(p, usum, n)
        xor16_add(p, b0v, a0); xor16_add(p, usum, a1); xor32_add(p, b0v, a0); xor32_add(p, usum, a1)
        p('v_lshlrev_b32 %s, 2, %s' % (R(t[6]), vid))
        p('s_lshl_b32 s25, %s, 10' % T_KH); p('s_add_u32 s25, s25, %d' % MODS)
        p('v_add_u32 %s, s25, %s' % (R(t[7]), R(t[6])))
        p('ds_read_b32 %s, %s offset:2048' % (R(sl, 4), R(t[7])))
        p('ds_read_b32 %s, %s' % (R(sl, 6), R(t[7])))
        p('s_lshl_b32 %s, %s, 7' % (T_CBO, T_CB))
        p('s_add_u32 s25, %s, %d' % (T_CBO, MODS))
        p('v_lshl_add_u32 %s, %s, 1, s25' % (R(t[7]), lane))
        for k, off in enumerate((2048, 0, 4096)): p('ds_read_u16 %s, %s offset:%d' % (R(mg, 5 + k), R(t[7]), off))
        for r_ in (R(mg, 5), R(mg, 6), R(mg, 7)): p('v_lshlrev_b32 %s, 16, %s' % (r_, r_))
        unpack(p, R(sl, 4), R(sl, 5), R(sl, 4)); unpack(p, R(sl, 6), R(sl, 7), R(sl, 6))
        for d in range(8): unpack(p, R(xf, 2 * d), R(xf, 2 * d + 1), R(x, d))
        def aprow(dst, row):
            p('s_lshr_b32 %s, %s, 4' % (dst, row)); p('s_lshl_b32 %s, %s, 15' % (dst, dst))
            p('s_and_b32 s27, %s, 15' % row); p('s_lshl_b32 s27, s27, 6'); p('s_add_u32 %s, %s, s27' % (dst, dst))
            p('s_add_u32 %s, %s, 0x%x' % (dst, dst, WS_AP4))
        aprow('s24', T_ROW)
        p('v_lshrrev_b32 %s, 2, %s' % (R(t[1]), lane)); p('v_lshlrev_b32 %s, 10, %s' % (R(t[1]), R(t[1])))
        p('v_and_b32 %s, 3, %s' % (R(t[0]), lane)); p('v_lshl_add_u32 %s, %s, 4, %s' % (R(t[1]), R(t[0]), R(t[1])))
        p('v_and_b32 %s, 31, %s' % (R(t[7]), lane))
        p('v_lshlrev_b32 %s, %d, %s' % (R(t[7]), fa, R(t[7])))
        p('s_lshl_b32 s22, s13, 3'); p('s_lshr_b32 s23, s12, 2'); p('s_add_u32 s22, s22, s23'); p('s_lshl_b32 s22, s22, %d' % (fa + 5)); p('s_add_u32 s22, s22, 0x%x' % WAF)
        if apsent:
            p('v_cmp_ne_u32 vcc, s14, %s' % R(gr, 0))
            p('s_cbranch_vccz %s_ocg' % name)
            q = p.raw
            q('s_mov_b32 s27, 0')
            p.label('%s_ocp' % name)
            q('buffer_load_dword %s, %s, s[8:11], s21 offen sc1' % (R(gr, 0), R(t[8]))); q('s_waitcnt vmcnt(0)')
            q('v_cmp_ne_u32 vcc, s14, %s' % R(gr, 0))
            q('s_add_u32 s27, s27, 1'); q('s_cmp_ge_u32 s27, %d' % SPIN_MAX); q('s_nop 4')
            q('s_cbranch_scc1 %s_ocg' % name)
            q('s_cbranch_vccnz %s_ocp' % name)
            p.label('%s_ocg' % name)
        poll('r', lambda: p('buffer_load_dword %s, %s, s[8:11], s22 offen sc1' % (a0, R(t[7]))),
             lambda: p('v_cmp_ne_u32 vcc, s14, %s' % a0), tsleep)
        p.stamp(2)
        def apl():
            for hf in range(2):
                for k in range(4):
                    p('s_add_u32 s25, s24, 0x%x' % (k * 0x400000 + hf * 16384))
                    p('buffer_load_dwordx4 %s, %s, s[8:11], s25 offen sc1' % (R(raw, 8 * k + 4 * hf, 4), R(t[1])))
        if apsent:
            def apt():
                mxr = R(gr, 1)
                p('v_max3_u32 %s, %s, %s, %s' % (mxr, R(raw, 0), R(raw, 1), R(raw, 2)))
                for i in range(3, 31, 2): p('v_max3_u32 %s, %s, %s, %s' % (mxr, mxr, R(raw, i), R(raw, i + 1)))
                p('v_max_u32 %s, %s, %s' % (mxr, mxr, R(raw, 31)))
                p('v_cmp_eq_u32 vcc, -1, %s' % mxr)
            poll('d', apl, apt, tsleep)
        else:
            apl()
        for d in range(8):
            k = (d % 2) * 4
            A0, A1, B0_, B1 = [R(u8, k + i) for i in range(4)]
            tt = R(t[7 + (d % 2)])
            unpack(p, A0, A1, R(raw, d)); unpack(p, B0_, B1, R(raw, 8 + d))
            p('v_pk_add_f32 %s, %s, %s' % (R(u8, k, 2), R(u8, k, 2), R(u8, k + 2, 2)))
            unpack(p, B0_, B1, R(raw, 16 + d))
            p('v_pk_add_f32 %s, %s, %s' % (R(u8, k, 2), R(u8, k, 2), R(u8, k + 2, 2)))
            unpack(p, B0_, B1, R(raw, 24 + d))
            p('v_pk_add_f32 %s, %s, %s' % (R(u8, k, 2), R(u8, k, 2), R(u8, k + 2, 2)))
            p('v_pk_add_f32 %s, %s, %s' % (R(xf, 2 * d, 2), R(xf, 2 * d, 2), R(u8, k, 2)))
            rb2(p, R(xf, 2 * d), R(xf, 2 * d + 1), tt)
        p.stamp(7)
        mean, var, s3v, rcp = R(fin, 4), R(fin, 5), R(fin, 6), R(fin, 7)
        p('v_readfirstlane_b32 s25, %s' % R(xf, 0))
        p('v_mov_b32 %s, s25' % R(fin, 0))
        for d in range(8): p('v_pk_add_f32 %s, %s, %s op_sel_hi:[1,0] neg_lo:[0,1] neg_hi:[0,1]' % (R(raw, 2 * d, 2), R(xf, 2 * d, 2), R(fin, 0, 2)))
        c01 = R(u8, 4, 2)
        p('v_pk_add_f32 %s, %s, %s' % (c01, R(raw, 0, 2), R(raw, 2, 2)))
        p('v_pk_mul_f32 %s, %s, %s' % (a01, R(raw, 0, 2), R(raw, 0, 2)))
        p('v_pk_mul_f32 %s, %s, %s' % (b01, R(raw, 0, 2), R(uf, 0, 2)))
        for d in range(1, 8):
            if d >= 2: p('v_pk_add_f32 %s, %s, %s' % (c01, c01, R(raw, 2 * d, 2)))
            p('v_pk_fma_f32 %s, %s, %s, %s' % (a01, R(raw, 2 * d, 2), R(raw, 2 * d, 2), a01))
            p('v_pk_fma_f32 %s, %s, %s, %s' % (b01, R(raw, 2 * d, 2), R(uf, 2 * d, 2), b01))
        p('v_add_f32 %s, %s, %s' % (mean, R(u8, 4), R(u8, 5)))
        p('v_add_f32 %s, %s, %s' % (var, a0, a1)); p('v_add_f32 %s, %s, %s' % (s3v, b0_, b1_))
        for n in (1, 2, 4, 8):
            ror_add(p, mean, n); ror_add(p, var, n); ror_add(p, s3v, n)
        xor16_add(p, mean, a0); xor16_add(p, var, a1); xor16_add(p, s3v, b0_)
        xor32_add(p, mean, a0); xor32_add(p, var, a1); xor32_add(p, s3v, b0_)
        p('v_mul_f32 %s, 0x%x, %s' % (mean, f2u(1.0 / 1024), mean))
        p('v_mul_f32 %s, 0x%x, %s' % (var, f2u(1.0 / 1024), var))
        p('v_fma_f32 %s, -%s, %s, %s' % (var, mean, mean, var))
        p('v_max_f32 %s, 0, %s' % (var, var))
        p('v_fma_f32 %s, -%s, %s, %s' % (s3v, mean, usum, s3v))
        p('v_add_f32 %s, s25, %s' % (mean, mean))
        p('v_add_f32 %s, 0x%x, %s' % (a0, f2u(1e-5), var))
        p('v_rsq_f32 %s, %s' % (a0, a0))
        p('v_fma_f32 %s, %s, %s, %s' % (R(gr, 3), s3v, a0, b0v))
        sd = s3v
        ln_scalars(p, mean, var, sd, rcp)
        p('v_mov_b32 %s, %s' % (R(gr, 1), mean))
        p('v_mov_b32 %s, %s' % (R(gr, 2), sd))
        p('v_ashrrev_i32 %s, 31, %s' % (R(t[8]), R(gr, 3)))
        p('v_or_b32 %s, 0x80000000, %s' % (R(t[8]), R(t[8])))
        p('v_xor_b32 %s, %s, %s' % (R(gr, 0), R(gr, 3), R(t[8])))
        p('v_and_b32 %s, 0xfffff800, %s' % (R(gr, 0), R(gr, 0)))
        p('v_max_u32 %s, 0x800, %s' % (R(gr, 0), R(gr, 0)))
        p('s_sub_u32 s24, 2047, %s' % T_ROW)
        p('v_or_b32 %s, s24, %s' % (R(gr, 0), R(gr, 0)))
        p('v_lshlrev_b32 %s, 4, %s' % (R(t[7]), R(v_w)))
        p('ds_write_b128 %s, %s' % (R(t[7]), R(gr, 0, 4)))
        p('s_waitcnt lgkmcnt(0)')
        p('s_barrier')
        p('s_cmp_lg_u32 s3, 0')
        p('s_cbranch_scc1 %s_nk' % name)
        best_of(0)
        fk = 7 if 'k' in fl128 else 4
        p('s_lshl_b32 s24, s2, %d' % fk)
        p('s_add_u32 s24, s24, 0x%x' % WS_KEY2)
        p('s_mov_b64 exec, 1')
        p('buffer_store_dwordx4 %s, %s, s[8:11], s24 offen sc1' % (R(gr, 0, 4), R(t[5])))
        p('s_mov_b64 exec, -1')
        p.label('%s_nk' % name)
        p('s_waitcnt lgkmcnt(0)')
        p.stamp(3)
        def out_rows():
            for hf in range(2):
                X = [R(raw, i) for i in range(8)]
                c1 = [R(raw, 8 + i) for i in range(8)]
                for i in range(8): p('v_sub_f32 %s, %s, %s' % (X[i], R(xf, 8 * hf + i), mean))
                for i in range(0, 8, 2): rb2(p, X[i], X[i + 1], R(t[8]))
                for i in range(8): p('v_mul_f32 %s, %s, %s' % (X[i], X[i], rcp))
                for i in range(0, 8, 2): rb2(p, X[i], X[i + 1], R(t[8]))
                for op, mo_ in (('v_pk_mul_f32', MC1), ('v_pk_add_f32', MSB), ('v_pk_mul_f32', MGB)):
                    for d in range(4): unpack(p, c1[2 * d], c1[2 * d + 1], R(mods, mo_ + 4 * hf + d))
                    for d in range(4): p('%s %s, %s, %s' % (op, R(raw, 2 * d, 2), R(raw, 2 * d, 2), R(raw, 8 + 2 * d, 2)))
                    for i in range(0, 8, 2): rb2(p, X[i], X[i + 1], R(t[8]))
                for d in range(4): p('v_pk_add_f32 %s, %s, %s' % (R(raw, 2 * d, 2), R(raw, 2 * d, 2), R(xf, 8 * hf + 2 * d, 2)))
                for d in range(4): p('v_cvt_pk_bf16_f32 %s, %s, %s' % (R(raw, 16 + 4 * hf + d), X[2 * d], X[2 * d + 1]))
        p('v_lshlrev_b32 %s, 5, %s' % (R(t[0]), R(t[11])))
        p('v_bfe_u32 %s, %s, 4, 2' % (R(t[2]), lane))
        p('v_lshl_add_u32 %s, %s, 3, %s' % (R(t[0]), R(t[2]), R(t[0])))
        p('v_bfe_u32 %s, %s, 6, 2' % (R(t[2]), R(v_tf)))
        p('v_lshl_add_u32 %s, %s, 8, %s' % (R(t[0]), R(t[2]), R(t[0])))
        p('v_lshlrev_b32 %s, 2, %s' % (R(t[2]), lane))
        def winner():
            best_of(256, 4)
            p('v_and_b32 %s, 0x7ff, %s' % (R(u8, 0), R(gr, 0)))
            p('v_sub_u32 %s, 2047, %s' % (R(u8, 0), R(u8, 0)))
            p('v_readfirstlane_b32 %s, %s' % (T_WIN, R(u8, 0)))
            p('s_lshl_b32 %s, %s, 11' % (T_WOFF, T_WIN))
            p('v_rcp_f32 %s, %s' % (R(sl, 3), R(gr, 2)))
            p('s_cmp_lg_u32 %s, %s' % (T_WIN, T_ROW)); p('s_cselect_b32 s23, %s, 0x7ffffff0' % T_ROFF)
        def out_store():
            for hf in range(2):
                p('buffer_store_dwordx4 %s, %s, %s, s23 offen offset:%d sc1' % (R(raw, 16 + 4 * hf, 4), R(v_l16), SR(QX), hf * 1024))
        p('s_cmp_lt_u32 s3, 4')
        p('s_cbranch_scc1 %s_dn' % name)
        p.alt_begin()
        if not bfirst: out_rows()
        p('v_lshrrev_b32 %s, 6, %s' % (R(t[12]), R(t[6]))); p('v_lshlrev_b32 %s, 10, %s' % (R(t[12]), R(t[12])))
        p('v_and_b32 %s, 63, %s' % (R(t[7]), R(t[6]))); p('v_add_u32 %s, %s, %s' % (R(t[12]), R(t[12]), R(t[7])))
        p('v_lshlrev_b32 %s, %d, %s' % (R(t[7]), fk - 2, R(t[6])))
        p('s_mov_b32 s26, 0x%x' % WS_KEY2)
        poll('w', lambda: p('buffer_load_dwordx4 %s, %s, s[8:11], s26 offen sc1' % (R(gr, 0, 4), R(t[7]))),
             lambda: p('v_cmp_eq_u32 vcc, 0, %s' % R(gr, 0)), tsleep)
        p('v_mov_b32 %s, %s' % (R(u8, 0), R(gr, 0)))
        for n in (1, 2, 4, 8): ror_add(p, R(u8, 0), n, 'v_max_u32')
        xor16_add(p, R(u8, 0), R(u8, 1), 'v_max_u32'); xor32_add(p, R(u8, 0), R(u8, 1), 'v_max_u32')
        p('v_cmp_eq_u32 vcc, %s, %s' % (R(u8, 0), R(gr, 0)))
        p('v_lshlrev_b32 %s, 4, %s' % (R(t[7]), R(v_w)))
        p('s_and_saveexec_b64 s[26:27], vcc')
        p('ds_write_b128 %s, %s offset:192' % (R(t[7]), R(gr, 0, 4)))
        p('s_mov_b64 exec, s[26:27]')
        p('s_waitcnt lgkmcnt(0)')
        p('s_barrier')
        winner()
        p.stamp(4)
        p('s_lshl_b32 s24, %s, 10' % T_KH)
        p('s_add_u32 s24, %s, s24' % T_WOFF)
        aprow('s25', T_WIN)
        p('s_lshl_b32 s26, %s, 14' % T_KH); p('s_add_u32 s25, s25, s26')
        for k in range(4):
            p('s_add_u32 s26, s25, 0x%x' % (k * 0x400000))
            p('buffer_load_dword %s, %s, s[8:11], s26 offen sc1' % (R(raw, k), R(t[12])))
        p('buffer_load_dword %s, %s, %s, s24 offen' % (R(sl, 2), R(t[6]), SR(QZ)))
        unpack(p, a0, a1, R(raw, 0)); unpack(p, b0_, b1_, R(raw, 1))
        p('v_pk_add_f32 %s, %s, %s' % (R(x, 0, 2), a01, b01))
        for k in (2, 3):
            unpack(p, a0, a1, R(raw, k))
            p('v_pk_add_f32 %s, %s, %s' % (R(x, 0, 2), a01, R(x, 0, 2)))
        unpack(p, a0, a1, R(sl, 2))
        p('v_pk_add_f32 %s, %s, %s' % (R(x, 0, 2), a01, R(x, 0, 2)))
        X = [R(x, 0), R(x, 1)]
        rb2(p, X[0], X[1], a0)
        ln_apply(p, X, 2, R(gr, 1), R(gr, 2), R(sl, 3), [R(sl, 4), R(sl, 5)], [R(sl, 6), R(sl, 7)], R(u8, 0), R(u8, 1))
        rb2(p, X[0], X[1], a0)
        p('v_lshlrev_b32 %s, 1, %s' % (R(t[7]), R(t[6])))
        p('ds_write_b64 %s, %s offset:512' % (R(t[7]), R(x, 0, 2)))
        p('v_lshlrev_b32 %s, 6, %s' % (R(t[7]), R(t[10])))
        p('s_waitcnt lgkmcnt(0)')
        for i in range(4):
            p('ds_read_b128 %s, %s offset:%d' % (R(x, 4 * i, 4), R(t[7]), 512 + i * 16))
        p('s_lshl_b32 s26, %s, 1' % T_MT)
        p('s_add_u32 s26, s26, %s' % T_KH)
        p('s_mul_i32 s26, s26, %d' % (3584 * 4))
        p('s_lshl_b32 s25, %s, 8' % T_STRIP)
        p('s_add_u32 s26, s26, s25')
        p('s_add_u32 s26, s26, 0x%x' % WS_GU2)
        p('s_cmp_lt_u32 s2, 224'); p('s_cselect_b32 s26, s26, 0x7ffffff0')
        p('s_cmp_eq_u32 s3, 4'); p('s_cselect_b32 s26, s26, 0x7ffffff0')
        p('s_mov_b32 s25, s26')
        gemv(w, 16)
        wg_sum(4096)
        p('buffer_store_dword %s, %s, s[8:11], s25 offen sc1' % (R(ac, 0), R(t[2])))
        p.stamp(5)
        if bfirst: out_rows()
        p('s_cmp_lg_u32 %s, %s' % (T_WIN, T_ROW)); p('s_cselect_b32 s23, %s, 0x7ffffff0' % T_ROFF)
        out_store()
        p('s_branch %s_end' % name)
        p.alt_next()
        p.label('%s_dn' % name)
        out_rows()
        p('s_barrier')
        winner()
        p('s_add_u32 %s, %s, %s' % (T_WOFF, T_WOFF, T_CBO))
        p('v_lshlrev_b32 %s, 1, %s' % (R(t[8]), lane))
        aprow('s25', T_WIN)
        p('s_lshl_b32 s26, %s, 11' % T_CB); p('s_add_u32 s25, s25, s26')
        p('v_lshrrev_b32 %s, 5, %s' % (R(t[12]), lane)); p('v_lshlrev_b32 %s, 10, %s' % (R(t[12]), R(t[12])))
        p('v_and_b32 %s, 63, %s' % (R(t[7]), R(t[8]))); p('v_add_u32 %s, %s, %s' % (R(t[12]), R(t[12]), R(t[7])))
        for k in range(4):
            p('s_add_u32 s26, s25, 0x%x' % (k * 0x400000))
            p('buffer_load_ushort %s, %s, s[8:11], s26 offen sc1' % (R(raw, k), R(t[12])))
        p('buffer_load_ushort %s, %s, %s, %s offen' % (R(raw, 4), R(t[8]), SR(QZ), T_WOFF))
        out_store()
        g = mg
        p('v_min_u32 %s, 223, %s' % (R(t[6]), R(v_tf)))
        p('v_lshlrev_b32 %s, 2, %s' % (R(t[6]), R(t[6])))
        p('s_mul_i32 s24, %s, %d' % (T_KB, 224 * 4))
        p('s_add_u32 s24, s24, 0x%x' % WS_GU2)
        p('v_mul_u32_u24 %s, 28, %s' % (R(t[7]), R(t[10])))
        p('s_barrier')
        def l1():
            for k in range(4):
                p('s_add_u32 s25, s24, %d' % (k * 3584 * 4))
                p('buffer_load_dword %s, %s, s[8:11], s25 offen sc1' % (R(g, k), R(t[6])))
        def t1():
            p('v_min_u32 %s, %s, %s' % (R(g, 4), R(g, 0), R(g, 1)))
            p('v_min3_u32 %s, %s, %s, %s' % (R(g, 4), R(g, 4), R(g, 2), R(g, 3)))
            p('v_cmp_eq_u32 vcc, 0, %s' % R(g, 4))
        poll('a', l1, t1, 0)
        ga_, ua = R(g, 0), R(g, 2)
        p('v_add_f32 %s, %s, %s' % (ga_, R(g, 0), R(g, 1)))
        p('v_add_f32 %s, %s, %s' % (ua, R(g, 2), R(g, 3)))
        rb2(p, ga_, ua, R(g, 4))
        silu(p, ga_, R(g, 4))
        rb1(p, ga_)
        p('v_mul_f32 %s, %s, %s' % (ga_, ga_, ua))
        rb1(p, ga_)
        p('ds_write_b32 %s, %s offset:8192' % (R(t[4]), ga_))
        p('s_waitcnt lgkmcnt(0)')
        p('s_barrier')
        p.stamp(6)
        for i in range(7): p('ds_read_b32 %s, %s offset:%d' % (R(x, i), R(t[7]), 8192 + 4 * i))
        p('s_lshl_b32 s24, %s, 12' % T_CB)
        p('s_add_u32 s24, s24, 0x%x' % WS_YP2)
        p('s_lshl_b32 s25, %s, 8' % T_KB)
        p('s_add_u32 s25, s25, s24')
        gemv(wd, 7)
        wg_sum(12288)
        p('s_cmp_lg_u32 s3, 0')
        p('s_cbranch_scc1 %s_end' % name)
        p('buffer_store_dword %s, %s, s[8:11], s25 offen sc1' % (R(ac, 0), R(t[2])))
        p('s_cmp_lg_u32 %s, 15' % T_KB)
        p('s_cbranch_scc1 %s_end' % name)
        rsel = R(fin, 2)
        p('v_mov_b32 %s, %s' % (rsel, R(gr, 3)))
        rb1(p, rsel)
        p('v_mul_f32 %s, 0x%x, %s' % (rsel, f2u(-LOG2E), rsel))
        p('v_exp_f32 %s, %s' % (rsel, rsel))
        p('v_add_f32 %s, 1.0, %s' % (rsel, rsel))
        p('v_rcp_f32 %s, %s' % (rsel, rsel))
        rb1(p, rsel)
        x2s = R(fin, 0)
        for k in range(5): p('v_lshlrev_b32 %s, 16, %s' % (R(raw, k), R(raw, k)))
        p('v_add_f32 %s, %s, %s' % (x2s, R(raw, 0), R(raw, 1)))
        p('v_add_f32 %s, %s, %s' % (x2s, x2s, R(raw, 2))); p('v_add_f32 %s, %s, %s' % (x2s, x2s, R(raw, 3)))
        p('v_add_f32 %s, %s, %s' % (x2s, R(raw, 4), x2s))
        rb1(p, x2s)
        X = [R(fin, 1), R(fin, 3)]
        p('v_mov_b32 %s, %s' % (X[0], x2s)); p('v_mov_b32 %s, %s' % (X[1], x2s))
        ln_apply(p, X, 2, R(gr, 1), R(gr, 2), R(sl, 3), [R(mg, 5), R(mg, 5)], [R(mg, 6), R(mg, 6)], R(u8, 4), R(u8, 5))
        rb1(p, X[0])
        pp = [R(mu, k) for k in range(16)]
        mn = R(t[6])
        def l2():
            for k in range(15): p('buffer_load_dword %s, %s, s[8:11], s24 offen offset:%d sc1' % (pp[k], R(t[2]), k * 256))
        def t2():
            p('v_min3_u32 %s, %s, %s, %s' % (mn, pp[0], pp[1], pp[2]))
            for k in range(3, 15, 2): p('v_min3_u32 %s, %s, %s, %s' % (mn, mn, pp[k], pp[k + 1]))
            p('v_cmp_eq_u32 vcc, 0, %s' % mn)
        poll('y', l2, t2, 0)
        p.stamp(7)
        p('v_mov_b32 %s, %s' % (pp[15], R(ac, 0)))
        for step in (8, 4, 2, 1):
            for k in range(step): p('v_add_f32 %s, %s, %s' % (pp[k], pp[k], pp[step + k]))
        y = pp[0]
        rb1(p, y)
        p('v_mul_f32 %s, %s, %s' % (y, y, rsel))
        rb1(p, y)
        p('v_add_f32 %s, %s, %s' % (y, y, X[0]))
        rb1(p, y)
        p('v_mul_f32 %s, %s, %s' % (y, y, R(mg, 7)))
        rb1(p, y)
        p('v_add_f32 %s, %s, %s' % (y, y, x2s))
        p('v_cvt_pk_bf16_f32 %s, %s, %s' % (y, y, y))
        p('buffer_store_short %s, %s, %s, %s offen sc1' % (y, R(t[8]), SR(QX), T_WOFF))
        p('s_cmp_lg_u32 %s, 0' % T_CB)
        p('s_cbranch_scc1 %s_end' % name)
        p('s_mov_b32 s26, 0x%x' % WS_EPOCH)
        p('v_mov_b32 %s, s14' % R(t[6]))
        p('s_mov_b64 exec, 1')
        p('buffer_store_dword %s, %s, s[8:11], s26 offen sc1' % (R(t[6]), R(t[5])))
        p('s_mov_b64 exec, -1')
        p.alt_end()
    p('s_cmp_ge_u32 s3, 4')
    p('s_cbranch_scc1 %s_roleB' % name)
    p.alt_begin()
    front_A(); phase1('A'); phase2('A')
    p('s_branch %s_chk' % name)
    p.alt_next()
    p.label('%s_roleB' % name)
    front_B(); phase1('B'); phase2('B')
    p.alt_end()
    p.label('%s_chk' % name)
    if prio_reset: p('s_setprio 0')
    p.stamp(11)
    l0, l1 = R(v_l[0]), R(v_l[1])
    for x, y in zip(xl_red(l0, R(v_t[0]), 'v_add_f32'), xl_red(l1, R(v_t[2]), 'v_add_f32')): p(x); p(y)
    mo = [R(v_t[1]), R(v_t[3])]
    regs = [R(acc[dt], r) for dt in range(4) for r in range(16)]
    p('v_max3_f32 %s, |%s|, |%s|, %s' % (mo[0], regs[0], regs[1], l0))
    p('v_max3_f32 %s, |%s|, |%s|, %s' % (mo[1], regs[2], regs[3], l1))
    for i in range(4, 64, 2): p('v_max3_f32 %s, |%s|, |%s|, %s' % (mo[i // 2 % 2], regs[i], regs[i + 1], mo[i // 2 % 2]))
    p('v_max_f32 %s, %s, %s' % (mo[0], mo[0], mo[1]))
    p('s_mov_b32 s26, 0x%x' % f2u(2.0 ** 120))
    p('v_cmp_ngt_f32 vcc, s26, %s' % mo[0])
    p('v_cmp_u_f32 s[26:27], %s, %s' % (l0, l1))
    p('s_or_b64 vcc, vcc, s[26:27]')
    p('s_cbranch_vccnz %s_slow' % name)
    p.label('%s_epi' % name)
    if stage == 2 and not mlp2:
        p('s_cmp_lt_u32 s3, 4')
        p('s_cbranch_scc1 %s_nw15' % name)
        a_, b_ = wloads(False)[15]
        p(a_); p(b_)
        p.label('%s_nw15' % name)
    rl = [R(v_t[1]), R(v_t[3])]
    assert v_t[1][1] % 2 == 0 and v_t[3][1] % 2 == 0
    p('v_rcp_f32 %s, %s' % (rl[0], l0)); p('v_rcp_f32 %s, %s' % (rl[1], l1))
    p('s_lshl_b32 s19, s13, 3'); p('s_add_u32 s19, s19, s3')
    p('s_mul_i32 s20, s19, %d' % (2 * O_STRIDE))
    p('s_lshl_b32 s25, s12, 12')
    p('s_add_u32 s20, s20, s25')
    p('s_add_u32 s20, s20, 0x%x' % WS_O)
    p('s_add_u32 s25, s20, %d' % O_STRIDE)
    for T in range(4):
        for qs in range(2):
            o = S[qs]
            of = o if stage == 1 else qf[qs * 4 + T]
            for b in range(2):
                if opk:
                    for k in range(0, 4, 2): p('v_pk_mul_f32 %s, %s, %s op_sel_hi:[1,0]' % (R(o, 8 + 4 * b + k, 2), R(acc[T], b * 8 + qs * 4 + k, 2), R(v_t[1 + 2 * qs], 0, 2)))
                else:
                    for k in range(4): p('v_mul_f32 %s, %s, %s' % (R(o, 8 + 4 * b + k), R(acc[T], b * 8 + qs * 4 + k), rl[qs]))
            for r in range(0, 8, 2): p('v_cvt_pk_bf16_f32 %s, %s, %s' % (R(of, r // 2), R(o, 8 + r), R(o, 8 + r + 1)))
            p('buffer_store_dwordx4 %s, %s, s[8:11], %s offen offset:%d %s' % (R(of, 0, 4), R(v_l16), 's25' if qs else 's20', T * 1024, ost), 'ost')
    if stage == 1:
        p('s_or_b32 s26, s2, s3')
        p('s_cmp_eq_u32 s26, 0'); p('s_mov_b32 s26, 0x%x' % WS_EPOCH); p('s_cselect_b32 s26, s26, 0x7ffffff0')
        p('v_mov_b32 %s, s14' % R(v_t[0])); p('v_mov_b32 %s, 0' % R(v_t[1]))
        p('s_mov_b64 exec, 1')
        p('buffer_store_dword %s, %s, s[8:11], s26 offen sc1' % (R(v_t[0]), R(v_t[1])))
        p('s_mov_b64 exec, -1')
    else:
        p.stamp(12)
        phase3_and_tail()
    p('s_branch %s_end' % name)

    p.label('%s_slow' % name)
    p.flush()
    p('s_cmp_eq_u32 s15, 0x7777')
    p('s_cbranch_scc1 %s_epi' % name)
    p('s_mov_b32 s15, 0x7777')
    p('v_add_u32 %s, s18, %s' % (R(v_kvoff), R(v_l16)))
    ms, m2s = [R(v_t[0]), R(v_t[1])], [R(v_t[2]), R(v_t[3])]
    p('v_mov_b32 %s, 0xff7fffff' % ms[0]); p('v_mov_b32 %s, 0xff7fffff' % ms[1])
    p('s_mov_b32 s22, 0')
    KF = XR if stage == 1 else fr[:6] + [(S[1][0], S[1][1]), (S[1][0], S[1][1] + 4)]
    p.loop_begin()
    p.label('%s_s1' % name)
    p('s_add_u32 s23, s22, 4096')
    for t in range(8):
        p('buffer_load_dwordx4 %s, %s, s[8:11], %s offen offset:%d sc1' % (R(KF[t], 0, 4), R(v_kvoff), 's22' if t < 4 else 's23', (t % 4) * 1024))
    for t in range(8):
        for m_ in mf_k(0, t, R(KF[t], 0, 4), True): p(m_)
    for r in range(0, 16, 2): p('v_max3_f32 %s, %s, %s, %s' % (ms[(r // 4) % 2], ms[(r // 4) % 2], R(S[0], r), R(S[0], r + 1)))
    p('s_add_u32 s22, s22, 16384')
    p('s_cmp_lt_u32 s22, 0x40000')
    p('s_cbranch_scc1 %s_s1' % name)
    p.loop_end()
    for o in finish_max(ms, m2s): p(o)
    for dt in range(4):
        for r in range(16): p('v_mov_b32 %s, 0' % R(acc[dt], r))
    p('v_mov_b32 %s, 0' % l0); p('v_mov_b32 %s, 0' % l1)
    p('s_mov_b32 s22, 0')
    p.loop_begin()
    p.label('%s_s2' % name)
    p('s_add_u32 s23, s22, 4096')
    for t in range(8):
        p('buffer_load_dwordx4 %s, %s, s[8:11], %s offen offset:%d sc1' % (R(KF[t], 0, 4), R(v_kvoff), 's22' if t < 4 else 's23', (t % 4) * 1024))
    for t in range(8):
        for m_ in mf_k(0, t, R(KF[t], 0, 4), False): p(m_)
    p('s_add_u32 s26, s22, 8192')
    p('s_add_u32 s23, s22, 12288')
    for t in range(8):
        p('buffer_load_dwordx4 %s, %s, s[8:11], %s offen offset:%d sc1' % (R(KF[t], 0, 4), R(v_kvoff), 's26' if t < 4 else 's23', (t % 4) * 1024))
    for o in softmax_ops(0, False, False): p(o)
    for i in range(8):
        for m_ in mf_v(0, i, R(KF[i], 0, 4), False): p(m_)
    p('s_add_u32 s22, s22, 16384')
    p('s_cmp_lt_u32 s22, 0x40000')
    p('s_cbranch_scc1 %s_s2' % name)
    p.loop_end()
    p.flush()
    p('s_branch %s_chk' % name)
    p.label('%s_end' % name)
    p('s_endpgm')
    body = p.emit()
    return body, dict(vgpr=nv, accum=(nv + 3) // 4 * 4, sgpr=102, lds=163840, block=512, grid=256)
```

```python
import sys
from fz import gen_fz
from build import assemble
NAME = 'adaLN_cond__sliding_block_cached__moe_arch_mod__prompt_kernel'
def make1(path, **kw):
    kw.setdefault('stage', 2); kw.setdefault('zfirst', True); kw.setdefault('pf_list', ()); kw.setdefault('NL', 2)
    body, info = gen_fz('fz', **kw)
    assemble([(NAME, body, info)], path, single=True)
def make(path, prof, keep=None, rt=False, **kw):
    kw.setdefault('stage', 2); kw.setdefault('zfirst', True); kw.setdefault('pf_list', ()); kw.setdefault('NL', 2)
    body, info = gen_fz('fz_kernel', **kw)
    assemble([('fz_kernel', body, info)], path, prof=prof, keep=keep, rt=rt)
if __name__ == '__main__':
    make('f2.s', False)
    make('f2p.s', True)
```

```python
from gen_fz2 import make1, make
BEST = dict(wopf=(70, 125), wqpf=2, sb3=12, AH3=5, NL=3, fast0=True, wq_early=3, hslots=((3,), (1,)), dsp=(2, 8), burst=2, wA_at=(60, 100), kscale=True, opk=True, outlate=2)
if __name__ == '__main__':
    make1('adaLN_cond__sliding_block_cached__moe_arch_mod__prompt.s', **BEST)
    make('f2.s', False, **BEST)
```

```python
from asmdsl import Prog, Inst
from layout2 import *
from k2 import RA, R, Sched
from small import silu, rb1, rb2, unpack, ror_add, f2u, xor16_add, xor32_add, ln_scalars, ln_apply, LOG2E
import math
SPIN_MAX = 1 << 16
WS_GU2 = WS_YP2 + 0x10000
WS_MODF = WS_YP2 + 0x20000
WS_HF2, WS_OF2, WS_AF2 = 0x600000, 0x640000, 0x680000
WS_PF = 0x06C0000
WS_AP4 = 0x2000000
S_HEAD, S_QB, S_NON, S_MARK = 's12', 's13', 's14', 's15'
S_ROW, S_LDS, S_KV = 's16', 's17', 's18'
PTR = dict(x=32, k=34, v=36, wq=38, wo=40, bx=42, wr=44, wg=46, wu=48, wd=50, c=52, wmod=54, out=56, dbg=58, ws=60)
QX, QY, QZ = 64, 68, 28
def mksrd(p, q, ptr, size):
    return ['s_mov_b64 s[%d:%d], s[%d:%d]' % (q, q + 1, PTR[ptr], PTR[ptr] + 1), 's_mov_b32 s%d, 0x%x' % (q + 2, size), 's_mov_b32 s%d, 0x20000' % (q + 3)]
def SR(q): return 's[%d:%d]' % (q, q + 3)

def gen_fz(name='fz_kernel', mlp2=False, D1=4, D2=4, NH=3, ost='sc1', pf_list=('wg', 'wu'), endprio=('A', 2), burst=7, pf_lo=7,
           stage=1, hsleep=4, gsleep=1, wq_early=2, wqpos=5, b0=True, zfirst=False, mimic=2, spf_pos=1, spf_rows=0, tpf=0, fack=False, kvpos=(33, 97, 161), mc_at=(4, 6), wo_at=13, NS3=8, AH3=4, LA3=3, NL=3, opoll=63, oflag=-1, g_at=(14, 15), tsleep=1, prio_reset=True, cpf=True, wopf=None, pf_hi=15, wl_at=(130, 260), AH1=2, hord=True, nbrot=1, wA_at=(20, 60), wB_at=(124, 190), KD=2, jb2=15, sb3=None, prio3=False, aplin=False, apmod='sc1', bfirst=False, fl128='', wqpf=0, fast0=False, hslots=((1, 3), (1, 3)), dsp=(2, 4), dsplit=False, apsent=0, kscale=False, opk=False, wbl=(), wbslot=0, outlate=False, approg=False, free4=False, MAP=0, pair=False, pair_st='sc1', abl=(), mc1=False, m1_at=(41, 192, 320), swapw=False, presilu=False, pads=(0, 0, 0, 0, 0, 0)):
    p = Prog()
    Z_YP = WS_YP2
    Z_MODF = WS_YP2 + (0xE0000 if mlp2 else 0x20000)
    Z_KEY = WS_YP2 + (0xE4000 if mlp2 else 0x70000)
    V = RA('v', 0, 256)
    v_tid = V.alloc(1); v_l16 = V.alloc(1); v_wqoff = V.alloc(1); v_tr = V.alloc(1); v_hoff = V.alloc(1)
    v_kvoff = V.alloc(1); v_pf = V.alloc(1); v_pfd = V.alloc(1); v_id = V.alloc(1)
    v_t = [V.alloc(1) for _ in range(6)]
    v_l = [V.alloc(1) for _ in range(2)]
    v_wt = [V.alloc(1) for _ in range(3)]
    v_tr2 = v_l[0]; v_wq2 = v_l[1]
    BASE = V.n
    acc = [V.alloc(16, 4) for _ in range(4)]
    NRA = max(D1, D2) + 2
    fr = [V.alloc(4, 4) for _ in range(NRA)]
    qf = [V.alloc(4, 4) for _ in range(8)]
    S = [V.alloc(16, 4) for _ in range(2)]
    negm = V.alloc(16, 4)
    Pb = V.alloc(16, 4)
    P = [[(Pb[0], Pb[1] + 8 * b + 4 * u) for u in range(2)] for b in range(2)]
    Hx = [V.alloc(16, 4) for _ in range(2)]
    mx = V.alloc(16, 4)
    ones = V.alloc(4, 4)
    nv = V.n
    pool = [Hx[0], Hx[1], S[0], negm, Pb, mx][:NH]
    H = [[(b[0], b[1] + 4 * t) for t in range(4)] for b in pool]
    WQ_RING = 0; KV_RING = 65536; NKV = 6
    lane = R(v_tid); vid = R(v_id)
    L_GP = 131072; L_ST = L_GP + 1024; L_MOD = L_GP + 4096
    def slot1(s): return (s % 4) if AH1 == 2 else (s + 4) % 8

    p.label('%s_start' % name)
    p('s_cmp_ge_u32 s2, 256')
    p('s_cbranch_scc1 %s_end' % name)
    p('s_load_dwordx16 s[32:47], s[0:1], 0')
    p('s_load_dwordx8 s[48:55], s[0:1], 64')
    p('s_load_dwordx4 s[56:59], s[0:1], 96')
    p('s_load_dwordx2 s[60:61], s[0:1], 112')
    if MAP == 0:
        p('s_and_b32 s12, s2, 3')
        p('s_lshl_b32 s12, s12, 3')
        p('s_bfe_u32 s13, s2, 0x30003')
        p('s_add_u32 s12, s12, s13')
        p('s_bfe_u32 s13, s2, 0x10002')
        p('s_lshl_b32 s13, s13, 2')
        p('s_lshr_b32 s19, s2, 6')
        p('s_add_u32 s13, s13, s19')
    else:
        p('s_and_b32 s12, s2, 1'); p('s_lshl_b32 s12, s12, 4'); p('s_bfe_u32 s13, s2, 0x40003'); p('s_add_u32 s12, s12, s13')
        p('s_bfe_u32 s13, s2, 0x20001'); p('s_lshl_b32 s13, s13, 1'); p('s_lshr_b32 s19, s2, 7'); p('s_add_u32 s13, s13, s19')
    p('s_mov_b32 s15, 0')
    p('v_and_b32 %s, 255, v0' % vid)
    p('v_lshrrev_b32 %s, 6, v0' % R(v_t[0]))
    p('v_and_b32 %s, 63, v0' % lane)
    p('v_readfirstlane_b32 s3, %s' % R(v_t[0]))
    p('v_lshlrev_b32 %s, 4, %s' % (R(v_l16), lane))
    p('s_mov_b32 s10, 0x%x' % WS_SIZE)
    p('s_mov_b32 s11, 0x20000')
    p('s_lshl_b32 s19, s13, 3')
    p('s_add_u32 s19, s19, s3')
    p('s_lshl_b32 s20, s19, 16')
    p('v_add_u32 %s, s20, %s' % (R(v_hoff), R(v_l16)))
    p('v_bfe_u32 %s, %s, 2, 2' % (R(v_t[0]), lane))
    p('v_lshrrev_b32 %s, 4, %s' % (R(v_t[1]), lane))
    p('v_and_b32 %s, 3, %s' % (R(v_t[2]), lane))
    p('v_bfe_u32 %s, %s, 4, 1' % (R(v_t[4]), lane))
    p('v_lshlrev_b32 %s, 11, %s' % (R(v_tr), R(v_t[1])))
    p('v_lshl_add_u32 %s, %s, 6, %s' % (R(v_tr), R(v_t[0]), R(v_tr)))
    p('v_lshl_add_u32 %s, %s, 3, %s' % (R(v_tr), R(v_t[2]), R(v_tr)))
    p('v_lshlrev_b32 %s, 5, %s' % (R(v_wq2), R(v_t[4])))
    p('v_sub_u32 %s, %s, %s' % (R(v_tr2), R(v_tr), R(v_wq2)))
    p('v_add_u32 %s, %s, %s' % (R(v_tr), R(v_tr), R(v_wq2)))
    p('v_lshlrev_b32 %s, 6, %s' % (R(v_wqoff), R(v_t[1])))
    p('v_lshl_add_u32 %s, %s, 4, %s' % (R(v_wqoff), R(v_t[2]), R(v_wqoff)))
    p('v_lshl_add_u32 %s, %s, 13, %s' % (R(v_wqoff), R(v_t[0]), R(v_wqoff)))
    p('v_xor_b32 %s, 32, %s' % (R(v_wq2), R(v_wqoff)))
    p('s_lshr_b32 s18, s12, 3')
    p('s_lshl_b32 s18, s18, 18')
    p('s_add_u32 s18, s18, 0x%x' % WS_KV)
    p('v_add_u32 %s, s18, %s' % (R(v_kvoff), R(v_l16)))
    for r_ in v_wt: p('v_mov_b32 %s, 0' % R(r_))
    p('s_lshl_b32 s16, s3, 17')
    p('s_lshl_b32 s17, s3, 12')

    def dma_wq(s):
        out = []
        for i in range(4):
            out.append(('s_add_u32 s22, s16, 0x%x' % (s * 64 * 8192 + i * 32768), None))
            out.append(('s_add_u32 m0, s17, 0x%x' % (slot1(s) * 16384 + i * 1024), None))
            out.append(('buffer_load_dwordx4 %s, s[4:7], s22 offen lds' % R(v_wq2 if i >= 2 else v_wqoff), 'wq%d' % s))
        return out
    def dma_kv(j):
        out = []
        for i in range(4):
            out.append(('s_add_u32 s22, s17, 0x%x' % (j * 16384 + i * 1024), None))
            out.append(('s_add_u32 m0, s17, 0x%x' % (KV_RING + (j % NKV) * 16384 + i * 1024), None))
            out.append(('buffer_load_dwordx4 %s, s[8:11], s22 offen sc1 lds' % R(v_kvoff), 'kv%d' % j))
        return out
    def hload(s, t):
        return [('s_mov_b32 s23, 0x%x' % (WS_H + s * 2048 + (t % 2) * 32768), None),
                ('buffer_load_dwordx4 %s, %s, s[8:11], s23 offen offset:%d sc1' % (R(H[s % NH][t], 0, 4), R(v_hoff), (t // 2) * 1024), None)]
    def trread(f):
        r = fr[f % NRA]
        s, T, n = f // 16, (f // 8) % 2, f % 8
        base = slot1(s) * 16384 + T * 8192 + (n // 2) * 256 + (n % 2) * 32
        va = R(v_tr2 if n % 2 else v_tr)
        if base >= 65536: va = R(v_t[4 + n % 2]); base -= 65536
        return ['ds_read_b64_tr_b16 %s, %s offset:%d' % (R(r, 0, 2), va, base),
                'ds_read_b64_tr_b16 %s, %s offset:%d' % (R(r, 2, 2), va, base + 1024)]
    class L:
        def __init__(self): self.l = []
        def __call__(self, t, tag=None): self.l.append(t)
    def poll(tag, loads, test, sleep=0):
        p('s_mov_b32 s27, 0')
        p.label('%s_%sp' % (name, tag))
        loads(); test()
        p('s_add_u32 s27, s27, 1')
        p('s_cmp_ge_u32 s27, %d' % SPIN_MAX)
        p('s_cbranch_scc1 %s_%sg' % (name, tag))
        p('s_cbranch_vccz %s_%sg' % (name, tag))
        if sleep: p('s_sleep %d' % sleep)
        p('s_branch %s_%sp' % (name, tag))
        p.label('%s_%sg' % (name, tag))

    def epoch_load(dst, zero):
        p('s_mov_b32 s27, 0x%x' % WS_EPOCH)
        p('buffer_load_dword %s, %s, s[8:11], s27 offen sc1' % (dst, zero))
    def nonce_from(src):
        p('v_readfirstlane_b32 s14, %s' % src)
        p('s_add_u32 s14, s14, 1')

    L_CNT = L_GP + 512
    def early():
        for s in range(wq_early):
            for it, tag in dma_wq(s): p(it, tag)
    def front_A():
        F = RA('v', BASE, 256)
        v_r = F.alloc(1); v_xo = F.alloc(1); v_mo = F.alloc(1); v_so = F.alloc(1); v_e = F.alloc(1); zero = F.alloc(1)
        t = [F.alloc(1, 2 if i in (0, 2) else 1) for i in range(10)]
        xr = [F.alloc(4, 4) for _ in range(4)]
        x = F.alloc(32, 4); c1 = F.alloc(32, 4); sh = F.alloc(32, 4)
        red = F.alloc(8, 4)
        p('v_and_b32 %s, 7, %s' % (R(v_r), vid))
        p('v_bfe_u32 %s, %s, 3, 3' % (R(t[0]), vid))
        p('v_lshlrev_b32 %s, 4, %s' % (R(v_mo), R(t[0])))
        p('s_lshl_b32 s19, s3, 9')
        p('v_add_u32 %s, s19, %s' % (R(v_mo), R(v_mo)))
        p('v_lshl_add_u32 %s, %s, 11, %s' % (R(v_xo), R(v_r), R(v_mo)))
        p('v_mov_b32 %s, 0' % R(zero))
        p('s_lshl_b32 s25, s2, 14')
        p('s_waitcnt lgkmcnt(0)')
        p.stamp(0)
        p('s_mov_b64 s[8:9], s[60:61]')
        for l in mksrd(p, QZ, 'x', 4194304): p(l)
        if b0: p('s_barrier')
        for i in range(4):
            p('buffer_load_dwordx4 %s, %s, %s, s25 offen offset:%d' % (R(xr[i], 0, 4), R(v_xo), SR(QZ), i * 128))
        epoch_load(R(v_e), R(zero))
        if tpf:
            for l in mksrd(p, QX, 'wq', 0x800000): p(l)
            p('v_lshrrev_b32 %s, 4, %s' % (R(t[8]), lane))
            p('v_lshlrev_b32 %s, 13, %s' % (R(t[8]), R(t[8])))
            p('v_and_b32 %s, 15, %s' % (R(t[9]), lane))
            p('v_lshl_add_u32 %s, %s, 7, %s' % (R(t[8]), R(t[9]), R(t[8])))
            p('v_cmp_gt_u32 vcc, 32, %s' % lane)
            p('v_bfrev_b32 %s, -2' % R(t[9]))
            p('v_cndmask_b32 %s, %s, %s, vcc' % (R(t[8]), R(t[9]), R(t[8])))
            p('s_lshr_b32 s19, s2, 3'); p('s_lshl_b32 s19, s19, 2'); p('s_add_u32 s19, s19, s3'); p('s_lshl_b32 s19, s19, 14')
            p('s_and_b32 s20, s2, 3'); p('s_lshl_b32 s20, s20, 11'); p('s_add_u32 s19, s19, s20')
            for n in range(tpf // 256):
                if n: p('s_add_u32 s19, s19, 0x200000')
                p('buffer_load_dword %s, %s, %s, s19 offen' % (R(v_pfd), R(t[8]), SR(QX)), 'pf')
        if not b0: p('s_barrier')
        p('s_lshl_b32 s19, s12, 8')
        p('s_add_u32 s4, s38, s19')
        p('s_addc_u32 s5, s39, 0')
        p('s_sub_u32 s6, 0x800000, s19')
        p('s_mov_b32 s7, 0x20000')
        for i in range(4):
            for d in range(4): unpack(p, R(x, 8 * i + 2 * d), R(x, 8 * i + 2 * d + 1), R(xr[i], d))
        nonce_from(R(v_e))
        p.stamp(1)
        if wqpos == 0: early()
        X = [R(x, i) for i in range(32)]
        p('v_lshlrev_b32 %s, 5, %s' % (R(t[4]), R(v_r)))
        p('s_lshl_b32 s19, s3, 3')
        p('v_add_u32 %s, s19, %s' % (R(v_so), R(t[4])))
        mean, var, sd, rcp = R(t[0]), R(t[1]), R(t[2]), R(t[3])
        a0, a1 = R(t[5]), R(t[6])
        tmp = R(red, 0)
        p('v_add_f32 %s, %s, %s' % (a0, X[0], X[1])); p('v_add_f32 %s, %s, %s' % (a1, X[2], X[3]))
        for i in range(4, 32, 2):
            p('v_add_f32 %s, %s, %s' % (a0, a0, X[i])); p('v_add_f32 %s, %s, %s' % (a1, a1, X[i + 1]))
        p('v_add_f32 %s, %s, %s' % (mean, a0, a1))
        ror_add(p, mean, 8); xor16_add(p, mean, tmp); xor32_add(p, mean, tmp)
        p('v_mul_f32 %s, 0x%x, %s' % (mean, f2u(1.0 / 256), mean))
        p('v_sub_f32 %s, %s, %s' % (sd, X[0], mean)); p('v_mul_f32 %s, %s, %s' % (a0, sd, sd))
        p('v_sub_f32 %s, %s, %s' % (rcp, X[1], mean)); p('v_mul_f32 %s, %s, %s' % (a1, rcp, rcp))
        for i in range(2, 32, 2):
            p('v_sub_f32 %s, %s, %s' % (sd, X[i], mean)); p('v_sub_f32 %s, %s, %s' % (rcp, X[i + 1], mean))
            p('v_fmac_f32 %s, %s, %s' % (a0, sd, sd)); p('v_fmac_f32 %s, %s, %s' % (a1, rcp, rcp))
        p('v_add_f32 %s, %s, %s' % (var, a0, a1))
        ror_add(p, var, 8); xor16_add(p, var, tmp); xor32_add(p, var, tmp)
        p('v_add_u32 %s, 0x%x, %s' % (R(v_so), L_ST, R(v_so)))
        p('ds_write_b64 %s, %s' % (R(v_so), R(t[0], 0, 2)))
        p('v_add_u32 %s, 0x%x, %s' % (R(t[4]), L_ST, R(t[4])))
        p('s_waitcnt lgkmcnt(0)')
        p.stamp(13)
        p('s_barrier')
        p.stamp(2)
        if wqpos == 1: early()
        p('ds_read_b128 %s, %s' % (R(red, 0, 4), R(t[4])))
        p('ds_read_b128 %s, %s offset:16' % (R(red, 4, 4), R(t[4])))
        m = [R(red, 2 * k) for k in range(4)]; q = [R(red, 2 * k + 1) for k in range(4)]
        p('v_add_f32 %s, %s, %s' % (a0, m[0], m[1])); p('v_add_f32 %s, %s, %s' % (a1, m[2], m[3]))
        p('v_add_f32 %s, %s, %s' % (mean, a0, a1)); p('v_mul_f32 %s, 0x%x, %s' % (mean, f2u(0.25), mean))
        p('v_add_f32 %s, %s, %s' % (a0, q[0], q[1])); p('v_add_f32 %s, %s, %s' % (a1, q[2], q[3]))
        p('v_add_f32 %s, %s, %s' % (var, a0, a1))
        for k in range(4): p('v_sub_f32 %s, %s, %s' % (m[k], m[k], mean))
        p('v_mul_f32 %s, %s, %s' % (a0, m[0], m[0]))
        for k in range(1, 4): p('v_fmac_f32 %s, %s, %s' % (a0, m[k], m[k]))
        p('v_fmamk_f32 %s, %s, 0x%x, %s' % (var, a0, f2u(256.0), var))
        p('v_mul_f32 %s, 0x%x, %s' % (var, f2u(1.0 / 1024), var))
        if mimic == 0:
            p('v_add_f32 %s, 0x%x, %s' % (var, f2u(1e-5), var))
            p('v_rsq_f32 %s, %s' % (sd, var))
        else:
            ln_scalars(p, mean, var, sd, rcp)
            if mimic < 3: p('v_mov_b32 %s, %s' % (sd, rcp))
        for i in range(0, 32, 2): p('v_pk_add_f32 %s, %s, %s op_sel_hi:[1,0] neg_lo:[0,1] neg_hi:[0,1]' % (R(x, i, 2), R(x, i, 2), R(t[0], 0, 2)))
        if mimic >= 2:
            for i in range(0, 32, 2): rb2(p, X[i], X[i + 1], a0)
        if mimic < 3:
            for i in range(0, 32, 2): p('v_pk_mul_f32 %s, %s, %s op_sel_hi:[1,0]' % (R(x, i, 2), R(x, i, 2), R(t[2], 0, 2)))
        else:
            for i in range(32):
                tt = R(red, i % 4)
                p('v_mul_f32 %s, %s, %s' % (tt, X[i], rcp))
                p('v_fma_f32 %s, -%s, %s, %s' % (X[i], tt, sd, X[i]))
                p('v_fma_f32 %s, %s, %s, %s' % (X[i], X[i], rcp, tt))
        if mimic >= 2:
            for i in range(0, 32, 2): rb2(p, X[i], X[i + 1], a0)
        v16 = R(t[7])
        p('v_lshlrev_b32 %s, 1, %s' % (v16, R(v_mo)))
        p('v_add_u32 %s, 0x%x, %s' % (v16, L_MOD, v16))
        p('v_lshlrev_b32 %s, 4, %s' % (R(v_so), R(v_mo)))
        p('v_lshl_add_u32 %s, %s, 4, %s' % (R(v_so), R(v_r), R(v_so)))
        p('s_lshr_b32 s23, s2, 1'); p('s_lshl_b32 s23, s23, 15')
        p('s_and_b32 s24, s2, 1'); p('s_lshl_b32 s24, s24, 7')
        p('s_add_u32 s23, s23, s24')
        if WS_H: p('s_add_u32 s23, s23, 0x%x' % WS_H)
        if wqpos == 2: early()
        p.stamp(3)
        p('s_barrier')
        p.stamp(4)
        for i in range(4):
            for hf in range(2):
                p('ds_read_b128 %s, %s offset:%d' % (R(c1, 8 * i + 4 * hf, 4), v16, 4096 + i * 256 + hf * 16))
                p('ds_read_b128 %s, %s offset:%d' % (R(sh, 8 * i + 4 * hf, 4), v16, i * 256 + hf * 16))
        for i in range(4):
            if mimic >= 2:
                for k in range(0, 8, 2): p('v_pk_mul_f32 %s, %s, %s' % (R(x, 8 * i + k, 2), R(x, 8 * i + k, 2), R(c1, 8 * i + k, 2)))
                for k in range(0, 8, 2): rb2(p, X[8 * i + k], X[8 * i + k + 1], a0)
                for k in range(0, 8, 2): p('v_pk_add_f32 %s, %s, %s' % (R(x, 8 * i + k, 2), R(x, 8 * i + k, 2), R(sh, 8 * i + k, 2)))
            else:
                for k in range(0, 8, 2): p('v_pk_fma_f32 %s, %s, %s, %s' % (R(x, 8 * i + k, 2), R(x, 8 * i + k, 2), R(c1, 8 * i + k, 2), R(sh, 8 * i + k, 2)))
            for d in range(4):
                p('v_cvt_pk_bf16_f32 %s, %s, %s' % (R(xr[i], d), X[8 * i + 2 * d], X[8 * i + 2 * d + 1]))
            p('s_add_u32 s24, s23, %d' % (i * 2048))
            p('buffer_store_dwordx4 %s, %s, s[8:11], s24 offen sc1' % (R(xr[i], 0, 4), R(v_so)), 'hst')
        p.stamp(5)
        if wqpos == 3: early()
        if 'h' in fl128:
            p('s_lshl_b32 s26, s2, 2'); p('s_add_u32 s26, s26, s3'); p('s_lshl_b32 s26, s26, 7'); p('s_add_u32 s26, s26, 0x%x' % WS_HF2)
        else:
            p('s_lshl_b32 s26, s2, 7'); p('s_lshl_b32 s27, s3, 2'); p('s_add_u32 s26, s26, s27'); p('s_add_u32 s26, s26, 0x%x' % WS_HF)
        p('v_mov_b32 %s, s14' % R(v_e))
        p.wait_tag('hst')
        p('s_mov_b64 exec, 1')
        p('buffer_store_dword %s, %s, s[8:11], s26 offen sc1' % (R(v_e), R(zero)), 'hfl')
        p('s_mov_b64 exec, -1')
        if wqpos == 5: early()
        if fack: p.wait_tag('hfl')
        p.stamp(6)

    def spf():
        if not spf_rows: return
        p('s_lshr_b32 s22, s2, 3'); p('s_lshl_b32 s22, s22, 2'); p('s_add_u32 s22, s22, s19')
        p('s_lshl_b32 s22, s22, 13')
        p('s_and_b32 s23, s2, 3'); p('s_lshl_b32 s23, s23, 11'); p('s_add_u32 s22, s22, s23')
        for n in range(spf_rows // 128):
            if n: p('s_add_u32 s22, s22, 0x100000')
            for l in range(16):
                p.raw('s_load_dword s63, s[38:39], s22 offset:0x%x' % (l * 128))
    def front_B():
        F = RA('v', BASE, 256)
        v_e = F.alloc(1); zero = F.alloc(4, 4); v_wo = F.alloc(1); v_co = F.alloc(1); v_m = F.alloc(1)
        t = [F.alloc(1) for _ in range(10)]
        w = [F.alloc(4, 4) for _ in range(4)]
        cs = F.alloc(4, 4); ac = F.alloc(8, 4); u = F.alloc(8, 4)
        g = [F.alloc(4, 4) for _ in range(4)]
        mp = F.alloc(32, 4)
        p('s_and_b32 s20, s2, 7'); p('s_lshl_b32 s20, s20, 3'); p('s_bfe_u32 s21, s2, 0x30003'); p('s_add_u32 s20, s20, s21')
        p('s_lshr_b32 s21, s2, 6')
        p('v_lshrrev_b32 %s, 2, %s' % (R(t[0]), vid))
        p('v_mul_u32_u24 %s, %d, %s' % (R(v_wo), 4 * 12288, R(t[0])))
        p('v_and_b32 %s, 3, %s' % (R(t[1]), vid))
        p('v_lshl_add_u32 %s, %s, 4, %s' % (R(v_wo), R(t[1]), R(v_wo)))
        p('v_lshlrev_b32 %s, 3, %s' % (R(v_co), R(t[0])))
        p('s_mul_i32 s22, s21, %d' % (256 * 12288))
        p('s_lshl_b32 s23, s20, 6')
        p('s_add_u32 s22, s22, s23')
        p('s_lshl_b32 s24, s21, 9')
        for i in range(4): p('v_mov_b32 %s, 0' % R(zero, i))
        p('v_lshlrev_b32 %s, %d, %s' % (R(t[2]), 4 if mlp2 else 3, vid))
        p('s_lshl_b32 s26, s2, %d' % (12 if mlp2 else 11))
        p('s_add_u32 s26, s26, 0x%x' % WS_YP2)
        p('s_sub_u32 s19, s3, 4')
        p('v_mov_b32 %s, 0x%x' % (R(t[8]), L_CNT))
        p('ds_write_b32 %s, %s' % (R(t[8]), R(zero)))
        p('s_waitcnt lgkmcnt(0)')
        p.stamp(0)
        p('s_mov_b64 s[8:9], s[60:61]')
        for l in mksrd(p, QX, 'c', 2048): p(l)
        for l in mksrd(p, QY, 'wmod', 1024 * 6144 * 2): p(l)
        for l in mksrd(p, 4, 'wq', 0x800000): p(l)
        zst = 'buffer_store_dwordx%d %s, %s, s[8:11], s26 offen sc1' % (4 if mlp2 else 2, R(zero, 0, 4 if mlp2 else 2), R(t[2]))
        if zfirst: p(zst)
        p('buffer_load_dwordx2 %s, %s, %s, s24 offen' % (R(cs, 0, 2), R(v_co), SR(QX)))
        for i in range(4):
            p('s_add_u32 s25, s22, %d' % (i * 12288))
            p('buffer_load_dwordx4 %s, %s, %s, s25 offen' % (R(w[i], 0, 4), R(v_wo), SR(QY)))
        epoch_load(R(v_e), R(zero))
        if not zfirst: p(zst)
        if cpf:
            p('s_cmp_lg_u32 s3, 4')
            p('s_cbranch_scc1 %s_ncp' % name)
            p.raw('s_getpc_b64 s[22:23]')
            p.label('%s_pc' % name)
            p.raw('s_add_u32 s22, s22, %s_start-%s_pc' % (name, name))
            p.raw('s_addc_u32 s23, s23, -1')
            p('s_lshr_b32 s24, s2, 3'); p('s_lshl_b32 s24, s24, 12')
            p('v_lshl_add_u32 %s, %s, 7, s24' % (R(t[4]), lane))
            p('v_min_u32 %s, %s_end-%s_start, %s' % (R(t[4]), name, name, R(t[4])))
            p('s_mov_b64 exec, 0xffffffff')
            p.raw('global_load_dword %s, %s, s[22:23]' % (R(v_pfd), R(t[4])))
            p('s_mov_b64 exec, -1')
            p.label('%s_ncp' % name)
        p('s_barrier')
        p('v_lshrrev_b32 %s, 4, %s' % (R(t[3]), lane))
        p.stamp(1)
        unpack(p, R(cs, 2), R(cs, 3), R(cs, 1))
        unpack(p, R(cs, 0), R(cs, 1), R(cs, 0))
        for i in range(4): silu(p, R(cs, i), R(u, i))
        rb2(p, R(cs, 0), R(cs, 1), R(u, 0)); rb2(p, R(cs, 2), R(cs, 3), R(u, 1))
        p.stamp(12)
        for i in range(4):
            for d in range(4): unpack(p, R(u, 2 * d), R(u, 2 * d + 1), R(w[i], d))
            for e in range(8):
                if i == 0: p('v_mul_f32 %s, %s, %s' % (R(ac, e), R(cs, i), R(u, e)))
                else: p('v_fmac_f32 %s, %s, %s' % (R(ac, e), R(cs, i), R(u, e)))
        for e in range(4): p('v_permlane32_swap_b32 %s, %s' % (R(ac, e), R(ac, 4 + e)))
        for e in range(4): p('v_add_f32 %s, %s, %s' % (R(ac, e), R(ac, e), R(ac, 4 + e)))
        for e in range(2): p('v_permlane16_swap_b32 %s, %s' % (R(ac, e), R(ac, 2 + e)))
        for e in range(2): p('v_add_f32 %s, %s, %s' % (R(ac, e), R(ac, e), R(ac, 2 + e)))
        for n in (8, 4):
            for e in range(2): ror_add(p, R(ac, e), n)
        p('v_lshlrev_b32 %s, 5, %s' % (R(t[5]), R(t[1])))
        p('v_lshl_add_u32 %s, %s, 3, %s' % (R(t[5]), R(t[3]), R(t[5])))
        p('s_lshl_b32 s26, s19, 7'); p('s_add_u32 s26, s26, 0x%x' % L_GP)
        p('v_add_u32 %s, s26, %s' % (R(t[5]), R(t[5])))
        p('ds_write_b64 %s, %s' % (R(t[5]), R(ac, 0, 2)))
        p('v_mov_b32 %s, 1' % R(t[9]))
        p('s_mov_b64 exec, 1')
        p('ds_add_rtn_u32 %s, %s, %s' % (R(t[9]), R(t[8]), R(t[9])))
        p('s_mov_b64 exec, -1')
        nonce_from(R(v_e))
        p('v_add_u32 %s, 0x%x, %s' % (R(t[6]), L_GP, R(v_l16)))
        p('v_readfirstlane_b32 s26, %s' % R(t[9]))
        p.stamp(13)
        if spf_pos == 0: spf()
        p('s_cmp_lg_u32 s26, 3')
        p('s_cbranch_scc1 %s_np' % name)
        for k in range(4): p('ds_read_b128 %s, %s offset:%d' % (R(g[k], 0, 4), R(t[6]), k * 128))
        p('v_mov_b32 %s, 0xff' % R(v_m))
        p('s_lshl_b32 s26, s21, 13'); p('s_lshl_b32 s27, s20, 7'); p('s_add_u32 s26, s26, s27')
        p('s_add_u32 s26, s26, 0x%x' % WS_MG)
        for a, b in ((0, 1), (2, 3), (0, 2)):
            for h in range(2): p('v_pk_add_f32 %s, %s, %s' % (R(g[a], 2 * h, 2), R(g[a], 2 * h, 2), R(g[b], 2 * h, 2)))
        for k in range(4):
            if k: p('s_lshr_b32 s27, s14, %d' % (8 * k))
            p('v_bfi_b32 %s, %s, %s, %s' % (R(g[0], k), R(v_m), 's27' if k else 's14', R(g[0], k)))
        p('s_mov_b64 exec, 0xff')
        p('buffer_store_dwordx4 %s, %s, s[8:11], s26 offen sc1' % (R(g[0], 0, 4), R(v_l16)))
        p('s_mov_b64 exec, -1')
        p.stamp(14)
        p('s_waitcnt vmcnt(0)')
        p.label('%s_np' % name)
        if spf_pos == 1: spf()
        if presilu:
            cs2 = (mx[0], mx[1]); m2 = (mx[0], mx[1] + 8)
            for l in mksrd(p, QX, 'c', 2048): p(l)
            p('v_lshrrev_b32 %s, 1, %s' % (R(t[4]), vid)); p('v_lshlrev_b32 %s, 4, %s' % (R(t[4]), R(t[4])))
            p('buffer_load_dwordx4 %s, %s, %s, 0 offen' % (R(m2, 0, 4), R(t[4]), SR(QX)))
            for d in range(4): unpack(p, R(cs2, 2 * d), R(cs2, 2 * d + 1), R(m2, d))
            for i in range(8): silu(p, R(cs2, i), R(m2, 4 + i % 4))
            for i in range(0, 8, 2): rb2(p, R(cs2, i), R(cs2, i + 1), R(m2, 4))
        p('s_waitcnt vmcnt(0)')
        p.stamp(2)
        p('s_barrier')
        p.stamp(3)
        v16 = R(t[7]); bad = R(t[4]); pa, pb = R(t[5]), R(t[6]); tmp = R(t[0])
        p('v_lshlrev_b32 %s, 4, %s' % (v16, vid))
        p('s_mov_b32 s24, 0x0c0c0400'); p('s_mov_b32 s25, 0x04000c0c')
        def gl():
            for k in range(4):
                for hf in range(2):
                    p('s_mov_b32 s21, 0x%x' % (WS_MG + k * 8192 + hf * 4096))
                    p('buffer_load_dwordx4 %s, %s, s[8:11], s21 offen sc1' % (R(mp, (k * 2 + hf) * 4, 4), v16))
        def gt():
            for g in range(8):
                p('v_perm_b32 %s, %s, %s, s24' % (pa, R(mp, 4 * g + 1), R(mp, 4 * g)))
                p('v_perm_b32 %s, %s, %s, s25' % (pb, R(mp, 4 * g + 3), R(mp, 4 * g + 2)))
                p('v_or_b32 %s, %s, %s' % (pa, pa, pb))
                if g == 0: p('v_xor_b32 %s, s14, %s' % (bad, pa))
                else:
                    p('v_xor_b32 %s, s14, %s' % (pa, pa))
                    p('v_or_b32 %s, %s, %s' % (bad, bad, pa))
            p('v_cmp_ne_u32 vcc, 0, %s' % bad)
        poll('g', gl, gt, gsleep)
        p.stamp(4)
        for i in range(32): p('v_and_b32 %s, 0xffffff00, %s' % (R(mp, i), R(mp, i)))
        for step in (16, 8):
            for i in range(0, step, 2): p('v_pk_add_f32 %s, %s, %s' % (R(mp, i, 2), R(mp, i, 2), R(mp, step + i, 2)))
        for i in range(0, 8, 2): rb2(p, R(mp, i), R(mp, i + 1), tmp)
        for i in range(4, 8): p('v_add_f32 %s, 1.0, %s' % (R(mp, i), R(mp, i)))
        for i in range(4, 8, 2): rb2(p, R(mp, i), R(mp, i + 1), tmp)
        p('v_add_u32 %s, 0x%x, %s' % (v16, L_MOD, v16))
        p('ds_write_b128 %s, %s' % (v16, R(mp, 0, 4)))
        p('ds_write_b128 %s, %s offset:4096' % (v16, R(mp, 4, 4)))
        p('s_waitcnt lgkmcnt(0)')
        p.stamp(5)
        p('s_barrier')
        if wqpos == 4:
            p('s_sub_u32 s19, s3, 4')
            p('s_lshl_b32 s16, s19, 17'); p('s_lshl_b32 s17, s19, 12')
            p('s_lshl_b32 s19, s12, 8')
            p('s_add_u32 s4, s38, s19'); p('s_addc_u32 s5, s39, 0'); p('s_sub_u32 s6, 0x800000, s19'); p('s_mov_b32 s7, 0x20000')
            early()

    def add_kv(sc):
        kd = (S[1][0], S[1][1]); ke = (S[1][0], S[1][1] + 4); tt = [R(S[1], 12 + i) for i in range(4)]
        def issue(p):
            p('s_sub_u32 s19, s3, 4')
            p('s_lshl_b32 s25, s2, 2'); p('s_add_u32 s63, s25, s19')
            p('s_lshr_b32 s20, s63, 8')
            p('s_bfe_u32 s21, s63, 0x40004')
            p('s_and_b32 s24, s63, 15')
            p('s_lshl_b32 s20, s20, 19'); p('s_lshl_b32 s21, s21, 13'); p('s_add_u32 s20, s20, s21')
            p('s_add_u32 s20, s20, %d' % (1536 * 256))
            p('v_and_b32 %s, 15, %s' % (tt[0], lane))
            p('v_lshrrev_b32 %s, 4, %s' % (tt[1], lane))
            for l in mksrd(p, QZ, 'k', 2097152): p(l)
            p('s_cmp_lt_u32 s24, 8'); p('s_cselect_b32 s%d, s%d, 0' % (QZ + 2, QZ + 2))
            p('v_lshlrev_b32 %s, 8, %s' % (tt[2], tt[0]))
            p('v_lshl_add_u32 %s, %s, 3, %s' % (tt[2], tt[1], tt[2]))
            p('s_and_b32 s26, s24, 1'); p('s_lshl_b32 s26, s26, 12'); p('s_add_u32 s21, s20, s26')
            p('s_bfe_u32 s26, s24, 0x20001'); p('s_lshl_b32 s26, s26, 6'); p('s_add_u32 s21, s21, s26')
            p('buffer_load_dwordx2 %s, %s, %s, s21 offen' % (R(kd, 0, 2), tt[2], SR(QZ)))
            p('buffer_load_dwordx2 %s, %s, %s, s21 offen offset:32' % (R(kd, 2, 2), tt[2], SR(QZ)))
            for l in mksrd(p, QX, 'v', 2097152): p(l)
            p('s_cmp_ge_u32 s24, 8'); p('s_cselect_b32 s%d, s%d, 0' % (QX + 2, QX + 2))
            p('s_and_b32 s26, s24, 7'); p('s_lshl_b32 s26, s26, 5'); p('s_add_u32 s20, s20, s26')
            p('s_add_u32 s26, s20, 4096')
            p('v_lshlrev_b32 %s, 10, %s' % (tt[3], tt[1]))
            p('v_lshl_add_u32 %s, %s, 1, %s' % (tt[3], tt[0], tt[3]))
            for e in range(8):
                p('buffer_load_ushort %s, %s, %s, %s offen offset:%d' % (R(ke, e), tt[3], SR(QX), 's26' if e >= 4 else 's20', (e % 4) * 256))
        def store(p):
            if kscale:
                p('s_mov_b32 s26, 0x%x' % f2u((128 ** -0.5) * math.log2(math.e)))
                for d in range(4):
                    a_, b_ = tt[(2 * d) % 4], tt[(2 * d + 1) % 4]
                    unpack(p, a_, b_, R(kd, d))
                    p('v_mul_f32 %s, s26, %s' % (a_, a_)); p('v_mul_f32 %s, s26, %s' % (b_, b_))
                    p('v_cvt_pk_bf16_f32 %s, %s, %s' % (R(kd, d), a_, b_))
            for d in range(4):
                p('v_lshl_or_b32 %s, %s, 16, %s' % (R(ke, 2 * d), R(ke, 2 * d + 1), R(ke, 2 * d)))
                p('v_or_b32 %s, %s, %s' % (R(kd, d), R(kd, d), R(ke, 2 * d)))
            p('s_lshl_b32 s27, s63, 10'); p('s_add_u32 s27, s27, 0x%x' % WS_KV)
            p('buffer_store_dwordx4 %s, %s, s[8:11], s27 offen sc1' % (R(kd, 0, 4), R(v_l16)), 'kvst')
        def flag(p):
            p('s_lshl_b32 s26, s63, 2'); p('s_add_u32 s26, s26, 0x%x' % WS_KVF)
            p('v_mov_b32 %s, s14' % tt[0]); p('v_mov_b32 %s, 0' % tt[1])
            p.wait_tag('kvst')
            p('s_mov_b64 exec, 1')
            p('buffer_store_dword %s, %s, s[8:11], s26 offen sc1' % (tt[0], tt[1]))
            p('s_mov_b64 exec, -1')
            p('s_nop 3')
        sc.place(kvpos[0], issue); sc.place(kvpos[1], store); sc.place(kvpos[2], flag)

    def wait_h(role):
        a, b = R(v_t[0]), R(v_t[1])
        p('s_lshl_b32 s26, s13, 5'); p('s_lshl_b32 s25, s3, 2'); p('s_add_u32 s26, s26, s25')
        if 'h' in fl128:
            p('v_and_b32 %s, 15, %s' % (a, lane)); p('v_lshlrev_b32 %s, 7, %s' % (a, a))
            p('s_lshl_b32 s26, s26, 9'); p('s_add_u32 s26, s26, 0x%x' % WS_HF2)
        else:
            p('v_bfe_u32 %s, %s, 2, 2' % (a, lane)); p('v_lshlrev_b32 %s, 7, %s' % (a, a))
            p('v_and_b32 %s, 3, %s' % (b, lane)); p('v_lshl_add_u32 %s, %s, 2, %s' % (a, b, a))
            p('s_lshl_b32 s26, s26, 7'); p('s_add_u32 s26, s26, 0x%x' % WS_HF)
        poll('h' + role, lambda: p('buffer_load_dword %s, %s, s[8:11], s26 offen sc1' % (b, a)),
             lambda: p('v_cmp_ne_u32 vcc, s14, %s' % b), hsleep)
    kva = [R(v_wt[0]), R(v_wt[1]), R(v_wt[2]), R(v_pf)]
    def kv_flag_loads(p_):
        p('s_lshr_b32 s26, s12, 3'); p('s_lshl_b32 s26, s26, 10'); p('s_add_u32 s62, s26, 0x%x' % WS_KVF)
        for k in range(4): p('buffer_load_dword %s, %s, s[8:11], s62 offen offset:%d sc1' % (kva[k], R(v_l16), 4 * k))
    def kv_flag_check(p_):
        a = kva
        def ts(q):
            for k in range(4): q('v_xor_b32 %s, s14, %s' % (a[k], a[k]))
            q('v_or3_b32 %s, %s, %s, %s' % (a[0], a[0], a[1], a[2])); q('v_or_b32 %s, %s, %s' % (a[0], a[0], a[3]))
            q('v_cmp_ne_u32 vcc, 0, %s' % a[0])
        ts(p)
        p('s_cbranch_vccz %s_kvg' % name)
        q = p.raw
        q('s_mov_b32 s27, 0')
        p.label('%s_kvp' % name)
        for k in range(4): q('buffer_load_dword %s, %s, s[8:11], s62 offen offset:%d sc1' % (a[k], R(v_l16), 4 * k))
        q('s_waitcnt vmcnt(0)')
        ts(q)
        q('s_add_u32 s27, s27, 1'); q('s_cmp_ge_u32 s27, %d' % SPIN_MAX)
        q('s_nop 4')
        q('s_cbranch_scc1 %s_kvg' % name)
        q('s_cbranch_vccnz %s_kvp' % name)
        p.label('%s_kvg' % name)

    XR = [(Hx[i // 4][0], Hx[i // 4][1] + 4 * (i % 4)) for i in range(8)]
    Wt = XR + [(mx[0], mx[1] + 4 * i) for i in range(4)] + [ones, (negm[0], negm[1] + 8), (negm[0], negm[1] + 12), (negm[0], negm[1])]
    def wsetup(p, A_):
        t0, t1, t2 = R(v_pf), R(v_pfd), R(v_wt[2])
        p('v_lshrrev_b32 %s, 3, %s' % (t0, vid)); p('v_and_b32 %s, 7, %s' % (t1, vid))
        if not A_:
            p('s_bfe_u32 s25, s2, 0x10002'); p('s_mul_i32 s25, s25, 28'); p('s_lshr_b32 s26, s2, 3'); p('s_add_u32 s25, s25, s26')
            p('s_lshl_b32 s25, s25, 7')
            p('s_bfe_u32 s24, s2, 0x10001'); p('s_mul_i32 s24, s24, %d' % (512 * 7168)); p('s_add_u32 s24, s24, s25')
            p('s_mov_b32 s26, %d' % (16 * 7168))
            p('v_mul_lo_u32 %s, s26, %s' % (t2, t0))
            p('v_lshl_add_u32 %s, %s, 4, %s' % (t2, t1, t2))
            p('s_bitcmp0_b32 s2, 0')
            p('s_cselect_b32 s%d, s46, s48' % QX); p('s_cselect_b32 s%d, s47, s49' % (QX + 1))
            p('s_cmp_lt_u32 s2, 224'); p('s_cselect_b32 s%d, 0x%x, 0' % (QX + 2, 1024 * 3584 * 2)); p('s_mov_b32 s%d, 0x20000' % (QX + 3))
        else:
            for l in mksrd(p, QX, 'wd', 7340032): p(l)
            p('v_mul_u32_u24 %s, %d, %s' % (t2, 7 * 2048, t0))
            p('v_lshl_add_u32 %s, %s, 4, %s' % (t2, t1, t2))
            p('s_and_b32 s24, s2, 7'); p('s_lshl_b32 s24, s24, 1'); p('s_lshr_b32 s26, s2, 7'); p('s_add_u32 s24, s24, s26')
            p('s_mul_i32 s24, s24, %d' % (224 * 2048))
            p('s_bfe_u32 s25, s2, 0x40003'); p('s_lshl_b32 s25, s25, 7'); p('s_add_u32 s24, s24, s25')
    def strip_of(dst, tmp):
        return ['s_and_b32 %s, s2, 7' % dst, 's_mul_i32 %s, %s, 28' % (dst, dst), 's_lshr_b32 %s, s2, 3' % tmp, 's_add_u32 %s, %s, %s' % (dst, dst, tmp)]
    def wsetup2(p):
        t0 = R(v_pfd)
        p('v_mov_b32 %s, s3' % t0); p('v_lshl_add_u32 %s, %s, 6, %s' % (t0, t0, lane))
        p('v_lshlrev_b32 %s, 2, %s' % (R(v_pf), t0))
        p('v_and_b32 %s, 1, %s' % (R(v_wt[2]), t0)); p('v_lshlrev_b32 %s, 4, %s' % (R(v_wt[2]), R(v_wt[2])))
        p('v_lshrrev_b32 %s, 1, %s' % (t0, t0)); p('v_mul_u32_u24 %s, %d, %s' % (t0, 4 * 7168, t0))
        p('v_add_u32 %s, %s, %s' % (R(v_wt[2]), R(v_wt[2]), t0))
        for l in strip_of('s24', 's26'): p(l)
        p('s_lshr_b32 s26, s2, 3'); p('s_cmp_lt_u32 s26, 28'); p('s_cselect_b32 s27, 7340032, 0')
        for q_, b_ in ((QX, 'wg'), (QY, 'wu'), (QZ, 'wd')):
            for l in mksrd(p, q_, b_, 0)[:1]: p(l)
            p('s_mov_b32 s%d, s27' % (q_ + 2)); p('s_mov_b32 s%d, 0x20000' % (q_ + 3))
    def wloads2():
        out = []
        for i in range(4):
            for mat, q_ in ((0, QX), (1, QY)):
                out.append((['s_lshl_b32 s25, s24, 5', 's_add_u32 s25, s25, %d' % (i * 7168)], 'buffer_load_dwordx4 %s, %s, %s, s25 offen' % (R(XR[4 * mat + i], 0, 4), R(v_wt[2]), SR(q_))))
        for r_ in range(16):
            out.append((['s_lshl_b32 s25, s24, 15', 's_add_u32 s25, s25, %d' % (r_ * 2048)], 'buffer_load_dword %s, %s, %s, s25 offen' % (R(mx, r_), R(v_pf), SR(QZ))))
        return out
    def wloads(A_):
        st = 2048 if A_ else 7168
        return [('s_add_u32 s25, s24, %d' % (i * st), 'buffer_load_dwordx4 %s, %s, %s, s25 offen' % (R(Wt[i], 0, 4), R(v_wt[2]), SR(QX))) for i in range(7 if A_ else 16)]
    SB_W, SB_SRC, SB_LDS, SB_DST, SB_STRIP, SB_KQ = 's96', 's97', 's98', 's99', 's100', 's101'
    def add_wot(sc):
        va, vb = R(v_wt[0]), R(v_wt[1])
        for i in range(8):
            at = 3 + 8 * burst + burst * i
            if i == 0:
                for l in mksrd(p, QZ, 'wo', 0x800000): sc.place(at, l)
            sc.place(at, 's_add_u32 s26, %s, %d' % (SB_SRC, i * 4 * 2048))
            sc.place(at, 's_add_u32 m0, %s, %d' % (SB_LDS, i * 1024))
            sc.place(at, 'buffer_load_dwordx4 %s, %s, s26 offen lds' % (va, SR(QZ)), 'wot')
        at0 = 16 * 12 + 1
        sc.place(at0, lambda p: p.wait_tag('wot'))
        for N in range(8):
            reg = XR[N]
            at = at0 + 4 * N
            for e in range(2):
                off = e * 4096 + (N // 2) * 256 + (N % 2) * 8
                sc.place(at, 'ds_read_b64_tr_b16 %s, %s offset:%d' % (R(reg, 2 * e, 2), vb, off))
            sc.place(at + 5, 's_add_u32 s26, %s, 0x%x' % (SB_DST, (N // 4) * 4096))
            sc.place(at + 5, 'buffer_store_dwordx4 %s, %s, s[8:11], s26 offen offset:%d %s' % (R(reg, 0, 4), R(v_l16), (N % 4) * 1024, ost))
    def setup_B():
        va, vb = R(v_wt[0]), R(v_wt[1])
        LB = 4096
        r_, g_, c_ = R(v_t[0]), R(v_t[1]), R(v_t[2])
        p('v_bfe_u32 %s, %s, 2, 2' % (r_, lane)); p('v_lshrrev_b32 %s, 4, %s' % (g_, lane)); p('v_and_b32 %s, 3, %s' % (c_, lane))
        p('v_lshlrev_b32 %s, 6, %s' % (va, g_)); p('v_lshl_add_u32 %s, %s, 4, %s' % (va, c_, va)); p('v_lshl_add_u32 %s, %s, 11, %s' % (va, r_, va))
        p('s_sub_u32 %s, s3, 4' % SB_W)
        p('s_lshr_b32 %s, s2, 1' % SB_SRC); p('s_lshl_b32 s27, %s, 13' % SB_SRC); p('s_lshl_b32 %s, %s, 16' % (SB_SRC, SB_SRC))
        p('s_and_b32 %s, s2, 1' % SB_DST); p('s_lshl_b32 %s, %s, 2' % (SB_DST, SB_DST)); p('s_add_u32 %s, %s, %s' % (SB_DST, SB_DST, SB_W))
        p('s_lshl_b32 %s, %s, 8' % (SB_LDS, SB_DST)); p('s_add_u32 %s, %s, %s' % (SB_SRC, SB_SRC, SB_LDS))
        p('s_mul_i32 %s, %s, %d' % (SB_DST, SB_DST, W_STRIDE)); p('s_add_u32 %s, %s, s27' % (SB_DST, SB_DST)); p('s_add_u32 %s, %s, 0x%x' % (SB_DST, SB_DST, WS_WOF))
        p('s_lshl_b32 %s, %s, 13' % (SB_LDS, SB_W))
        p('s_add_u32 %s, %s, %d' % (SB_LDS, SB_LDS, LB))
        p('v_lshlrev_b32 %s, 6, %s' % (vb, r_))
        p('v_lshl_add_u32 %s, %s, 4, %s' % (vb, c_, vb))
        p('v_lshl_add_u32 %s, %s, 10, %s' % (vb, g_, vb))
        p('v_add_u32 %s, %s, %s' % (vb, SB_LDS, vb))
        p('s_and_b32 %s, s2, 63' % SB_STRIP); p('s_lshr_b32 %s, s2, 6' % SB_KQ)
    def add_modcols(sc):
        w = XR
        cs = (mx[0], mx[1]); ma = (mx[0], mx[1] + 8)
        mu = [R(v_hoff), R(v_t[1]), R(v_kvoff), R(v_t[3])]
        ta, tb = R(v_t[4]), R(v_t[5])
        def issue(p):
            for l in mksrd(p, QX, 'c', 2048): p(l)
            for l in mksrd(p, QY, 'wmod', 1024 * 6144 * 2): p(l)
            p('v_lshrrev_b32 %s, 3, %s' % (ta, vid))
            p('v_lshlrev_b32 %s, 4, %s' % (tb, ta))
            p('s_lshl_b32 s26, %s, 9' % SB_KQ)
            p('buffer_load_dwordx4 %s, %s, %s, s26 offen' % (R(ma, 0, 4), tb, SR(QX)))
            p('s_mov_b32 s26, %d' % (8 * 12288))
            p('v_mul_lo_u32 %s, s26, %s' % (ta, ta))
            p('v_and_b32 %s, 7, %s' % (tb, vid))
            p('v_lshl_add_u32 %s, %s, 4, %s' % (ta, tb, ta))
            p('s_mul_i32 s27, %s, %d' % (SB_KQ, 256 * 12288))
            p('s_lshl_b32 s26, %s, 7' % SB_STRIP)
            p('s_add_u32 s27, s27, s26')
            p('s_add_u32 s25, s27, 4096')
        sc.place(1, issue)
        for i in range(8):
            at = 3 + burst * i
            sc.place(at, 's_add_u32 s26, s25, %d' % (i * 12288))
            sc.place(at, 'buffer_load_dwordx4 %s, %s, %s, s26 offen' % (R(w[i], 0, 4), ta, SR(QY)))
        q = L()
        for d in range(4): unpack(q, R(cs, 2 * d), R(cs, 2 * d + 1), R(ma, d))
        for i in range(8): silu(q, R(cs, i), mu[i % 4])
        for i in range(0, 8, 2): rb2(q, R(cs, i), R(cs, i + 1), mu[0])
        for i in range(8):
            for hf in range(2):
                for d in range(2): unpack(q, mu[2 * d], mu[2 * d + 1], R(w[i], 2 * hf + d))
                for e in range(4):
                    if i == 0: q('v_mul_f32 %s, %s, %s' % (R(ma, 4 * hf + e), R(cs, i), mu[e]))
                    else: q('v_fmac_f32 %s, %s, %s' % (R(ma, 4 * hf + e), R(cs, i), mu[e]))
        for e in range(4): q('v_permlane32_swap_b32 %s, %s' % (R(ma, e), R(ma, 4 + e)))
        for e in range(4): q('v_add_f32 %s, %s, %s' % (R(ma, e), R(ma, e), R(ma, 4 + e)))
        for e in range(2): q('v_permlane16_swap_b32 %s, %s' % (R(ma, e), R(ma, 2 + e)))
        for e in range(2): q('v_add_f32 %s, %s, %s' % (R(ma, e), R(ma, e), R(ma, 2 + e)))
        for e in range(2): ror_add(q, R(ma, e), 8)
        q('v_lshrrev_b32 %s, 6, %s' % (ta, vid))
        q('v_lshlrev_b32 %s, 8, %s' % (ta, ta))
        q('v_lshl_add_u32 %s, %s, 5, %s' % (ta, tb, ta))
        q('v_bfe_u32 %s, %s, 4, 2' % (tb, vid))
        q('v_lshl_add_u32 %s, %s, 3, %s' % (ta, tb, ta))
        q('ds_write_b64 %s, %s' % (ta, R(ma, 0, 2)))
        lo, hi = 16 * 9, 16 * 12 - 1
        for i, o in enumerate(q.l): sc.place(lo + (i * (hi - lo)) // len(q.l), o)
        sc.place(hi + 4, 's_waitcnt lgkmcnt(0)')
        def fin(p):
            p('v_lshlrev_b32 %s, 2, %s' % (ta, lane))
            for i in range(4): p('ds_read_b32 %s, %s offset:%d' % (R(ma, i), ta, i * 256))
        sc.place(16 * 13 + 2, fin)
        def fin2(p):
            for i in range(2): p('v_add_f32 %s, %s, %s' % (R(ma, i), R(ma, i), R(ma, 2 + i)))
            p('v_add_f32 %s, %s, %s' % (R(ma, 0), R(ma, 0), R(ma, 1)))
            p('s_lshl_b32 s26, %s, 14' % SB_KQ)
            p('s_lshl_b32 s27, %s, 8' % SB_STRIP)
            p('s_add_u32 s26, s26, s27')
            p('s_add_u32 s26, s26, 0x%x' % WS_MODP2)
            p('s_cmp_eq_u32 s3, 4'); p('s_cselect_b32 s26, s26, 0x7ffffff0')
            p('buffer_store_dword %s, %s, s[8:11], s26 offen sc1' % (R(ma, 0), ta))
        sc.place(16 * 13 + 8, fin2)

    L_MC = 49152
    def add_modcols2(sc):
        w = XR
        cs = (mx[0], mx[1]); ma = (mx[0], mx[1] + 8)
        mu = [R(v_hoff), R(v_t[1]), R(v_kvoff), R(v_t[3])]
        ta, tb = R(v_t[4]), R(v_t[5])
        SL = SB_STRIP
        def issue(p):
            for l in mksrd(p, QX, 'c', 2048): p(l)
            for l in mksrd(p, QY, 'wmod', 1024 * 6144 * 2): p(l)
            p('s_and_b32 %s, s2, 7' % SL); p('s_lshl_b32 %s, %s, 5' % (SL, SL)); p('s_lshr_b32 s26, s2, 3'); p('s_add_u32 %s, %s, s26' % (SL, SL))
            p('v_lshrrev_b32 %s, 1, %s' % (ta, vid))
            if not presilu:
                p('v_lshlrev_b32 %s, 4, %s' % (tb, ta))
                p('buffer_load_dwordx4 %s, %s, %s, 0 offen' % (R(ma, 0, 4), tb, SR(QX)))
            p('s_mov_b32 s26, %d' % (8 * 12288))
            p('v_mul_lo_u32 %s, s26, %s' % (ta, ta))
            p('v_and_b32 %s, 1, %s' % (tb, vid))
            p('v_lshl_add_u32 %s, %s, 4, %s' % (ta, tb, ta))
            p('s_lshl_b32 s25, %s, 5' % SL)
            p('s_add_u32 s25, s25, 4096')
        sc.place(1, issue)
        for i in range(8):
            at = 3 + burst * i
            sc.place(at, 's_add_u32 s26, s25, %d' % (i * 12288))
            sc.place(at, 'buffer_load_dwordx4 %s, %s, %s, s26 offen' % (R(w[i], 0, 4), ta, SR(QY)))
        q = L()
        if not presilu:
            for d in range(4): unpack(q, R(cs, 2 * d), R(cs, 2 * d + 1), R(ma, d))
            for i in range(8): silu(q, R(cs, i), mu[i % 4])
            for i in range(0, 8, 2): rb2(q, R(cs, i), R(cs, i + 1), mu[0])
        for i in range(8):
            for hf in range(2):
                for d in range(2): unpack(q, mu[2 * d], mu[2 * d + 1], R(w[i], 2 * hf + d))
                for e in range(4):
                    if i == 0: q('v_mul_f32 %s, %s, %s' % (R(ma, 4 * hf + e), R(cs, i), mu[e]))
                    else: q('v_fmac_f32 %s, %s, %s' % (R(ma, 4 * hf + e), R(cs, i), mu[e]))
        for e in range(4): q('v_permlane32_swap_b32 %s, %s' % (R(ma, e), R(ma, 4 + e)))
        for e in range(4): q('v_add_f32 %s, %s, %s' % (R(ma, e), R(ma, e), R(ma, 4 + e)))
        for e in range(2): q('v_permlane16_swap_b32 %s, %s' % (R(ma, e), R(ma, 2 + e)))
        for e in range(2): q('v_add_f32 %s, %s, %s' % (R(ma, e), R(ma, e), R(ma, 2 + e)))
        for n_ in (8, 4, 2):
            for e in range(2): ror_add(q, R(ma, e), n_)
        q('v_lshrrev_b32 %s, 6, %s' % (ta, vid))
        q('v_lshlrev_b32 %s, 6, %s' % (ta, ta))
        q('v_lshl_add_u32 %s, %s, 5, %s' % (ta, tb, ta))
        q('v_bfe_u32 %s, %s, 4, 2' % (tb, vid))
        q('v_lshl_add_u32 %s, %s, 3, %s' % (ta, tb, ta))
        q('ds_write_b64 %s, %s offset:%d' % (ta, R(ma, 0, 2), L_MC))
        lo, hi = 16 * mc_at[0], 16 * mc_at[1] - 1
        for i, o in enumerate(q.l): sc.place(lo + (i * (hi - lo)) // len(q.l), o)
        sc.place(hi + 4, 's_waitcnt lgkmcnt(0)')
        def fin(p):
            p('v_and_b32 %s, 15, %s' % (ta, lane))
            p('v_lshlrev_b32 %s, 2, %s' % (ta, ta))
            for i in range(4): p('ds_read_b32 %s, %s offset:%d' % (R(ma, i), ta, L_MC + i * 64))
        sc.place(16 * (mc_at[1] + 1) + 2, fin)
        def fin2(p):
            for i in range(2): p('v_add_f32 %s, %s, %s' % (R(ma, i), R(ma, i), R(ma, 2 + i)))
            p('v_add_f32 %s, %s, %s' % (R(ma, 0), R(ma, 0), R(ma, 1)))
            rb1(p, R(ma, 0))
            p('s_lshr_b32 s26, %s, 6' % SL)
            p('s_cmp_eq_u32 s26, 2'); p('s_cselect_b32 s26, 1.0, 0')
            p('v_add_f32 %s, s26, %s' % (R(ma, 0), R(ma, 0)))
            rb1(p, R(ma, 0))
            p('v_or_b32 %s, 1, %s' % (R(ma, 0), R(ma, 0)))
            p('s_lshl_b32 s26, %s, 6' % SL)
            p('s_add_u32 s26, s26, 0x%x' % Z_MODF)
            p('s_cmp_eq_u32 s3, 4'); p('s_cselect_b32 s26, s26, 0x7ffffff0')
            p('s_mov_b64 exec, 0xffff')
            p('buffer_store_dword %s, %s, s[8:11], s26 offen sc1' % (R(ma, 0), ta))
            p('s_mov_b64 exec, -1')
            p('s_nop 3')
        sc.place(16 * (mc_at[1] + 1) + 8, fin2)

    L_MODS = 131072; L_GA = L_MODS + 8192
    def add_gather(sc, at1, at2):
        g = mx; pk = (negm[0], negm[1] + 8)
        tg, t0, t3 = R(v_pf), R(v_pfd), R(v_t[4])
        def ld(q):
            for v in range(4):
                q('s_mov_b32 s26, 0x%x' % (Z_MODF + v * 4096))
                q('buffer_load_dwordx4 %s, %s, s[8:11], s26 offen sc1' % (R(g, 4 * v, 4), tg))
        def ts(q):
            q('v_min3_u32 %s, %s, %s, %s' % (t3, R(g, 0), R(g, 1), R(g, 2)))
            for i in range(3, 15, 2): q('v_min3_u32 %s, %s, %s, %s' % (t3, t3, R(g, i), R(g, i + 1)))
            q('v_min_u32 %s, %s, %s' % (t3, t3, R(g, 15)))
            q('v_cmp_eq_u32 vcc, 0, %s' % t3)
        def issue(p):
            p('v_lshlrev_b32 %s, 4, %s' % (tg, vid))
            for l in mksrd(p, QY, 'wr', 2048): p(l)
            p('v_lshlrev_b32 %s, 3, %s' % (t0, vid))
            p('buffer_load_dwordx2 %s, %s, %s, 0 offen' % (R(pk, 6, 2), t0, SR(QY)))
            ld(p)
        def fin(p):
            ts(p)
            p('s_cbranch_vccz %s_mfg' % name)
            q = p.raw
            q('s_mov_b32 s27, 0')
            p.label('%s_mfp' % name)
            ld(q); q('s_waitcnt vmcnt(0)'); ts(q)
            q('s_add_u32 s27, s27, 1'); q('s_cmp_ge_u32 s27, %d' % SPIN_MAX); q('s_nop 4')
            q('s_cbranch_scc1 %s_mfg' % name)
            q('s_cbranch_vccnz %s_mfp' % name)
            p.label('%s_mfg' % name)
            p('s_mov_b32 s26, 0x07060302')
            for v in range(1, 4):
                for i in range(2): p('v_perm_b32 %s, %s, %s, s26' % (R(pk, 2 * (v - 1) + i), R(g, 4 * v + 2 * i + 1), R(g, 4 * v + 2 * i)))
            p('v_add_u32 %s, 0x%x, %s' % (t0, L_MODS, t0))
            for v in range(4): p('ds_write_b64 %s, %s offset:%d' % (t0, R(pk, 2 * v, 2), v * 2048))
            for i in range(4): p('v_and_b32 %s, 0xffff0000, %s' % (R(g, i), R(g, i)))
            p('v_add_u32 %s, 0x%x, %s' % (tg, L_GA, tg))
            p('ds_write_b128 %s, %s' % (tg, R(g, 0, 4)))
            p('s_waitcnt lgkmcnt(0)')
        sc.place(at1, issue); sc.place(at2, fin)

    Z_MP = Z_MODF
    def add_modcols1(sc):
        w = qf
        cs = (mx[0], mx[1]); ma = (mx[0], mx[1] + 8)
        mu = [R(negm, 0), R(v_t[1]), R(v_kvoff), R(v_t[3])]
        ta, tb = R(v_t[4]), R(v_t[5])
        assert AH1 == 2
        LS = 131072
        def issue(p):
            p('s_lshr_b32 s24, s2, 6')
            for l in mksrd(p, 20, 'c', 2048): p(l)
            for l in mksrd(p, QX, 'wmod', 1024 * 6144 * 2): p(l)
            p('v_lshrrev_b32 %s, 3, %s' % (ta, vid))
            p('v_lshlrev_b32 %s, 4, %s' % (tb, ta))
            p('s_lshl_b32 s26, s24, 9')
            p('buffer_load_dwordx4 %s, %s, s[20:23], s26 offen' % (R(ma, 0, 4), tb))
            p('s_mov_b32 s26, %d' % (8 * 12288))
            p('v_mul_lo_u32 %s, s26, %s' % (ta, ta))
            p('v_and_b32 %s, 7, %s' % (tb, vid))
            p('v_lshl_add_u32 %s, %s, 4, %s' % (ta, tb, ta))
            p('s_mul_i32 s27, s24, %d' % (256 * 12288))
            p('s_and_b32 s26, s2, 63'); p('s_lshl_b32 s26, s26, 7')
            p('s_add_u32 s27, s27, s26')
            p('s_add_u32 s25, s27, 4096')
        sc.place(m1_at[0], issue)
        for i in range(8):
            at = m1_at[0] + 2 + 4 * i
            sc.place(at, 's_add_u32 s26, s25, %d' % (i * 12288))
            sc.place(at, 'buffer_load_dwordx4 %s, %s, %s, s26 offen' % (R(w[i], 0, 4), ta, SR(QX)))
        q = L()
        for d in range(4): unpack(q, R(cs, 2 * d), R(cs, 2 * d + 1), R(ma, d))
        for i in range(8): silu(q, R(cs, i), mu[i % 4])
        for i in range(0, 8, 2): rb2(q, R(cs, i), R(cs, i + 1), mu[0])
        for i in range(8):
            for hf in range(2):
                for d in range(2): unpack(q, mu[2 * d], mu[2 * d + 1], R(w[i], 2 * hf + d))
                for e in range(4):
                    if i == 0: q('v_mul_f32 %s, %s, %s' % (R(ma, 4 * hf + e), R(cs, i), mu[e]))
                    else: q('v_fmac_f32 %s, %s, %s' % (R(ma, 4 * hf + e), R(cs, i), mu[e]))
        for e in range(4): q('v_permlane32_swap_b32 %s, %s' % (R(ma, e), R(ma, 4 + e)))
        for e in range(4): q('v_add_f32 %s, %s, %s' % (R(ma, e), R(ma, e), R(ma, 4 + e)))
        for e in range(2): q('v_permlane16_swap_b32 %s, %s' % (R(ma, e), R(ma, 2 + e)))
        for e in range(2): q('v_add_f32 %s, %s, %s' % (R(ma, e), R(ma, e), R(ma, 2 + e)))
        for e in range(2): ror_add(q, R(ma, e), 8)
        q('v_lshrrev_b32 %s, 6, %s' % (ta, vid))
        q('v_lshlrev_b32 %s, 8, %s' % (ta, ta))
        q('v_lshl_add_u32 %s, %s, 5, %s' % (ta, tb, ta))
        q('v_bfe_u32 %s, %s, 4, 2' % (tb, vid))
        q('v_lshl_add_u32 %s, %s, 3, %s' % (ta, tb, ta))
        q('v_add_u32 %s, 0x%x, %s' % (ta, LS, ta))
        q('ds_write_b64 %s, %s' % (ta, R(ma, 0, 2)))
        lo, hi = m1_at[1], m1_at[2]
        for i, o in enumerate(q.l): sc.place(lo + (i * (hi - lo)) // len(q.l), o)
        sc.place(hi + 2, 's_waitcnt lgkmcnt(0)')
        nb_ = (hi + 2) // 32 * 32 + 32 + 8
        def fin(p):
            p('v_lshlrev_b32 %s, 2, %s' % (ta, lane))
            p('v_add_u32 %s, 0x%x, %s' % (tb, LS, ta))
            for i in range(4): p('ds_read_b32 %s, %s offset:%d' % (R(ma, i), tb, i * 256))
        sc.place(nb_, fin)
        def fin2(p):
            for i in range(2): p('v_add_f32 %s, %s, %s' % (R(ma, i), R(ma, i), R(ma, 2 + i)))
            p('v_add_f32 %s, %s, %s' % (R(ma, 0), R(ma, 0), R(ma, 1)))
            p('v_or_b32 %s, 1, %s' % (R(ma, 0), R(ma, 0)))
            p('s_lshr_b32 s26, s2, 6'); p('s_lshl_b32 s26, s26, 14')
            p('s_and_b32 s27, s2, 63'); p('s_lshl_b32 s27, s27, 8')
            p('s_add_u32 s26, s26, s27')
            p('s_add_u32 s26, s26, 0x%x' % Z_MP)
            p('s_cmp_eq_u32 s3, 4'); p('s_cselect_b32 s26, s26, 0x7ffffff0')
            p('buffer_store_dword %s, %s, s[8:11], s26 offen sc1' % (R(ma, 0), ta))
        sc.place(nb_ + 10, fin2)
    def add_gather3(sc, at1, step):
        g = mx; pk = (negm[0], negm[1] + 8)
        tg, t0, t3 = R(v_pf), R(v_pfd), R(v_t[4])
        def setup(p):
            p('v_lshlrev_b32 %s, 4, %s' % (tg, vid))
            p('v_lshlrev_b32 %s, 3, %s' % (t0, vid))
            for l in mksrd(p, QY, 'wr', 2048): p(l)
            p('buffer_load_dwordx2 %s, %s, %s, 0 offen' % (R(pk, 2, 2), t0, SR(QY)))
            p('v_add_u32 %s, 0x%x, %s' % (t0, L_MODS, t0))
        sc.place(at1 - 1, setup)
        for v in range(4):
            def ld(q, v=v):
                for k in range(4):
                    q('s_mov_b32 s26, 0x%x' % (Z_MP + k * 16384 + v * 4096))
                    q('buffer_load_dwordx4 %s, %s, s[8:11], s26 offen sc1' % (R(g, 4 * k, 4), tg))
            def ts(q):
                q('v_min3_u32 %s, %s, %s, %s' % (t3, R(g, 0), R(g, 1), R(g, 2)))
                for i in range(3, 15, 2): q('v_min3_u32 %s, %s, %s, %s' % (t3, t3, R(g, i), R(g, i + 1)))
                q('v_min_u32 %s, %s, %s' % (t3, t3, R(g, 15)))
                q('v_cmp_eq_u32 vcc, 0, %s' % t3)
            def fin(p, v=v, ld=ld, ts=ts):
                ts(p)
                p('s_cbranch_vccz %s_m3g%d' % (name, v))
                q = p.raw
                q('s_mov_b32 s27, 0')
                p.label('%s_m3p%d' % (name, v))
                ld(q); q('s_waitcnt vmcnt(0)'); ts(q)
                q('s_add_u32 s27, s27, 1'); q('s_cmp_ge_u32 s27, %d' % SPIN_MAX); q('s_nop 4')
                q('s_cbranch_scc1 %s_m3g%d' % (name, v))
                q('s_cbranch_vccnz %s_m3p%d' % (name, v))
                p.label('%s_m3g%d' % (name, v))
                for i in range(0, 4, 2):
                    p('v_pk_add_f32 %s, %s, %s' % (R(g, i, 2), R(g, i, 2), R(g, 4 + i, 2)))
                    p('v_pk_add_f32 %s, %s, %s' % (R(g, 8 + i, 2), R(g, 8 + i, 2), R(g, 12 + i, 2)))
                for i in range(0, 4, 2): p('v_pk_add_f32 %s, %s, %s' % (R(g, i, 2), R(g, i, 2), R(g, 8 + i, 2)))
                for i in range(0, 4, 2): rb2(p, R(g, i), R(g, i + 1), t3)
                if v == 2:
                    for i in range(4): p('v_add_f32 %s, 1.0, %s' % (R(g, i), R(g, i)))
                    for i in range(0, 4, 2): rb2(p, R(g, i), R(g, i + 1), t3)
                if v == 0:
                    p('v_add_u32 %s, 0x%x, %s' % (t3, L_GA, tg))
                    p('ds_write_b128 %s, %s' % (t3, R(g, 0, 4)))
                    p('ds_write_b64 %s, %s offset:%d' % (t0, R(pk, 2, 2), 3 * 2048))
                else:
                    for i in range(2): p('v_cvt_pk_bf16_f32 %s, %s, %s' % (R(pk, i), R(g, 2 * i), R(g, 2 * i + 1)))
                    p('ds_write_b64 %s, %s offset:%d' % (t0, R(pk, 0, 2), (v - 1) * 2048))
                p('s_waitcnt lgkmcnt(0)')
            sc.place(at1 + v * step, ld)
            sc.place(at1 + v * step + step - 1, fin)

    def add_gather2(sc, at1, step):
        g = ones; pk = (negm[0], negm[1] + 8)
        tg, t0, t3 = R(v_t[4]), R(v_t[5]), R(negm, 12)
        def setup(p):
            p('v_lshlrev_b32 %s, 4, %s' % (tg, vid))
            p('v_lshlrev_b32 %s, 3, %s' % (t0, vid))
            for l in mksrd(p, 20, 'wr', 2048): p(l)
            p('buffer_load_dwordx2 %s, %s, s[20:23], 0 offen' % (R(pk, 2, 2), t0))
            p('v_add_u32 %s, 0x%x, %s' % (t0, L_MODS, t0))
        sc.place(at1 - 1, setup)
        for v in range(4):
            def ld(q, v=v):
                q('s_mov_b32 s26, 0x%x' % (Z_MODF + v * 4096))
                q('buffer_load_dwordx4 %s, %s, s[8:11], s26 offen sc1' % (R(g, 0, 4), tg))
            def ts(q):
                q('v_min3_u32 %s, %s, %s, %s' % (t3, R(g, 0), R(g, 1), R(g, 2)))
                q('v_min_u32 %s, %s, %s' % (t3, t3, R(g, 3)))
                q('v_cmp_eq_u32 vcc, 0, %s' % t3)
            def fin(p, v=v, ld=ld, ts=ts):
                ts(p)
                p('s_cbranch_vccz %s_mg%d' % (name, v))
                q = p.raw
                q('s_mov_b32 s27, 0')
                p.label('%s_mp%d' % (name, v))
                ld(q); q('s_waitcnt vmcnt(0)'); ts(q)
                q('s_add_u32 s27, s27, 1'); q('s_cmp_ge_u32 s27, %d' % SPIN_MAX); q('s_nop 4')
                q('s_cbranch_scc1 %s_mg%d' % (name, v))
                q('s_cbranch_vccnz %s_mp%d' % (name, v))
                p.label('%s_mg%d' % (name, v))
                if v == 0:
                    for i in range(4): p('v_and_b32 %s, 0xffff0000, %s' % (R(g, i), R(g, i)))
                    p('v_add_u32 %s, 0x%x, %s' % (t3, L_GA, tg))
                    p('ds_write_b128 %s, %s' % (t3, R(g, 0, 4)))
                    p('ds_write_b64 %s, %s offset:%d' % (t0, R(pk, 2, 2), 3 * 2048))
                else:
                    p('s_mov_b32 s26, 0x07060302')
                    for i in range(2): p('v_perm_b32 %s, %s, %s, s26' % (R(pk, i), R(g, 2 * i + 1), R(g, 2 * i)))
                    p('ds_write_b64 %s, %s offset:%d' % (t0, R(pk, 0, 2), (v - 1) * 2048))
                p('s_waitcnt lgkmcnt(0)')
            sc.place(at1 + v * step, ld)
            sc.place(at1 + v * step + step - 1, fin)

    S_KQ8, S_HD = 's62', 's63'
    v_wo, v_wo2 = v_wt[0], v_wt[1]
    S_ORD = 's42'
    def hd_of(t, dst):
        return ['s_bfe_u32 %s, %s, 0x%x' % (dst, S_ORD, (4 * t) | (3 << 16)), 's_or_b32 %s, %s, %s' % (dst, dst, S_KQ8)]
    def order_setup(p):
        p('s_and_b32 %s, s12, 24' % S_KQ8)
        p('s_and_b32 s19, s12, 7')
        if hord:
            p('s_lshl_b32 s20, s19, 2'); p('s_lshr_b32 s20, 0x54732160, s20'); p('s_and_b32 s20, s20, 7'); p('s_lshl_b32 s20, s20, 2')
            p('s_bfm_b32 s21, s20, 0')
            p('s_and_b32 s22, s21, 0x51764320'); p('s_lshl_b32 s22, s22, 4')
            p('s_lshl_b32 s21, s21, 4'); p('s_or_b32 s21, s21, 15'); p('s_andn2_b32 s21, 0x51764320, s21')
            p('s_or_b32 %s, s21, s22' % S_ORD); p('s_or_b32 %s, %s, s19' % (S_ORD, S_ORD))
        else:
            p('s_mul_i32 s20, s19, 0x11111111'); p('s_add_u32 s20, s20, 0x76543210'.replace('0x76543210', '0x76543210'))
            p('s_and_b32 %s, s20, 0x77777777' % S_ORD)
    def nb_of(dst):
        return ['s_add_u32 %s, s12, %d' % (dst, nbrot), 's_and_b32 %s, %s, 7' % (dst, dst)]
    def dma_wo(s):
        pieces = []
        for i in range(4):
            pieces.append([(l, None) for l in hd_of(s // 2, 's22')] +
                          [('s_lshl_b32 s22, s22, 18', None), ('s_add_u32 s22, s22, s16', None),
                           ('s_add_u32 s22, s22, 0x%x' % ((s % 2) * 64 * 2048 + i * 4 * 2048), None),
                           ('s_add_u32 m0, s17, 0x%x' % ((s % NS3) * 16384 + i * 1024), None),
                           ('buffer_load_dwordx4 %s, s[4:7], s22 offen lds' % R(v_wo2 if i % 2 else v_wo), 'wo%d' % s)])
        return pieces
    def setup_wo(p, A_=True):
        r_, g_, c_ = R(v_t[0]), R(v_t[1]), R(v_t[2])
        order_setup(p)
        for l in nb_of('s19'): p(l)
        p('s_lshl_b32 s19, s19, 8')
        p('s_add_u32 s4, s40, s19'); p('s_addc_u32 s5, s41, 0'); p('s_sub_u32 s6, 0x800000, s19'); p('s_mov_b32 s7, 0x20000')
        if A_: p('s_lshl_b32 s16, s3, 15')
        else:
            p('s_sub_u32 s19, s3, 4'); p('s_lshl_b32 s16, s19, 15'); p('s_lshl_b32 s17, s19, 12')
        p('v_bfe_u32 %s, %s, 2, 2' % (r_, lane)); p('v_lshrrev_b32 %s, 4, %s' % (g_, lane)); p('v_and_b32 %s, 3, %s' % (c_, lane))
        if pair:
            p('s_lshr_b32 s19, s12, 2'); p('s_and_b32 s19, s19, 2'); p('s_xor_b32 s19, s19, 2')
            p('v_xor_b32 %s, s19, %s' % (g_, g_))
        p('v_lshlrev_b32 %s, 6, %s' % (R(v_wo), g_)); p('v_lshl_add_u32 %s, %s, 4, %s' % (R(v_wo), c_, R(v_wo)))
        p('v_lshl_add_u32 %s, %s, 11, %s' % (R(v_wo), r_, R(v_wo)))
        p('v_xor_b32 %s, 32, %s' % (R(v_wo2), R(v_wo)))

    def pad(k):
        for _ in range(pads[k]): p.raw('s_nop 0')
    def phase1(role):
        A_ = role == 'A'
        pad(0 if A_ else 1)
        p('s_barrier')
        p.stamp(7)
        wait_h(role)
        p.stamp(8)
        if dsplit and not A_:
            p('s_sub_u32 s19, s3, 4'); p('s_lshl_b32 s16, s19, 17'); p('s_lshl_b32 s17, s19, 12')
            p('s_lshl_b32 s19, s12, 8')
            p('s_add_u32 s4, s38, s19'); p('s_addc_u32 s5, s39, 0'); p('s_sub_u32 s6, 0x800000, s19'); p('s_mov_b32 s7, 0x20000')
        late = []
        for s in range(NH - 1):
            for t in range(4):
                for it, tag in hload(s, t):
                    if (fast0 and s >= 1) or s >= 2: late.append((it, tag))
                    else: p(it, tag)
        if AH1 > 2:
            p('v_add_u32 %s, 0x10000, %s' % (R(v_t[4]), R(v_tr))); p('v_add_u32 %s, 0x10000, %s' % (R(v_t[5]), R(v_tr2)))
        if A_:
            for s in range(wq_early, AH1 + 1):
                for it, tag in dma_wq(s):
                    if fast0: late.append((it, tag))
                    else: p(it, tag)
        elif stage == 1:
            setup_B()
        if A_ != (wqpos == 4): p.wait_tag('wq0')
        p('s_barrier')
        p.stamp(9)
        for f in range(D1):
            for x in trread(f): p(x)
        sc = Sched()
        k_ = 0
        for it, tag in late:
            sc.place(k_, it, tag)
            if it.startswith('buffer'): k_ += 2
        hnext = [4 * (NH - 1)]
        for f in range(256):
            s, t, dt = f // 16, (f // 4) % 4, f % 4
            T, n = (f // 8) % 2, f % 8
            for qs in range(2):
                d = R(acc[n // 2], (n % 2) * 8 + qs * 4, 4)
                idx = sc.mfma('v_mfma_f32_16x16x32_bf16 %s, %s, %s, %s' % (d, R(fr[f % NRA], 0, 4), R(H[s % NH][T * 2 + qs], 0, 4), '0' if f < 8 else d))
            g = f + D1
            if g < 256:
                if g % 16 == 0:
                    sn = g // 16
                    if dsplit or A_ != (wqpos == 4 and sn < wq_early): sc.place(idx, lambda p, sn=sn: p.wait_tag('wq%d' % sn))
                    sc.place(idx, 's_barrier')
                    if dsplit and sn + AH1 < 16:
                        nx = dma_wq(sn + AH1)
                        for k2, i in enumerate((0, 1) if A_ else (2, 3)):
                            for it, tag in nx[3 * i:3 * i + 3]: sc.place(idx + dsp[0] + (0 if A_ else dsp[1] // 2) + dsp[1] * 2 * k2, it, tag)
                    if A_:
                        if sn == 11: sc.place(idx + 1, kv_flag_loads)
                        if sn + 2 == 16: sc.place(idx, kv_flag_check)
                        nxt = ([] if dsplit else dma_wq(sn + AH1)) if sn + AH1 < 16 else (dma_kv(sn + 2 - 16) if sn + 2 >= 16 else [])
                        for i in range(4):
                            for it, tag in nxt[3 * i:3 * i + 3]: sc.place(idx + dsp[0] + dsp[1] * i, it, tag)
                tr = trread(g)
                if g % 16 != 0:
                    sc.place(idx - 1, tr[0]); sc.place(idx, tr[1])
                else:
                    for x in tr: sc.place(idx, x)
            if dt in hslots[0 if A_ else 1]:
                lim = min(64, (s + NH - 1) * 4 + t + 1)
                if hnext[0] < lim:
                    for it, tag in hload(hnext[0] // 4, hnext[0] % 4): sc.place(idx, it, tag)
                    hnext[0] += 1
            if A_ and s >= 14 and t >= 2:
                j = 2 + (s - 14) * 2 + (t - 2)
                for it, tag in dma_kv(j)[3 * dt:3 * dt + 3]: sc.place(idx, it, tag)
        if not A_: add_kv(sc)
        if not A_ and mc1: add_modcols1(sc)
        if not A_ and wqpf:
            va = R(v_wt[0]); vd = R(v_wt[1])
            def setup(p):
                p('s_sub_u32 s26, s3, 4'); p('s_lshl_b32 s26, s26, 3')
                p('v_add_u32 %s, s26, %s' % (va, lane))
                p('v_lshrrev_b32 %s, 4, %s' % (vd, va)); p('v_lshlrev_b32 %s, 13, %s' % (vd, vd))
                p('v_and_b32 %s, 15, %s' % (va, va)); p('v_lshl_add_u32 %s, %s, 7, %s' % (va, va, vd))
                p('s_lshr_b32 s26, s2, 3'); p('s_lshl_b32 s26, s26, 14'); p('s_and_b32 s27, s2, 3'); p('s_lshl_b32 s27, s27, 11'); p('s_add_u32 s26, s26, s27')
                p('v_add_u32 %s, s26, %s' % (va, va))
                p('v_cmp_gt_u32 vcc, 8, %s' % lane); p('v_bfrev_b32 %s, -2' % vd)
                p('v_cndmask_b32 %s, %s, %s, vcc' % (va, vd, va))
                for l in mksrd(p, QY, 'wq', 0x800000): p(l)
            sc.place(0, setup)
            first = AH1 + 1
            sts = list(range(first, 16))
            for k_, st_ in enumerate(sts):
                at = max(1 + 3 * k_, 32 * (st_ - AH1 - wqpf) + 7)
                sc.place(at, 's_mov_b32 s26, 0x%x' % (st_ * 64 * 8192))
                sc.place(at, 'buffer_load_dword %s, %s, %s, s26 offen' % (vd, va, SR(QY)), 'pf')
        sc.emit(p)
        p.stamp(10)
        p('s_mov_b32 s24, 0x%x' % f2u((128 ** -0.5) * math.log2(math.e)))
        for dt in range(4):
            for r in range(0, 16, 2):
                ta, tb = R(v_t[(r // 2 % 2) * 2]), R(v_t[(r // 2 % 2) * 2 + 1])
                dst = R(qf[((r // 4) % 2) * 4 + dt], (r // 8) * 2 + (r % 4) // 2)
                if kscale:
                    p('v_cvt_pk_bf16_f32 %s, %s, %s' % (dst, R(acc[dt], r), R(acc[dt], r + 1)))
                    continue
                p('v_mul_f32 %s, s24, %s' % (ta, R(acc[dt], r)))
                p('v_mul_f32 %s, s24, %s' % (tb, R(acc[dt], r + 1)))
                p('v_cvt_pk_bf16_f32 %s, %s, %s' % (dst, ta, tb))
        p('v_add_u32 %s, 0x10000, %s' % (R(v_l16b), R(v_l16)))
        p('v_add_u32 %s, 0x20000, %s' % (R(v_l16c), R(v_l16)))
        if stage == 2 and A_: setup_wo(p)

    v_l16b = v_wqoff; v_l16c = v_tr
    def kaddr(j, t): return KV_RING + (j % NKV) * 16384 + t * 1024
    def vaddr(j, n): return KV_RING + (j % NKV) * 16384 + 8192 + n * 1024
    def lds_read(dst, addr):
        if addr >= 0x20000: return 'ds_read_b128 %s, %s offset:%d' % (R(dst, 0, 4), R(v_l16c), addr - 0x20000)
        return 'ds_read_b128 %s, %s offset:%d' % (R(dst, 0, 4), R(v_l16b), addr - 0x10000)
    def softmax_ops(j, sub, first):
        ops = []
        s = S[j % 2]
        for r in range(0, 16, 2):
            a, qs = r // 8, (r // 4) % 2
            if sub:
                ops.append('v_add_f32 %s, %s, %s' % (R(s, r), R(s, r), R(negm, 4 * qs)))
                ops.append('v_add_f32 %s, %s, %s' % (R(s, r + 1), R(s, r + 1), R(negm, 4 * qs)))
            ops.append('v_exp_f32 %s, %s' % (R(s, r), R(s, r)))
            ops.append('v_exp_f32 %s, %s' % (R(s, r + 1), R(s, r + 1)))
            if first and r % 4 == 0 and a == 0:
                ops.append('v_add_f32 %s, %s, %s' % (R(v_l[qs]), R(s, r), R(s, r + 1)))
            else:
                ops.append('v_add_f32 %s, %s, %s' % (R(v_l[qs]), R(v_l[qs]), R(s, r)))
                ops.append('v_add_f32 %s, %s, %s' % (R(v_l[qs]), R(v_l[qs]), R(s, r + 1)))
            ops.append('v_cvt_pk_bf16_f32 %s, %s, %s' % (R(P[j % 2][qs], a * 2 + (r % 4) // 2), R(s, r), R(s, r + 1)))
        return ops
    def xl_red(m, m2, op):
        return ['v_mov_b32 %s, %s' % (m2, m), 'v_permlane16_swap_b32 %s, %s' % (m, m2), '%s %s, %s, %s' % (op, m, m, m2),
                'v_mov_b32 %s, %s' % (m2, m), 'v_permlane32_swap_b32 %s, %s' % (m, m2), '%s %s, %s, %s' % (op, m, m, m2)]
    def finish_max(ms, m2s):
        ops = []
        a, b = xl_red(ms[0], m2s[0], 'v_max_f32'), xl_red(ms[1], m2s[1], 'v_max_f32')
        for x, y in zip(a, b): ops += [x, y]
        for r in range(8): ops.append('v_sub_f32 %s, 0, %s' % (R(negm, r), ms[r // 4]))
        return ops
    def mf_k(j, i, f, cz):
        T, a = i // 2, i % 2
        out = []
        for qs in range(2):
            d = R(S[j % 2], (a * 2 + qs) * 4, 4)
            c = d if T > 0 else ('0' if cz else R(negm, 4 * qs, 4))
            out.append('v_mfma_f32_16x16x32_bf16 %s, %s, %s, %s' % (d, f, R(qf[qs * 4 + T], 0, 4), c))
        return out
    def mf_v(j, n, f, cz):
        out = []
        for qs in range(2):
            d = R(acc[n // 2], (n % 2) * 8 + qs * 4, 4)
            out.append('v_mfma_f32_16x16x32_bf16 %s, %s, %s, %s' % (d, f, R(P[j % 2][qs], 0, 4), '0' if cz else d))
        return out

    def phase2(role):
        pad(2 if role == 'A' else 3)
        seq = [('k', 0, t) for t in range(8)] + [('k', 1, t) for t in range(8)]
        marks = {}
        for j in range(1, 17):
            marks[j] = len(seq)
            if j + 1 < 16: seq += [('k', j + 1, t) for t in range(8)]
            seq += [('v', j - 1, i) for i in range(8)]
        marks[17] = len(seq)
        sc0 = Sched()
        for n, (k, j, i) in enumerate(seq):
            f = R(fr[n % NRA], 0, 4)
            for m_ in (mf_k(j, i, f, j < 2) if k == 'k' else mf_v(j, i, f, j == 0)): sc0.mfma(m_)
        class SC:
            def place(self, at, item, tag=None): sc0.place(2 * at + 1 if at >= 0 else -1, item, tag)
            def emit(self, p): sc0.emit(p)
        sc = SC()
        ready = set()
        for n, (k, j, i) in enumerate(seq):
            at = n - D2 if n - D2 >= 0 else -1
            if k == 'k' and j not in ready:
                ready.add(j)
                if j <= jb2:
                    if role == 'A': sc.place(at, lambda p, j=j: p.wait_tag(['kv%d' % q_ for q_ in (range(j, 16) if j == jb2 else [j])]))
                    sc.place(at, 's_barrier')
                if endprio and role == endprio[0] and j == endprio[1]: sc.place(at, 's_setprio 3')
                jn = j + KD
                assert jn >= 16 or j < jb2 or j < 6 - KD
                if role == 'A' and jn >= 6 and jn < 16:
                    nxt = dma_kv(jn)
                    for q in range(4):
                        for it, tag in nxt[3 * q:3 * q + 3]: sc.place(at + 1 + 2 * q, it, tag)
            sc.place(at, lds_read(fr[n % NRA], kaddr(j, i) if k == 'k' else vaddr(j, i)))
        ms, m2s = [R(v_t[0]), R(v_t[1])], [R(v_t[2]), R(v_t[3])]
        ops = []
        for qs in range(2):
            rg = [R(S[0], (a * 2 + qs) * 4 + k) for a in range(2) for k in range(4)]
            ops.append('v_max3_f32 %s, %s, %s, %s' % (ms[qs], rg[0], rg[1], rg[2]))
            for i in range(3, 7, 2): ops.append('v_max3_f32 %s, %s, %s, %s' % (ms[qs], ms[qs], rg[i], rg[i + 1]))
            ops.append('v_max_f32 %s, %s, %s' % (ms[qs], ms[qs], rg[7]))
        for i, o in enumerate(ops): sc0.place(22 + i, o)
        ops = []
        for qs in range(2):
            rg = [R(S[1], (a * 2 + qs) * 4 + k) for a in range(2) for k in range(4)]
            for i in range(0, 8, 2): ops.append('v_max3_f32 %s, %s, %s, %s' % (ms[qs], ms[qs], rg[i], rg[i + 1]))
        ops += finish_max(ms, m2s) + softmax_ops(0, True, True)
        for o in ops: sc.place(15, o)
        for j in range(1, 16):
            lo, hi = 2 * marks[j], 2 * marks[j + 1] - 1
            ops = softmax_ops(j, j < 2, False)
            nm = hi - lo + 1
            for i, o in enumerate(ops): sc0.place(lo + min(nm - 1, (i * nm) // len(ops)), o)
        if role == 'A' and stage == 2:
            if mlp2: add_gather2(sc, marks[12] + 4, 12)
            elif mc1: add_gather3(sc, marks[12] + 4, 12)
            elif 'ga' not in abl and not swapw: add_gather(sc, marks[g_at[0]], marks[g_at[1]])
            for s_ in range(4 if free4 else 3):
                for q_, pc in enumerate(dma_wo(s_)):
                    for it, tag in pc: sc.place(marks[wo_at - (1 if free4 else 0) + s_] + 5 + 2 * q_, it, tag)
        if role == 'B':
            if stage == 1:
                add_modcols(sc)
                add_wot(sc)
            elif 'mc' not in abl and not mc1:
                add_modcols2(sc)
                if swapw: add_gather(sc, marks[g_at[0]], marks[g_at[1]])
        if stage == 2 and apsent:
            def sent(p):
                z = (negm[0], negm[1] + 8)
                for i in range(4): p('v_mov_b32 %s, -1' % R(z, i))
                for l in nb_of('s19'): p(l)
                p('s_lshr_b32 s20, s12, 3'); p('s_lshl_b32 s20, s20, 22')
                p('s_lshl_b32 s26, s13, 3'); p('s_add_u32 s26, s26, s3'); p('s_lshl_b32 s26, s26, 16')
                p('s_add_u32 s20, s20, s26'); p('s_lshl_b32 s19, s19, 12'); p('s_add_u32 s20, s20, s19'); p('s_add_u32 s20, s20, 0x%x' % WS_AP4)
                p('s_add_u32 s21, s20, 0x8000')
                for qs in range(2):
                    for m in range(4):
                        p('buffer_store_dwordx4 %s, %s, s[8:11], %s offen offset:%d sc1' % (R(z, 0, 4), R(v_l16), 's21' if qs else 's20', m * 1024), 'sent')
            sc.place(apsent, sent)
        if stage == 2 and 'w' not in abl:
            A_ = role == 'A'
            lo, hi = wA_at if A_ else wB_at
            if mlp2:
                sc.place(lo - 1, wsetup2)
                wl = wloads2()
                for i, (a_, b_) in enumerate(wl):
                    at = lo + (i * (hi - lo)) // len(wl)
                    for l in a_: sc.place(at, l)
                    sc.place(at, b_)
            else:
                D_ = A_ != swapw
                sc.place(lo - 1, lambda p: wsetup(p, D_))
                wl = wloads(D_)[:15]
                for i, (a_, b_) in enumerate(wl):
                    at = lo + (i * (hi - lo)) // len(wl)
                    sc.place(at, a_); sc.place(at, b_)
        if role == 'B':
            def pfsetup(p):
                p('s_lshl_b32 s27, s2, 12')
                p('v_lshrrev_b32 %s, 6, %s' % (R(v_pf), vid))
                p('v_lshlrev_b32 %s, 10, %s' % (R(v_pf), R(v_pf)))
                p('v_lshl_add_u32 %s, %s, 7, %s' % (R(v_pf), lane, R(v_pf)))
                p('v_add_u32 %s, s27, %s' % (R(v_pf), R(v_pf)))
                p('v_cmp_gt_u32 vcc, 8, %s' % lane)
                p('v_bfrev_b32 %s, -2' % R(v_pfd))
                p('v_cndmask_b32 %s, %s, %s, vcc' % (R(v_pf), R(v_pfd), R(v_pf)))
            if pf_list: sc.place(2, pfsetup)
            if wopf is not None:
                va = R(v_wt[0]); vd = R(v_wt[1])
                def wopf_setup(p):
                    p('s_and_b32 s26, s12, 24'); p('s_lshl_b32 s26, s26, 18')
                    p('s_lshr_b32 s27, s2, 3'); p('s_lshl_b32 s27, s27, 16'); p('s_add_u32 s26, s26, s27')
                    p('v_lshrrev_b32 %s, 6, %s' % (va, vid)); p('v_lshlrev_b32 %s, 10, %s' % (va, va))
                    p('v_lshl_add_u32 %s, %s, 7, %s' % (va, lane, va)); p('v_add_u32 %s, s26, %s' % (va, va))
                    p('v_cmp_gt_u32 vcc, 8, %s' % lane); p('v_bfrev_b32 %s, -2' % vd)
                    p('v_cndmask_b32 %s, %s, %s, vcc' % (va, vd, va))
                sc.place(wopf[0] - 1, wopf_setup)
                for n_ in range(16):
                    at = wopf[0] + (n_ * (wopf[1] - wopf[0])) // 16
                    for l in mksrd(p, 20, 'wo', 0x800000): sc.place(at, l)
                    sc.place(at, 's_mov_b32 s26, 0x%x' % (n_ * 4096))
                    sc.place(at, 'buffer_load_dword %s, %s, s[20:23], s26 offen' % (vd, va), 'pf')
            items = [(b, i * 0x100000) for b in pf_list for i in range(7)]
            lo, hi = marks[max(1, pf_lo)], marks[pf_hi]
            last = None
            for i, (b, off) in enumerate(items):
                at = lo + (i * (hi - lo)) // len(items)
                if b != last:
                    for l in mksrd(p, QX, b, 7340032): sc.place(at, l)
                    last = b
                sc.place(at, 's_mov_b32 s26, 0x%x' % off)
                sc.place(at, 'buffer_load_dword %s, %s, %s, s26 offen' % (R(v_pfd), R(v_pf), SR(QX)), 'pf')
        sc.emit(p)


    pool3 = [S[0], S[1], Pb, (qf[0][0], qf[0][1])]
    H3 = [[(b_[0], b_[1] + 4 * t) for t in range(4)] for b_ in pool3]
    v_tr3, v_tr3b, v_oo = v_tr, v_wqoff, v_hoff
    def mlp_ids(strip, mt, kh, cb, kb):
        p('s_bfe_u32 %s, s2, 0x10002' % strip); p('s_mul_i32 %s, %s, 28' % (strip, strip)); p('s_lshr_b32 s26, s2, 3'); p('s_add_u32 %s, %s, s26' % (strip, strip))
        p('s_and_b32 %s, s2, 1' % mt)
        p('s_bfe_u32 %s, s2, 0x10001' % kh)
        p('s_bfe_u32 %s, s2, 0x40003' % cb)
        p('s_and_b32 %s, s2, 7' % kb); p('s_lshl_b32 %s, %s, 1' % (kb, kb)); p('s_lshr_b32 s26, s2, 7'); p('s_add_u32 %s, %s, s26' % (kb, kb))
    T_STRIP, T_MT, T_KH, T_CB, T_KB, T_WIN = 's96', 's97', 's98', 's99', 's100', 's101'
    def oload(s, t):
        return [('s_add_u32 s23, s21, 0x%x' % (WS_O + (t % 2) * O_STRIDE + (s % 2) * 2048), None),
                ('buffer_load_dwordx4 %s, %s, s[8:11], s23 offen offset:%d sc1' % (R(H3[(s - 2) % len(H3)][t], 0, 4), R(v_oo), (t // 2) * 1024), None)]
    def ohead(s):
        return [(l, None) for l in hd_of(s // 2, 's21')] + [('s_lshl_b32 s21, s21, 12', None)]
    def phase3(role):
        A_ = role == 'A'
        pad(4 if A_ else 5)
        t0, t1, t2, t3 = [R(v_t[i]) for i in range(4)]
        p('v_bfe_u32 %s, %s, 2, 2' % (t0, lane)); p('v_lshrrev_b32 %s, 4, %s' % (t1, lane)); p('v_and_b32 %s, 3, %s' % (t2, lane))
        p('v_lshlrev_b32 %s, 10, %s' % (R(v_tr3), t1))
        p('v_lshl_add_u32 %s, %s, 6, %s' % (R(v_tr3), t0, R(v_tr3)))
        p('v_lshl_add_u32 %s, %s, 3, %s' % (R(v_tr3), t2, R(v_tr3)))
        p('v_bfe_u32 %s, %s, 4, 1' % (t3, lane)); p('v_lshlrev_b32 %s, 5, %s' % (t3, t3))
        p('v_sub_u32 %s, %s, %s' % (R(v_tr3b), R(v_tr3), t3))
        p('v_add_u32 %s, %s, %s' % (R(v_tr3), R(v_tr3), t3))
        p('s_lshl_b32 s19, s13, 3'); p('s_add_u32 s19, s19, s3'); p('s_mul_i32 s19, s19, %d' % (2 * O_STRIDE))
        p('v_add_u32 %s, s19, %s' % (R(v_oo), R(v_l16)))
        if dsplit and not A_: setup_wo(p, False)
        order_setup(p)
        mlp_ids(T_STRIP, T_MT, T_KH, T_CB, T_KB)
        def publish(p):
            p('s_lshl_b32 s26, s13, 3'); p('s_add_u32 s26, s26, s3'); p('s_lshl_b32 s26, s26, 2'); p('s_lshr_b32 s27, s12, 3'); p('s_add_u32 s26, s26, s27')
            fo = 7 if 'o' in fl128 else 2
            p('s_lshl_b32 s26, s26, %d' % (10 if fo == 7 else 7)); p('s_add_u32 s20, s26, 0x%x' % (WS_OF2 if fo == 7 else WS_OF))
            p('s_and_b32 s27, s12, 7'); p('s_lshl_b32 s27, s27, %d' % fo); p('s_add_u32 s26, s20, s27')
            p('v_mov_b32 %s, s14' % t0); p('v_mov_b32 %s, 0' % t1)
            p.wait_tag('ost')
            p('s_mov_b64 exec, 1')
            p('buffer_store_dword %s, %s, s[8:11], s26 offen sc1' % (t0, t1))
            p('s_mov_b64 exec, -1')
            p.stamp(14)
        tga, tst = R(v_t[4]), R(v_t[5])
        p('v_lshrrev_b32 %s, 4, %s' % (t0, lane)); p('v_lshlrev_b32 %s, 4, %s' % (tga, t0))
        for l in nb_of('s19'): p(l)
        p('s_lshl_b32 s26, s19, 9'); p('s_add_u32 s26, s26, 0x%x' % L_GA)
        p('v_add_u32 %s, s26, %s' % (tga, tga))
        p('v_and_b32 %s, 15, %s' % (tst, lane)); p('v_lshlrev_b32 %s, 6, %s' % (tst, tst)); p('v_lshl_add_u32 %s, %s, 4, %s' % (tst, t0, tst))
        if aplin: p('v_mov_b32 %s, %s' % (tst, R(v_l16)))
        p('s_lshr_b32 s18, s12, %d' % (4 if pair else 3)); p('s_lshl_b32 s18, s18, 22')
        p('s_lshl_b32 s26, s13, 3'); p('s_add_u32 s26, s26, s3'); p('s_lshl_b32 s26, s26, 16')
        p('s_add_u32 s18, s18, s26'); p('s_lshl_b32 s19, s19, 12'); p('s_add_u32 s18, s18, s19'); p('s_add_u32 s18, s18, 0x%x' % WS_AP4)
        if pair:
            tgb = R(v_t[3])
            p('s_lshr_b32 s26, s12, 2'); p('s_and_b32 s26, s26, 2'); p('s_xor_b32 s26, s26, 2')
            p('s_lshl_b32 s27, s26, 7')
            p('v_subrev_u32 %s, s27, %s' % (tgb, tga)); p('v_add_u32 %s, s27, %s' % (tga, tga))
            p('s_lshl_b32 s27, s26, 10')
            p('s_sub_u32 s24, s18, s27'); p('s_add_u32 s18, s18, s27')
            p('s_add_u32 s25, s24, 0x8000')
        p('s_add_u32 s19, s18, 0x8000')
        p('v_add_u32 %s, 0x10000, %s' % (R(v_l[0]), R(v_tr3))); p('v_add_u32 %s, 0x10000, %s' % (R(v_l[1]), R(v_tr3b)))
        p.stamp(13)
        if oflag < 0: publish(p)
        if A_: p.wait_tag(['wo0', 'wo1', 'wo2', 'wo3'] if free4 else 'wo0')
        p('s_waitcnt lgkmcnt(0)')
        p('s_barrier')
        frs = [(s, T, n) for s in range(16 - NL) for T in range(2) for n in range(8)]
        frs += [(s, T, 2 * m + b) for m in range(4) for s in range(16 - NL, 16) for T in range(2) for b in range(2)]
        def rd(f):
            s, T, n = frs[f]
            r = fr[f % NRA]
            base = (s % NS3) * 16384 + T * 8192 + (n // 2) * 256 + (n % 2) * 32
            va = R([v_tr3, v_tr3b][n % 2]) if base < 65536 else R(v_l[n % 2])
            base %= 65536
            return ['ds_read_b64_tr_b16 %s, %s offset:%d' % (R(r, 0, 2), va, base),
                    'ds_read_b64_tr_b16 %s, %s offset:%d' % (R(r, 2, 2), va, base + 4096)]
        for f in range(D1):
            for x in rd(f): p(x)
        sc = Sched()
        if A_:
            for s_ in (range(4, 8) if free4 else range(3, AH3 + 1)):
                for i, pc in enumerate(dma_wo(s_)):
                    for it, tag in pc: sc.place(1 + 12 * (s_ - (4 if free4 else 3)) + 3 * i, it, tag)
        NP = len(H3)
        hnext = [8 + 12]
        def wait_o(p):
            p('v_and_b32 %s, 7, %s' % (t0, lane)); p('v_lshlrev_b32 %s, %d, %s' % (t0, 7 if 'o' in fl128 else 2, t0))
            def ts():
                p('v_cmp_ne_u32 vcc, s14, %s' % t1)
                if hord: p('s_and_b32 vcc_lo, vcc_lo, 0xdd'); p('s_mov_b32 vcc_hi, 0')
            poll('o' + role, lambda: p('buffer_load_dword %s, %s, s[8:11], s20 offen sc1' % (t1, t0)), ts, tsleep)
            p.stamp(15)
            for s_ in range(2, 5):
                if s_ % 2 == 0:
                    for it, tag in ohead(s_): p(it, tag)
                for t in range(4):
                    for it, tag in oload(s_, t): p(it, tag)
        gav = (qf[4][0], qf[4][1]); u = (qf[4][0], qf[4][1] + 8)
        def epi(m):
            ops = []
            for qs in range(2):
                for b in range(2):
                    for k in range(0, 4, 2):
                        ops.append('v_pk_mul_f32 %s, %s, %s' % (R(u, 4 * b + k, 2), R(acc[m], b * 8 + qs * 4 + k, 2), R(gav, 4 * b + k, 2)))
                for d in range(4): ops.append('v_cvt_pk_bf16_f32 %s, %s, %s' % (R(u, d), R(u, 2 * d), R(u, 2 * d + 1)))
                for i in range(2): ops.append('v_permlane32_swap_b32 %s, %s' % (R(u, i), R(u, 2 + i)))
                for i in range(2): ops.append('v_permlane16_swap_b32 %s, %s' % (R(u, i), R(u, 2 + i)))
                if pair and m >= 2:
                    pr = (acc[m - 2][0], acc[m - 2][1] + 4 * qs); w_ = (acc[m - 2][0], acc[m - 2][1] + 8)
                    for d in range(4):
                        ops.append('v_lshlrev_b32 %s, 16, %s' % (R(w_, 0), R(u, d))); ops.append('v_and_b32 %s, 0xffff0000, %s' % (R(w_, 1), R(u, d)))
                        ops.append('v_lshlrev_b32 %s, 16, %s' % (R(w_, 2), R(pr, d))); ops.append('v_and_b32 %s, 0xffff0000, %s' % (R(w_, 3), R(pr, d)))
                        ops.append('v_pk_add_f32 %s, %s, %s' % (R(w_, 0, 2), R(w_, 0, 2), R(w_, 2, 2)))
                        ops.append('v_cvt_pk_bf16_f32 %s, %s, %s' % (R(u, d), R(w_, 0), R(w_, 1)))
                if pair:
                    base = ('s19' if qs else 's18') if m < 2 else ('s25' if qs else 's24')
                    ops.append(('buffer_store_dwordx4 %s, %s, s[8:11], %s offen offset:%d %s' % (R(u, 0, 4), tst, base, m * 1024, pair_st if m < 2 else 'sc1'), 'sx%d' % m if m < 2 else 'ap'))
                else:
                    ops.append(('buffer_store_dwordx4 %s, %s, s[8:11], %s offen offset:%d %s' % (R(u, 0, 4), tst, 's19' if qs else 's18', m * 1024, apmod), 'ap'))
            return ops
        def gard(m): return ['ds_read_b128 %s, %s offset:%d' % (R(gav, 4 * b, 4), (R(v_t[3]) if (pair and m >= 2) else tga), (2 * m + b) * 64) for b in range(2)]
        def pflag(m):
            def f(p):
                p('s_lshl_b32 s26, s2, 3'); p('s_add_u32 s26, s26, s3'); p('s_lshl_b32 s26, s26, 3'); p('s_add_u32 s26, s26, 0x%x' % (WS_PF + 4 * m))
                p('v_mov_b32 %s, s14' % t0); p('v_mov_b32 %s, 0' % t1)
                p.wait_tag('sx%d' % m)
                p('s_mov_b64 exec, 1')
                p('buffer_store_dword %s, %s, s[8:11], s26 offen sc1' % (t0, t1))
                p('s_mov_b64 exec, -1')
                p('s_nop 3')
            return f
        def pget(m):
            p('s_xor_b32 s26, s2, 64'); p('s_lshl_b32 s26, s26, 3'); p('s_add_u32 s26, s26, s3'); p('s_lshl_b32 s26, s26, 3'); p('s_add_u32 s26, s26, 0x%x' % (WS_PF + 4 * (m - 2)))
            p('v_mov_b32 %s, 0' % t1)
            poll('pg%d%s' % (m, role), lambda: p('buffer_load_dword %s, %s, s[8:11], s26 offen sc1' % (t0, t1)),
                 lambda: p('v_cmp_ne_u32 vcc, s14, %s' % t0), 1)
            for qs in range(2):
                p('buffer_load_dwordx4 %s, %s, s[8:11], %s offen offset:%d sc1' % (R(acc[m - 2], 4 * qs, 4), tst, 's25' if qs else 's24', m * 1024))
        first = {}
        for f, (s, T, n) in enumerate(frs): first.setdefault(s, f)
        SB3 = min(15, 16 - NL) if sb3 is None else sb3
        assert free4 or SB3 + AH3 >= 16 + (0 if sb3 is None else 1) or sb3 is None
        if free4: assert AH3 == 4 and SB3 >= 12
        bars = {first[s]: s for s in range(4 if free4 else 1, SB3 + 1)}
        seen = set()
        F0 = first[16 - NL] if NL else 256
        GL = NL * 4
        for f, (s, T, n) in enumerate(frs):
            for qs in range(2):
                d = R(acc[n // 2], (n % 2) * 8 + qs * 4, 4)
                bop = R(qf[qs * 4 + 2 * s + T], 0, 4) if s < 2 else R(H3[(s - 2) % NP][T * 2 + qs], 0, 4)
                cz = (n, qs) not in seen; seen.add((n, qs))
                idx = sc.mfma('v_mfma_f32_16x16x32_bf16 %s, %s, %s, %s' % (d, R(fr[f % NRA], 0, 4), bop, '0' if cz else d))
            g = f + D1
            if g < 256:
                if g in bars:
                    sn = bars[g]
                    last = (sn == SB3)
                    if A_ or dsplit: sc.place(idx, lambda p, sn=sn, last=last: p.wait_tag(['wo%d' % k for k in (range(sn, 16) if last else [sn])]))
                    sc.place(idx, 's_barrier')
                    if last and prio3 and A_: sc.place(idx, 's_setprio 3')
                    if dsplit and sn + AH3 < 16:
                        pcs = dma_wo(sn + AH3)
                        for k2, i in enumerate((0, 1) if A_ else (2, 3)):
                            for it, tag in pcs[i]: sc.place(idx + dsp[0] + (0 if A_ else dsp[1] // 2) + dsp[1] * 2 * k2, it, tag)
                    elif A_ and sn + AH3 < 16:
                        for i, pc in enumerate(dma_wo(sn + AH3)):
                            for it, tag in pc: sc.place(idx + dsp[0] + dsp[1] * i, it, tag)
                tr = rd(g)
                if g not in bars:
                    sc.place(idx - 1, tr[0]); sc.place(idx, tr[1])
                else:
                    for x in tr: sc.place(idx, x)
            if f < F0 and n % 4 in hslots[0 if A_ else 1] and s >= 2:
                t = (T * 8 + n) // 4
                lim = min(60 if NL == 4 else 64, (s + LA3) * 4 + t + 1)
                if hnext[0] < lim:
                    sn_, tn_ = hnext[0] // 4, hnext[0] % 4
                    if tn_ == 0 and sn_ % 2 == 0:
                        for it, tag in ohead(sn_): sc.place(idx, it, tag)
                    for it, tag in oload(sn_, tn_): sc.place(idx, it, tag)
                    hnext[0] += 1
            if NL == 4 and F0 <= f < F0 + 4:
                for it, tag in oload(15, f - F0): sc.place(idx, it, tag)
                hnext[0] += 1
            if NL and f >= F0:
                m, k = (f - F0) // GL, (f - F0) % GL
                if k == GL - 3:
                    pass
                if pair and k == 2 and m in (2, 3): sc.place(idx, pflag(m - 2))
                if k == 0 and m > 0 and not (pair and m == 3):
                    ops = epi(m - 1)
                    nm = 2 * GL - 6
                    for i, o in enumerate(ops):
                        at = idx + 3 + (i * nm) // len(ops)
                        if isinstance(o, tuple): sc.place(at, o[0], o[1])
                        else: sc.place(at, o)
                if k == GL - 1 and m < (2 if pair else 3):
                    for x in gard(m): sc.place(idx, x)
        assert hnext[0] == 64, hnext
        if hord:
            def chk2(p):
                p('v_cmp_ne_u32 vcc, s14, %s' % t1)
                p('s_cbranch_vccz %s_o2g%s' % (name, role))
                q = p.raw
                q('s_mov_b32 s27, 0')
                p.label('%s_o2p%s' % (name, role))
                q('buffer_load_dword %s, %s, s[8:11], s20 offen sc1' % (t1, t0)); q('s_waitcnt vmcnt(0)')
                q('v_cmp_ne_u32 vcc, s14, %s' % t1)
                q('s_add_u32 s27, s27, 1'); q('s_cmp_ge_u32 s27, %d' % SPIN_MAX); q('s_nop 4')
                q('s_cbranch_scc1 %s_o2g%s' % (name, role))
                q('s_cbranch_vccnz %s_o2p%s' % (name, role))
                p.label('%s_o2g%s' % (name, role))
            s2 = 12 - LA3
            sc.place(32 * (s2 - 2) + 5, 'buffer_load_dword %s, %s, s[8:11], s20 offen sc1' % (t1, t0))
            sc.place(32 * s2 - 1, chk2)
        if not A_:
            pass
        if wbl and not A_:
            for k_, at in enumerate(wbl):
                def wb(p, k_=k_):
                    p('s_lshr_b32 s26, s2, 3'); p('s_lshl_b32 s26, s26, 3'); p('s_add_u32 s26, s26, s3')
                    p('s_cmp_lg_u32 s26, %d' % (7 + 8 * wbslot))
                    p('s_cbranch_scc1 %s_nwb%d' % (name, k_))
                    p.raw('buffer_wbl2 sc1')
                    p.label('%s_nwb%d' % (name, k_))
                sc.place(at, wb)
        if oflag >= 0: sc.place(oflag, publish)
        sc.place(opoll, wait_o)
        sc.emit(p)
        p.stamp(0)
        if prio3 and A_: p('s_setprio 0')
        for m in (range(4) if NL == 0 else ([2, 3] if pair else [3])):
            if pair: pget(m)
            for x in gard(m): p(x)
            for o in epi(m):
                if isinstance(o, tuple): p(o[0], o[1])
                else: p(o)

    def phase3_and_tail():
        p('s_cmp_ge_u32 s3, 4')
        p('s_cbranch_scc1 %s_p3B' % name)
        p.alt_begin()
        phase3('A')
        p('s_branch %s_p3e' % name)
        p.alt_next()
        p.label('%s_p3B' % name)
        phase3('B')
        p.alt_end()
        p.label('%s_p3e' % name)
        tail2() if mlp2 else tail()

    def tail2():
        G = RA('v', BASE, 156)
        gr = G.alloc(4, 4); xf = G.alloc(16, 4); raw = G.alloc(32, 4); mods = G.alloc(32, 4); uf = G.alloc(16, 4)
        x = G.alloc(8, 4); u8 = G.alloc(8, 4); ac = G.alloc(16, 4)
        assert G.n <= S[1][1], G.n
        fin = (S[1][0], S[1][1]); sl = (S[1][0], S[1][1] + 8); yp = (Pb[0], Pb[1])
        free = [v_wqoff, v_tr, v_hoff, v_kvoff, v_pf, v_pfd, v_t[2], v_t[3], v_l[0], v_l[1], v_wt[0], v_wt[1], v_wt[2]]
        t = dict(enumerate(free))
        zero, v_w, v_tf = R(t[10]), R(t[11]), R(t[12])
        MSB, MC1, MGB, MWR = 0, 8, 16, 24
        MODS = L_MODS
        T_ROW, T_ROFF, T_WOFF = 's16', 's17', 's62'
        L_XS, L_X2S, L_GU, L_YR = 1024, 5120, 9216, 10240
        p.stamp(8)
        p('s_lshl_b32 s26, s13, 3'); p('s_add_u32 s26, s26, s3'); p('s_lshl_b32 s26, s26, 7'); p('s_lshl_b32 s27, s12, 2'); p('s_add_u32 s26, s26, s27')
        p('s_add_u32 s26, s26, 0x%x' % WS_AF)
        p('v_mov_b32 %s, s14' % R(t[6])); p('v_mov_b32 %s, 0' % zero)
        p('v_mov_b32 %s, s3' % v_w)
        p('v_lshl_add_u32 %s, %s, 6, %s' % (v_tf, v_w, lane))
        p('s_lshl_b32 %s, s13, 8' % T_ROW); p('s_lshl_b32 s27, s12, 3'); p('s_add_u32 %s, %s, s27' % (T_ROW, T_ROW)); p('s_add_u32 %s, %s, s3' % (T_ROW, T_ROW))
        p('s_lshl_b32 %s, %s, 11' % (T_ROFF, T_ROW))
        for l in mksrd(p, QZ, 'x', 4194304): p(l)
        for l in mksrd(p, QX, 'out', 4194304): p(l)
        p('v_add_u32 %s, 0x%x, %s' % (R(t[9]), MODS, R(v_l16)))
        for i in range(8): p('ds_read_b128 %s, %s offset:%d' % (R(mods, 4 * i, 4), R(t[9]), i * 1024))
        p.wait_tag('ap')
        p('s_mov_b64 exec, 1')
        p('buffer_store_dword %s, %s, s[8:11], s26 offen sc1' % (R(t[6]), zero))
        p('s_mov_b64 exec, -1')
        p.stamp(1)
        for hf in range(2):
            p('buffer_load_dwordx4 %s, %s, %s, %s offen offset:%d' % (R(x, 4 * hf, 4), R(v_l16), SR(QZ), T_ROFF, hf * 1024))
        a0, a1, b0_, b1_ = R(u8, 0), R(u8, 1), R(u8, 2), R(u8, 3)
        a01, b01 = R(u8, 0, 2), R(u8, 2, 2)
        b0v, usum = R(fin, 2), R(fin, 3)
        p('v_mov_b32 %s, 0' % b0v); p('v_mov_b32 %s, 0' % usum)
        for d in range(8):
            unpack(p, a0, a1, R(mods, MC1 + d)); unpack(p, b0_, b1_, R(mods, MWR + d))
            p('v_pk_mul_f32 %s, %s, %s' % (R(uf, 2 * d, 2), a01, b01))
            unpack(p, a0, a1, R(mods, MSB + d))
            p('v_fmac_f32 %s, %s, %s' % (b0v, a0, b0_)); p('v_fmac_f32 %s, %s, %s' % (b0v, a1, b1_))
            p('v_add_f32 %s, %s, %s' % (usum, usum, R(uf, 2 * d))); p('v_add_f32 %s, %s, %s' % (usum, usum, R(uf, 2 * d + 1)))
        for n in (1, 2, 4, 8):
            ror_add(p, b0v, n); ror_add(p, usum, n)
        xor16_add(p, b0v, a0); xor16_add(p, usum, a1); xor32_add(p, b0v, a0); xor32_add(p, usum, a1)
        p('v_lshlrev_b32 %s, 2, %s' % (R(t[4]), v_tf))
        p('v_add_u32 %s, 0x%x, %s' % (R(t[7]), MODS, R(t[4])))
        p('ds_read_b32 %s, %s offset:2048' % (R(sl, 4), R(t[7])))
        p('ds_read_b32 %s, %s' % (R(sl, 6), R(t[7])))
        unpack(p, R(sl, 4), R(sl, 5), R(sl, 4)); unpack(p, R(sl, 6), R(sl, 7), R(sl, 6))
        for d in range(8): unpack(p, R(xf, 2 * d), R(xf, 2 * d + 1), R(x, d))
        def aprow(dst, row):
            p('s_lshr_b32 %s, %s, 4' % (dst, row)); p('s_lshl_b32 %s, %s, 15' % (dst, dst))
            p('s_and_b32 s27, %s, 15' % row); p('s_lshl_b32 s27, s27, 6'); p('s_add_u32 %s, %s, s27' % (dst, dst))
            p('s_add_u32 %s, %s, 0x%x' % (dst, dst, WS_AP4))
        aprow('s24', T_ROW)
        p('v_lshrrev_b32 %s, 2, %s' % (R(t[1]), lane)); p('v_lshlrev_b32 %s, 10, %s' % (R(t[1]), R(t[1])))
        p('v_and_b32 %s, 3, %s' % (R(t[0]), lane)); p('v_lshl_add_u32 %s, %s, 4, %s' % (R(t[1]), R(t[0]), R(t[1])))
        p('v_lshrrev_b32 %s, 4, %s' % (R(t[8]), v_tf)); p('v_lshlrev_b32 %s, 10, %s' % (R(t[8]), R(t[8])))
        p('v_and_b32 %s, 15, %s' % (R(t[0]), v_tf)); p('v_lshl_add_u32 %s, %s, 2, %s' % (R(t[8]), R(t[0]), R(t[8])))
        p('v_and_b32 %s, 31, %s' % (R(t[7]), lane))
        p('v_lshlrev_b32 %s, 2, %s' % (R(t[7]), R(t[7])))
        p('s_lshl_b32 s22, s13, 3'); p('s_lshr_b32 s23, s12, 2'); p('s_add_u32 s22, s22, s23'); p('s_lshl_b32 s22, s22, 7'); p('s_add_u32 s22, s22, 0x%x' % WS_AF)
        p.stamp(10)
        poll('r', lambda: p('buffer_load_dword %s, %s, s[8:11], s22 offen sc1' % (a0, R(t[7]))),
             lambda: p('v_cmp_ne_u32 vcc, s14, %s' % a0), tsleep)
        p.stamp(2)
        for hf in range(2):
            for k in range(4):
                p('s_add_u32 s25, s24, 0x%x' % (k * 0x400000 + hf * 16384))
                p('buffer_load_dwordx4 %s, %s, s[8:11], s25 offen sc1' % (R(raw, 8 * k + 4 * hf, 4), R(t[1])))
        for d in range(8):
            k = (d % 2) * 4
            A0, A1, B0_, B1 = [R(u8, k + i) for i in range(4)]
            tt = R(t[5 + (d % 2)])
            unpack(p, A0, A1, R(raw, d)); unpack(p, B0_, B1, R(raw, 8 + d))
            p('v_pk_add_f32 %s, %s, %s' % (R(u8, k, 2), R(u8, k, 2), R(u8, k + 2, 2)))
            unpack(p, B0_, B1, R(raw, 16 + d))
            p('v_pk_add_f32 %s, %s, %s' % (R(u8, k, 2), R(u8, k, 2), R(u8, k + 2, 2)))
            unpack(p, B0_, B1, R(raw, 24 + d))
            p('v_pk_add_f32 %s, %s, %s' % (R(u8, k, 2), R(u8, k, 2), R(u8, k + 2, 2)))
            p('v_pk_add_f32 %s, %s, %s' % (R(xf, 2 * d, 2), R(xf, 2 * d, 2), R(u8, k, 2)))
            rb2(p, R(xf, 2 * d), R(xf, 2 * d + 1), tt)
        p.stamp(13)
        mean, var, s3v, rcp = R(fin, 4), R(fin, 5), R(fin, 6), R(fin, 7)
        p('v_readfirstlane_b32 s25, %s' % R(xf, 0))
        p('v_mov_b32 %s, s25' % R(fin, 0))
        for d in range(8): p('v_pk_add_f32 %s, %s, %s op_sel_hi:[1,0] neg_lo:[0,1] neg_hi:[0,1]' % (R(raw, 2 * d, 2), R(xf, 2 * d, 2), R(fin, 0, 2)))
        c01 = R(u8, 4, 2)
        p('v_pk_add_f32 %s, %s, %s' % (c01, R(raw, 0, 2), R(raw, 2, 2)))
        p('v_pk_mul_f32 %s, %s, %s' % (a01, R(raw, 0, 2), R(raw, 0, 2)))
        p('v_pk_mul_f32 %s, %s, %s' % (b01, R(raw, 0, 2), R(uf, 0, 2)))
        for d in range(1, 8):
            if d >= 2: p('v_pk_add_f32 %s, %s, %s' % (c01, c01, R(raw, 2 * d, 2)))
            p('v_pk_fma_f32 %s, %s, %s, %s' % (a01, R(raw, 2 * d, 2), R(raw, 2 * d, 2), a01))
            p('v_pk_fma_f32 %s, %s, %s, %s' % (b01, R(raw, 2 * d, 2), R(uf, 2 * d, 2), b01))
        p('v_add_f32 %s, %s, %s' % (mean, R(u8, 4), R(u8, 5)))
        p('v_add_f32 %s, %s, %s' % (var, a0, a1)); p('v_add_f32 %s, %s, %s' % (s3v, b0_, b1_))
        for n in (1, 2, 4, 8):
            ror_add(p, mean, n); ror_add(p, var, n); ror_add(p, s3v, n)
        xor16_add(p, mean, a0); xor16_add(p, var, a1); xor16_add(p, s3v, b0_)
        xor32_add(p, mean, a0); xor32_add(p, var, a1); xor32_add(p, s3v, b0_)
        p('v_mul_f32 %s, 0x%x, %s' % (mean, f2u(1.0 / 1024), mean))
        p('v_mul_f32 %s, 0x%x, %s' % (var, f2u(1.0 / 1024), var))
        p('v_fma_f32 %s, -%s, %s, %s' % (var, mean, mean, var))
        p('v_max_f32 %s, 0, %s' % (var, var))
        p('v_fma_f32 %s, -%s, %s, %s' % (s3v, mean, usum, s3v))
        p('v_add_f32 %s, s25, %s' % (mean, mean))
        p('v_add_f32 %s, 0x%x, %s' % (a0, f2u(1e-5), var))
        p('v_rsq_f32 %s, %s' % (a0, a0))
        p('v_fma_f32 %s, %s, %s, %s' % (R(gr, 3), s3v, a0, b0v))
        sd = s3v
        ln_scalars(p, mean, var, sd, rcp)
        p('v_mov_b32 %s, %s' % (R(gr, 1), mean))
        p('v_mov_b32 %s, %s' % (R(gr, 2), sd))
        p('v_ashrrev_i32 %s, 31, %s' % (R(t[6]), R(gr, 3)))
        p('v_or_b32 %s, 0x80000000, %s' % (R(t[6]), R(t[6])))
        p('v_xor_b32 %s, %s, %s' % (R(gr, 0), R(gr, 3), R(t[6])))
        p('v_and_b32 %s, 0xfffff800, %s' % (R(gr, 0), R(gr, 0)))
        p('v_max_u32 %s, 0x800, %s' % (R(gr, 0), R(gr, 0)))
        p('s_sub_u32 s24, 2047, %s' % T_ROW)
        p('v_or_b32 %s, s24, %s' % (R(gr, 0), R(gr, 0)))
        p('v_lshlrev_b32 %s, 4, %s' % (R(t[7]), v_w))
        p('ds_write_b128 %s, %s' % (R(t[7]), R(gr, 0, 4)))
        p('s_waitcnt lgkmcnt(0)')
        p('s_barrier')
        def best_of(ldsoff, n=8):
            p('v_and_b32 %s, %d, %s' % (R(t[7]), n - 1, lane))
            p('v_lshlrev_b32 %s, 4, %s' % (R(t[7]), R(t[7])))
            p('ds_read_b32 %s, %s offset:%d' % (R(u8, 0), R(t[7]), ldsoff))
            p('v_mov_b32 %s, %s' % (R(u8, 1), R(u8, 0)))
            for k in ((1, 2, 4) if n == 8 else (1, 2)): ror_add(p, R(u8, 1), k, 'v_max_u32')
            p('v_cmp_eq_u32 vcc, %s, %s' % (R(u8, 0), R(u8, 1)))
            p('s_ff1_i32_b64 s26, vcc')
            p('s_lshl_b32 s26, s26, 4')
            p('v_mov_b32 %s, s26' % R(t[7]))
            p('ds_read_b128 %s, %s offset:%d' % (R(gr, 0, 4), R(t[7]), ldsoff))
        p('s_cmp_lg_u32 s3, 0')
        p('s_cbranch_scc1 %s_nk' % name)
        best_of(0)
        p('s_lshl_b32 s24, s2, 4')
        p('s_add_u32 s24, s24, 0x%x' % Z_KEY)
        p('s_mov_b64 exec, 1')
        p('buffer_store_dwordx4 %s, %s, s[8:11], s24 offen sc1' % (R(gr, 0, 4), zero))
        p('s_mov_b64 exec, -1')
        p.label('%s_nk' % name)
        p('s_waitcnt lgkmcnt(0)')
        p.stamp(3)
        def out_rows():
            for hf in range(2):
                X = [R(raw, i) for i in range(8)]
                c1 = [R(raw, 8 + i) for i in range(8)]
                for i in range(8): p('v_sub_f32 %s, %s, %s' % (X[i], R(xf, 8 * hf + i), mean))
                for i in range(0, 8, 2): rb2(p, X[i], X[i + 1], R(t[6]))
                for i in range(8): p('v_mul_f32 %s, %s, %s' % (X[i], X[i], rcp))
                for i in range(0, 8, 2): rb2(p, X[i], X[i + 1], R(t[6]))
                for op, mo_ in (('v_pk_mul_f32', MC1), ('v_pk_add_f32', MSB), ('v_pk_mul_f32', MGB)):
                    for d in range(4): unpack(p, c1[2 * d], c1[2 * d + 1], R(mods, mo_ + 4 * hf + d))
                    for d in range(4): p('%s %s, %s, %s' % (op, R(raw, 2 * d, 2), R(raw, 2 * d, 2), R(raw, 8 + 2 * d, 2)))
                    for i in range(0, 8, 2): rb2(p, X[i], X[i + 1], R(t[6]))
                for d in range(4): p('v_pk_add_f32 %s, %s, %s' % (R(raw, 2 * d, 2), R(raw, 2 * d, 2), R(xf, 8 * hf + 2 * d, 2)))
                for d in range(4): p('v_cvt_pk_bf16_f32 %s, %s, %s' % (R(raw, 16 + 4 * hf + d), X[2 * d], X[2 * d + 1]))
        def out_store():
            p('s_cmp_lg_u32 %s, %s' % (T_WIN, T_ROW)); p('s_cselect_b32 s23, %s, 0x7ffffff0' % T_ROFF)
            for hf in range(2):
                p('buffer_store_dwordx4 %s, %s, %s, s23 offen offset:%d sc1' % (R(raw, 16 + 4 * hf, 4), R(v_l16), SR(QX), hf * 1024))
        p('s_cmp_lt_u32 s3, 4')
        p('s_cbranch_scc1 %s_kA' % name)
        p.alt_begin()
        p('v_lshlrev_b32 %s, 4, %s' % (R(t[7]), vid))
        p('s_mov_b32 s26, 0x%x' % Z_KEY)
        poll('w', lambda: p('buffer_load_dwordx4 %s, %s, s[8:11], s26 offen sc1' % (R(gr, 0, 4), R(t[7]))),
             lambda: p('v_cmp_eq_u32 vcc, 0, %s' % R(gr, 0)), tsleep)
        p('v_mov_b32 %s, %s' % (R(u8, 0), R(gr, 0)))
        for n in (1, 2, 4, 8): ror_add(p, R(u8, 0), n, 'v_max_u32')
        xor16_add(p, R(u8, 0), R(u8, 1), 'v_max_u32'); xor32_add(p, R(u8, 0), R(u8, 1), 'v_max_u32')
        p('v_cmp_eq_u32 vcc, %s, %s' % (R(u8, 0), R(gr, 0)))
        p('v_lshlrev_b32 %s, 4, %s' % (R(t[7]), v_w))
        p('s_and_saveexec_b64 s[26:27], vcc')
        p('ds_write_b128 %s, %s offset:192' % (R(t[7]), R(gr, 0, 4)))
        p('s_mov_b64 exec, s[26:27]')
        p('s_waitcnt lgkmcnt(0)')
        p('s_branch %s_kJ' % name)
        p.alt_next()
        p.label('%s_kA' % name)
        out_rows()
        p.alt_end()
        p.label('%s_kJ' % name)
        p('s_barrier')
        best_of(256, 4)
        p('v_and_b32 %s, 0x7ff, %s' % (R(u8, 0), R(gr, 0)))
        p('v_sub_u32 %s, 2047, %s' % (R(u8, 0), R(u8, 0)))
        p('v_readfirstlane_b32 %s, %s' % (T_WIN, R(u8, 0)))
        p('s_lshl_b32 %s, %s, 11' % (T_WOFF, T_WIN))
        p.stamp(4)
        aprow('s25', T_WIN)
        for k in range(4):
            p('s_add_u32 s26, s25, 0x%x' % (k * 0x400000))
            p('buffer_load_dword %s, %s, s[8:11], s26 offen sc1' % (R(ac, k), R(t[8])))
        p('buffer_load_dword %s, %s, %s, %s offen' % (R(ac, 4), R(t[4]), SR(QZ), T_WOFF))
        p('v_rcp_f32 %s, %s' % (R(sl, 3), R(gr, 2)))
        unpack(p, a0, a1, R(ac, 0)); unpack(p, b0_, b1_, R(ac, 1))
        p('v_pk_add_f32 %s, %s, %s' % (R(x, 0, 2), a01, b01))
        for k in (2, 3, 4):
            unpack(p, a0, a1, R(ac, k))
            p('v_pk_add_f32 %s, %s, %s' % (R(x, 0, 2), a01, R(x, 0, 2)))
        X = [R(x, 0), R(x, 1)]
        rb2(p, X[0], X[1], a0)
        p('v_lshlrev_b32 %s, 1, %s' % (R(t[7]), R(t[4])))
        p('ds_write_b64 %s, %s offset:%d' % (R(t[7]), R(x, 0, 2), L_X2S))
        p('s_nop 1')
        ln_apply(p, X, 2, R(gr, 1), R(gr, 2), R(sl, 3), [R(sl, 4), R(sl, 5)], [R(sl, 6), R(sl, 7)], R(u8, 0), R(u8, 1))
        rb2(p, X[0], X[1], a0)
        p('ds_write_b64 %s, %s offset:%d' % (R(t[7]), R(x, 0, 2), L_XS))
        p('v_lshrrev_b32 %s, 1, %s' % (R(t[7]), v_tf)); p('v_lshlrev_b32 %s, 4, %s' % (R(t[7]), R(t[7])))
        p('s_waitcnt lgkmcnt(0)')
        p('s_barrier')
        p('s_lshr_b32 s26, s2, 3'); p('s_cmp_ge_u32 s26, 28')
        p('s_cbranch_scc1 %s_fin' % name)
        p.alt_begin()
        p('ds_read_b128 %s, %s offset:%d' % (R(x, 0, 4), R(t[7]), L_XS))
        for i in range(4):
            xl = R(x, 4 + i)
            p('v_lshrrev_b32 %s, 16, %s' % (xl, R(x, i)))
            for mat in range(2):
                for d in range(4):
                    for h, xx in ((1, R(x, i)), (0, xl)):
                        a_ = R(ac, 8 * mat + 2 * d + h)
                        if i == 0: p('v_dot2_f32_bf16 %s, %s, %s, 0' % (a_, R(XR[4 * mat + i], d), xx))
                        else: p('v_dot2c_f32_bf16 %s, %s, %s' % (a_, R(XR[4 * mat + i], d), xx))
        for e in range(8): p('v_permlane32_swap_b32 %s, %s' % (R(ac, e), R(ac, 8 + e)))
        for e in range(8): p('v_add_f32 %s, %s, %s' % (R(ac, e), R(ac, e), R(ac, 8 + e)))
        for e in range(4): p('v_permlane16_swap_b32 %s, %s' % (R(ac, e), R(ac, 4 + e)))
        for e in range(4): p('v_add_f32 %s, %s, %s' % (R(ac, e), R(ac, e), R(ac, 4 + e)))
        for n in (8, 4, 2):
            for e in range(4): ror_add(p, R(ac, e), n)
        p('v_lshrrev_b32 %s, 5, %s' % (R(t[7]), lane)); p('v_lshlrev_b32 %s, 6, %s' % (R(t[7]), R(t[7])))
        p('v_and_b32 %s, 1, %s' % (R(t[6]), lane)); p('v_lshl_add_u32 %s, %s, 5, %s' % (R(t[7]), R(t[6]), R(t[7])))
        p('v_bfe_u32 %s, %s, 4, 1' % (R(t[6]), lane)); p('v_lshl_add_u32 %s, %s, 4, %s' % (R(t[7]), R(t[6]), R(t[7])))
        p('v_lshl_add_u32 %s, %s, 7, %s' % (R(t[7]), v_w, R(t[7])))
        p('s_mov_b32 s26, 0x00030003'); p('s_mov_b32 s27, 0x00030003')
        p('s_mov_b64 exec, s[26:27]')
        p('ds_write_b128 %s, %s offset:%d' % (R(t[7]), R(ac, 0, 4), L_GU))
        p('s_mov_b64 exec, -1')
        p('v_and_b32 %s, 31, %s' % (R(t[6]), lane)); p('v_lshlrev_b32 %s, 2, %s' % (R(t[6]), R(t[6])))
        p('s_waitcnt lgkmcnt(0)')
        p('s_barrier')
        for w_ in range(8): p('ds_read_b32 %s, %s offset:%d' % (R(ac, w_), R(t[6]), L_GU + w_ * 128))
        for step in (4, 2, 1):
            for k in range(step): p('v_add_f32 %s, %s, %s' % (R(ac, k), R(ac, k), R(ac, step + k)))
        g_, u_ = R(ac, 0), R(ac, 1)
        rb1(p, g_)
        p('v_mov_b32 %s, %s' % (u_, g_))
        p('v_permlane16_swap_b32 %s, %s' % (g_, u_))
        silu(p, g_, R(ac, 2))
        rb1(p, g_)
        p('v_mul_f32 %s, %s, %s' % (g_, g_, u_))
        rb1(p, g_)
        p.stamp(5)
        ya, yb = R(yp, 0), R(yp, 1)
        for r_ in range(16):
            sa_, sb_ = 's%d' % (20 + 2 * (r_ % 2)), 's%d' % (21 + 2 * (r_ % 2))
            p('v_readlane_b32 %s, %s, %d' % (sa_, g_, r_))
            p('s_lshr_b32 %s, %s, 16' % (sb_, sa_))
            if r_ == 0:
                p('v_dot2_f32_bf16 %s, %s, %s, 0' % (yb, R(mx, r_), sa_)); p('v_dot2_f32_bf16 %s, %s, %s, 0' % (ya, R(mx, r_), sb_))
            else:
                p('v_dot2_f32_bf16 %s, %s, %s, %s' % (yb, R(mx, r_), sa_, yb)); p('v_dot2_f32_bf16 %s, %s, %s, %s' % (ya, R(mx, r_), sb_, ya))
        p('v_or_b32 %s, 1, %s' % (ya, ya)); p('v_or_b32 %s, 1, %s' % (yb, yb))
        for l in strip_of('s24', 's26'): p(l)
        p('s_lshl_b32 s24, s24, 12'); p('s_add_u32 s24, s24, 0x%x' % Z_YP)
        p('v_lshlrev_b32 %s, 1, %s' % (R(t[7]), R(t[4])))
        p('buffer_store_dwordx2 %s, %s, s[8:11], s24 offen sc1' % (R(yp, 0, 2), R(t[7])))
        p.stamp(6)
        p('s_cmp_lt_u32 s3, 4')
        p('s_cbranch_scc1 %s_os' % name)
        out_rows()
        p.label('%s_os' % name)
        p('s_nop 1')
        out_store()
        p('s_branch %s_end' % name)
        p.alt_next()
        p.label('%s_fin' % name)
        p('s_and_b32 s24, s2, 7'); p('s_lshl_b32 s24, s24, 2'); p('s_lshr_b32 s26, s2, 3'); p('s_sub_u32 s26, s26, 28'); p('s_add_u32 s24, s24, s26')
        p('s_lshl_b32 s63, s24, 5')
        p('v_lshrrev_b32 %s, 3, %s' % (R(t[7]), v_tf)); p('v_lshlrev_b32 %s, 12, %s' % (R(t[7]), R(t[7])))
        p('v_and_b32 %s, 7, %s' % (R(t[6]), v_tf)); p('v_lshl_add_u32 %s, %s, 4, %s' % (R(t[7]), R(t[6]), R(t[7])))
        p('s_lshl_b32 s24, s63, 2'); p('s_add_u32 s24, s24, 0x%x' % Z_YP)
        p('v_and_b32 %s, 31, %s' % (R(t[5]), lane)); p('v_add_u32 %s, s63, %s' % (R(t[5]), R(t[5])))
        p('v_lshlrev_b32 %s, 2, %s' % (R(t[6]), R(t[5])))
        p('ds_read_b32 %s, %s offset:%d' % (R(fin, 8), R(t[6]), L_XS)); p('ds_read_b32 %s, %s offset:%d' % (R(fin, 9), R(t[6]), L_X2S))
        p('v_lshlrev_b32 %s, 1, %s' % (R(t[5]), R(t[5])))
        p('v_add_u32 %s, 0x%x, %s' % (R(t[6]), MODS, R(t[5])))
        p('ds_read_u16 %s, %s offset:4096' % (R(fin, 10), R(t[6])))
        rsel = R(fin, 11)
        p('v_mov_b32 %s, %s' % (rsel, R(gr, 3)))
        rb1(p, rsel)
        p('v_mul_f32 %s, 0x%x, %s' % (rsel, f2u(-LOG2E), rsel))
        p('v_exp_f32 %s, %s' % (rsel, rsel))
        p('v_add_f32 %s, 1.0, %s' % (rsel, rsel))
        p('v_rcp_f32 %s, %s' % (rsel, rsel))
        rb1(p, rsel)
        p('v_lshlrev_b32 %s, 16, %s' % (R(fin, 10), R(fin, 10)))
        p('s_cmp_lt_u32 s3, 4')
        p('s_cbranch_scc1 %s_os2' % name)
        out_rows()
        p.label('%s_os2' % name)
        p('s_nop 1')
        out_store()
        p('v_cmp_gt_u32 vcc, 256, %s' % v_tf)
        p('v_mov_b32 %s, 0x%x' % (R(u8, 0), 192 * 4096))
        p('v_cndmask_b32 %s, 0, %s, vcc' % (R(u8, 0), R(u8, 0)))
        p('v_add_u32 %s, %s, %s' % (R(u8, 0), R(u8, 0), R(t[7])))
        p('v_cndmask_b32 %s, 0, 1.0, vcc' % R(u8, 1))
        def ly():
            for i in range(3):
                p('s_add_u32 s25, s24, %d' % (i * 64 * 4096))
                p('buffer_load_dwordx4 %s, %s, s[8:11], s25 offen sc1' % (R(ac, 4 * i, 4), R(t[7])))
            p('buffer_load_dwordx4 %s, %s, s[8:11], s24 offen sc1' % (R(ac, 12, 4), R(u8, 0)))
        def ty():
            mn = R(u8, 2)
            p('v_min3_u32 %s, %s, %s, %s' % (mn, R(ac, 0), R(ac, 1), R(ac, 2)))
            for k in range(3, 15, 2): p('v_min3_u32 %s, %s, %s, %s' % (mn, mn, R(ac, k), R(ac, k + 1)))
            p('v_min_u32 %s, %s, %s' % (mn, mn, R(ac, 15)))
            p('v_cmp_eq_u32 vcc, 0, %s' % mn)
        poll('y', ly, ty, tsleep)
        p.stamp(7)
        for e in range(4):
            p('v_add_f32 %s, %s, %s' % (R(ac, e), R(ac, e), R(ac, 4 + e)))
            p('v_fma_f32 %s, %s, %s, %s' % (R(ac, 8 + e), R(ac, 12 + e), R(u8, 1), R(ac, 8 + e)))
        for e in range(4): p('v_add_f32 %s, %s, %s' % (R(ac, e), R(ac, e), R(ac, 8 + e)))
        for e in range(4): ror_add(p, R(ac, e), 8)
        for e in range(4): xor16_add(p, R(ac, e), R(u8, 4 + e))
        for e in range(4): xor32_add(p, R(ac, e), R(u8, 4 + e))
        p('v_and_b32 %s, 7, %s' % (R(t[7]), lane)); p('v_lshlrev_b32 %s, 4, %s' % (R(t[7]), R(t[7])))
        p('v_lshl_add_u32 %s, %s, 7, %s' % (R(t[7]), v_w, R(t[7])))
        p('s_mov_b64 exec, 0xff')
        p('ds_write_b128 %s, %s offset:%d' % (R(t[7]), R(ac, 0, 4), L_YR))
        p('s_mov_b64 exec, -1')
        p('s_waitcnt lgkmcnt(0)')
        p('s_barrier')
        p('s_cmp_lg_u32 s3, 0')
        p('s_cbranch_scc1 %s_end' % name)
        p('v_and_b32 %s, 31, %s' % (R(t[7]), lane)); p('v_lshlrev_b32 %s, 2, %s' % (R(t[7]), R(t[7])))
        for w_ in range(8): p('ds_read_b32 %s, %s offset:%d' % (R(ac, w_), R(t[7]), L_YR + w_ * 128))
        for step in (4, 2, 1):
            for k in range(step): p('v_add_f32 %s, %s, %s' % (R(ac, k), R(ac, k), R(ac, step + k)))
        y = R(ac, 0)
        rb1(p, y)
        p('v_mul_f32 %s, %s, %s' % (y, y, rsel))
        rb1(p, y)
        p('v_add_f32 %s, %s, %s' % (y, y, R(fin, 8)))
        rb1(p, y)
        p('v_mul_f32 %s, %s, %s' % (y, y, R(fin, 10)))
        rb1(p, y)
        p('v_add_f32 %s, %s, %s' % (y, y, R(fin, 9)))
        p('v_cvt_pk_bf16_f32 %s, %s, %s' % (y, y, y))
        p('s_mov_b64 exec, 0xffffffff')
        p('buffer_store_short %s, %s, %s, %s offen sc1' % (y, R(t[5]), SR(QX), T_WOFF))
        p('s_mov_b64 exec, -1')
        p('s_cmp_lg_u32 s63, 0')
        p('s_cbranch_scc1 %s_end' % name)
        p('s_mov_b32 s26, 0x%x' % WS_EPOCH)
        p('v_mov_b32 %s, s14' % R(t[6]))
        p('s_mov_b64 exec, 1')
        p('buffer_store_dword %s, %s, s[8:11], s26 offen sc1' % (R(t[6]), zero))
        p('s_mov_b64 exec, -1')
        p.alt_end()

    def tail():
        G = RA('v', BASE, 156)
        gr = G.alloc(4, 4); xf = G.alloc(16, 4); raw = G.alloc(32, 4); mods = G.alloc(32, 4); uf = G.alloc(16, 4); mg = G.alloc(8, 4)
        x = G.alloc(16, 4); u8 = G.alloc(8, 4)
        ac = (S[1][0], S[1][1]); sl = (S[1][0], S[1][1] + 8); fin = (Pb[0], Pb[1])
        assert G.n <= S[1][1]
        free = [v_wqoff, v_tr, v_hoff, v_kvoff, v_pf, v_pfd, v_t[2], v_t[3], v_t[4], v_t[5], v_l[0], v_l[1], v_wt[0], v_wt[1], v_wt[2]]
        t = {0: free[0], 1: free[1], 2: free[2], 4: free[3], 5: free[4], 6: free[5], 7: free[6], 8: free[7], 10: free[8], 11: free[9], 12: free[10]}
        v_w = free[11]; v_tf = free[12]
        w = Wt; wd = Wt; mu = uf
        NPART = 2 if pair else 4
        MSB, MC1, MGB, MWR = 0, 8, 16, 24
        MODS = L_MODS
        T_ROW, T_ROFF, T_CBO, T_WOFF = 's16', 's17', 's18', 's62'
        fa = 7 if 'a' in fl128 else 2
        WAF = WS_AF2 if fa == 7 else WS_AF
        p('s_lshl_b32 s26, s13, 3'); p('s_add_u32 s26, s26, s3'); p('s_lshl_b32 s26, s26, %d' % (fa + 5)); p('s_lshl_b32 s27, s12, %d' % fa); p('s_add_u32 s26, s26, s27')
        p('s_add_u32 s26, s26, 0x%x' % WAF)
        p('v_mov_b32 %s, s14' % R(t[6])); p('v_mov_b32 %s, 0' % R(t[5]))
        p('v_mov_b32 %s, s3' % R(v_w))
        p('v_lshl_add_u32 %s, %s, 6, %s' % (R(v_tf), R(v_w), lane))
        p('v_lshlrev_b32 %s, 2, %s' % (R(t[4]), vid if swapw else R(v_tf)))
        p('v_lshrrev_b32 %s, 3, %s' % (R(t[10]), vid)); p('v_and_b32 %s, 7, %s' % (R(t[11]), vid))
        p('s_lshl_b32 %s, s13, 8' % T_ROW); p('s_lshl_b32 s27, s12, 3'); p('s_add_u32 %s, %s, s27' % (T_ROW, T_ROW)); p('s_add_u32 %s, %s, s3' % (T_ROW, T_ROW))
        p('s_lshl_b32 %s, %s, 11' % (T_ROFF, T_ROW))
        for l in mksrd(p, QZ, 'x', 4194304): p(l)
        for l in mksrd(p, QX, 'out', 4194304): p(l)
        p('v_add_u32 %s, 0x%x, %s' % (R(t[12]), MODS, R(v_l16)))
        for i in range(8): p('ds_read_b128 %s, %s offset:%d' % (R(mods, 4 * i, 4), R(t[12]), i * 1024))
        if not apsent: p.wait_tag('ap')
        p('s_mov_b64 exec, 1')
        p('buffer_store_dword %s, %s, s[8:11], s26 offen sc1' % (R(t[6]), R(t[5])))
        p('s_mov_b64 exec, -1')
        p.stamp(1)
        if apsent:
            assert 'o' not in fl128
            p('v_bfe_u32 %s, %s, 3, 2' % (R(t[8]), lane)); p('v_lshlrev_b32 %s, 7, %s' % (R(t[8]), R(t[8])))
            p('v_and_b32 %s, 7, %s' % (R(t[7]), lane)); p('v_lshl_add_u32 %s, %s, 2, %s' % (R(t[8]), R(t[7]), R(t[8])))
            p('s_lshl_b32 s21, s13, 3'); p('s_lshr_b32 s23, s12, 2'); p('s_add_u32 s21, s21, s23'); p('s_lshl_b32 s21, s21, 9'); p('s_add_u32 s21, s21, 0x%x' % WS_OF)
            p('buffer_load_dword %s, %s, s[8:11], s21 offen sc1' % (R(gr, 0), R(t[8])))
        for hf in range(2):
            p('buffer_load_dwordx4 %s, %s, %s, %s offen offset:%d' % (R(x, 4 * hf, 4), R(v_l16), SR(QZ), T_ROFF, hf * 1024))

        def best_of(ldsoff, n=8):
            p('v_and_b32 %s, %d, %s' % (R(t[7]), n - 1, lane))
            p('v_lshlrev_b32 %s, 4, %s' % (R(t[7]), R(t[7])))
            p('ds_read_b32 %s, %s offset:%d' % (R(u8, 0), R(t[7]), ldsoff))
            p('v_mov_b32 %s, %s' % (R(u8, 1), R(u8, 0)))
            for k in ((1, 2, 4) if n == 8 else (1, 2)): ror_add(p, R(u8, 1), k, 'v_max_u32')
            p('v_cmp_eq_u32 vcc, %s, %s' % (R(u8, 0), R(u8, 1)))
            p('s_ff1_i32_b64 s26, vcc')
            p('s_lshl_b32 s26, s26, 4')
            p('v_mov_b32 %s, s26' % R(t[7]))
            p('ds_read_b128 %s, %s offset:%d' % (R(gr, 0, 4), R(t[7]), ldsoff))
        def gemv(ws_, n):
            for i in range(n):
                xl = R(u8, i % 8)
                p('v_lshrrev_b32 %s, 16, %s' % (xl, R(x, i)))
                for d in range(4):
                    for h, xx in ((1, R(x, i)), (0, xl)):
                        if i == 0: p('v_dot2_f32_bf16 %s, %s, %s, 0' % (R(ac, 2 * d + h), R(ws_[i], d), xx))
                        else: p('v_dot2c_f32_bf16 %s, %s, %s' % (R(ac, 2 * d + h), R(ws_[i], d), xx))
            for e in range(4): p('v_permlane32_swap_b32 %s, %s' % (R(ac, e), R(ac, 4 + e)))
            for e in range(4): p('v_add_f32 %s, %s, %s' % (R(ac, e), R(ac, e), R(ac, 4 + e)))
            for e in range(2): p('v_permlane16_swap_b32 %s, %s' % (R(ac, e), R(ac, 2 + e)))
            for e in range(2): p('v_add_f32 %s, %s, %s' % (R(ac, e), R(ac, e), R(ac, 2 + e)))
            for e in range(2): ror_add(p, R(ac, e), 8)
        def wg_sum(ldsoff):
            p('ds_write_b64 %s, %s offset:%d' % (R(t[0]), R(ac, 0, 2), ldsoff))
            p('s_waitcnt lgkmcnt(0)')
            p('s_barrier')
            for i in range(4): p('ds_read_b32 %s, %s offset:%d' % (R(ac, i), R(t[2]), ldsoff + i * 256))
            for i in range(2): p('v_add_f32 %s, %s, %s' % (R(ac, i), R(ac, i), R(ac, 2 + i)))
            p('v_add_f32 %s, %s, %s' % (R(ac, 0), R(ac, 0), R(ac, 1)))
            p('v_or_b32 %s, 1, %s' % (R(ac, 0), R(ac, 0)))

        a0, a1, b0_, b1_ = R(u8, 0), R(u8, 1), R(u8, 2), R(u8, 3)
        a01, b01 = R(u8, 0, 2), R(u8, 2, 2)
        b0v = R(fin, 2); usum = R(fin, 8)
        p('v_mov_b32 %s, 0' % b0v); p('v_mov_b32 %s, 0' % usum)
        for d in range(8):
            unpack(p, a0, a1, R(mods, MC1 + d)); unpack(p, b0_, b1_, R(mods, MWR + d))
            p('v_pk_mul_f32 %s, %s, %s' % (R(uf, 2 * d, 2), a01, b01))
            unpack(p, a0, a1, R(mods, MSB + d))
            p('v_fmac_f32 %s, %s, %s' % (b0v, a0, b0_)); p('v_fmac_f32 %s, %s, %s' % (b0v, a1, b1_))
            p('v_add_f32 %s, %s, %s' % (usum, usum, R(uf, 2 * d))); p('v_add_f32 %s, %s, %s' % (usum, usum, R(uf, 2 * d + 1)))
        for n in (1, 2, 4, 8):
            ror_add(p, b0v, n); ror_add(p, usum, n)
        xor16_add(p, b0v, a0); xor16_add(p, usum, a1); xor32_add(p, b0v, a0); xor32_add(p, usum, a1)
        p('v_lshlrev_b32 %s, 2, %s' % (R(t[6]), vid))
        p('s_lshl_b32 s25, %s, 10' % T_KH); p('s_add_u32 s25, s25, %d' % MODS)
        p('v_add_u32 %s, s25, %s' % (R(t[7]), R(t[6])))
        p('ds_read_b32 %s, %s offset:2048' % (R(sl, 4), R(t[7])))
        p('ds_read_b32 %s, %s' % (R(sl, 6), R(t[7])))
        p('s_lshl_b32 %s, %s, 7' % (T_CBO, T_CB))
        p('s_add_u32 s25, %s, %d' % (T_CBO, MODS))
        p('v_lshl_add_u32 %s, %s, 1, s25' % (R(t[7]), lane))
        for k, off in enumerate((2048, 0, 4096)): p('ds_read_u16 %s, %s offset:%d' % (R(mg, 5 + k), R(t[7]), off))
        for r_ in (R(mg, 5), R(mg, 6), R(mg, 7)): p('v_lshlrev_b32 %s, 16, %s' % (r_, r_))
        unpack(p, R(sl, 4), R(sl, 5), R(sl, 4)); unpack(p, R(sl, 6), R(sl, 7), R(sl, 6))
        for d in range(8): unpack(p, R(xf, 2 * d), R(xf, 2 * d + 1), R(x, d))
        def aprow(dst, row):
            p('s_lshr_b32 %s, %s, 4' % (dst, row)); p('s_lshl_b32 %s, %s, 15' % (dst, dst))
            p('s_and_b32 s27, %s, 15' % row); p('s_lshl_b32 s27, s27, 6'); p('s_add_u32 %s, %s, s27' % (dst, dst))
            p('s_add_u32 %s, %s, 0x%x' % (dst, dst, WS_AP4))
        aprow('s24', T_ROW)
        p('v_lshrrev_b32 %s, 2, %s' % (R(t[1]), lane)); p('v_lshlrev_b32 %s, 10, %s' % (R(t[1]), R(t[1])))
        p('v_and_b32 %s, 3, %s' % (R(t[0]), lane)); p('v_lshl_add_u32 %s, %s, 4, %s' % (R(t[1]), R(t[0]), R(t[1])))
        p('v_and_b32 %s, 31, %s' % (R(t[7]), lane))
        p('v_lshlrev_b32 %s, %d, %s' % (R(t[7]), fa, R(t[7])))
        p('s_lshl_b32 s22, s13, 3'); p('s_lshr_b32 s23, s12, 2'); p('s_add_u32 s22, s22, s23'); p('s_lshl_b32 s22, s22, %d' % (fa + 5)); p('s_add_u32 s22, s22, 0x%x' % WAF)
        if apsent:
            p('v_cmp_ne_u32 vcc, s14, %s' % R(gr, 0))
            p('s_cbranch_vccz %s_ocg' % name)
            q = p.raw
            q('s_mov_b32 s27, 0')
            p.label('%s_ocp' % name)
            q('buffer_load_dword %s, %s, s[8:11], s21 offen sc1' % (R(gr, 0), R(t[8]))); q('s_waitcnt vmcnt(0)')
            q('v_cmp_ne_u32 vcc, s14, %s' % R(gr, 0))
            q('s_add_u32 s27, s27, 1'); q('s_cmp_ge_u32 s27, %d' % SPIN_MAX); q('s_nop 4')
            q('s_cbranch_scc1 %s_ocg' % name)
            q('s_cbranch_vccnz %s_ocp' % name)
            p.label('%s_ocg' % name)
        if approg:
            p('s_waitcnt vmcnt(0) lgkmcnt(0)')
            q = p.raw
            q('s_mov_b32 s27, 0'); q('s_mov_b32 s21, 0')
            p.label('%s_gp0' % name)
            q('buffer_load_dword %s, %s, s[8:11], s22 offen sc1' % (a0, R(t[7])))
            q('s_waitcnt vmcnt(0)')
            q('v_cmp_eq_u32 vcc, s14, %s' % a0)
            q('s_nop 4')
            for k in range(4):
                q('s_bitcmp1_b32 s21, %d' % k)
                q('s_cbranch_scc1 %s_gs%d' % (name, k))
                q('s_bfe_u32 s23, vcc_lo, 0x%x' % ((8 * k) | (8 << 16)))
                q('s_cmp_lg_u32 s23, 0xff')
                q('s_cbranch_scc1 %s_gs%d' % (name, k))
                q('s_bitset1_b32 s21, %d' % k)
                for hf in range(2):
                    q('s_add_u32 s25, s24, 0x%x' % (k * 0x400000 + hf * 16384))
                    q('buffer_load_dwordx4 %s, %s, s[8:11], s25 offen sc1' % (R(raw, 8 * k + 4 * hf, 4), R(t[1])))
                p.label('%s_gs%d' % (name, k))
            q('s_cmp_eq_u32 s21, 15')
            q('s_cbranch_scc1 %s_gd' % name)
            q('s_add_u32 s27, s27, 1'); q('s_cmp_ge_u32 s27, %d' % SPIN_MAX)
            q('s_cbranch_scc1 %s_gd' % name)
            if tsleep: q('s_sleep %d' % tsleep)
            q('s_branch %s_gp0' % name)
            p.label('%s_gd' % name)
            p.stamp(2)
            q('s_waitcnt vmcnt(0)')
        else:
            poll('r', lambda: p('buffer_load_dword %s, %s, s[8:11], s22 offen sc1' % (a0, R(t[7]))),
                 lambda: p('v_cmp_ne_u32 vcc, s14, %s' % a0), tsleep)
            p.stamp(2)
        def apl():
            for hf in range(2):
                for k in range(NPART):
                    p('s_add_u32 s25, s24, 0x%x' % (k * 0x400000 + hf * 16384))
                    p('buffer_load_dwordx4 %s, %s, s[8:11], s25 offen sc1' % (R(raw, 8 * k + 4 * hf, 4), R(t[1])))
        if apsent:
            def apt():
                mxr = R(gr, 1)
                p('v_max3_u32 %s, %s, %s, %s' % (mxr, R(raw, 0), R(raw, 1), R(raw, 2)))
                for i in range(3, 31, 2): p('v_max3_u32 %s, %s, %s, %s' % (mxr, mxr, R(raw, i), R(raw, i + 1)))
                p('v_max_u32 %s, %s, %s' % (mxr, mxr, R(raw, 31)))
                p('v_cmp_eq_u32 vcc, -1, %s' % mxr)
            poll('d', apl, apt, tsleep)
        elif not approg:
            apl()
        for d in range(8):
            k = (d % 2) * 4
            A0, A1, B0_, B1 = [R(u8, k + i) for i in range(4)]
            tt = R(t[7 + (d % 2)])
            unpack(p, A0, A1, R(raw, d)); unpack(p, B0_, B1, R(raw, 8 + d))
            p('v_pk_add_f32 %s, %s, %s' % (R(u8, k, 2), R(u8, k, 2), R(u8, k + 2, 2)))
            if NPART == 4:
                unpack(p, B0_, B1, R(raw, 16 + d))
                p('v_pk_add_f32 %s, %s, %s' % (R(u8, k, 2), R(u8, k, 2), R(u8, k + 2, 2)))
                unpack(p, B0_, B1, R(raw, 24 + d))
                p('v_pk_add_f32 %s, %s, %s' % (R(u8, k, 2), R(u8, k, 2), R(u8, k + 2, 2)))
            p('v_pk_add_f32 %s, %s, %s' % (R(xf, 2 * d, 2), R(xf, 2 * d, 2), R(u8, k, 2)))
            rb2(p, R(xf, 2 * d), R(xf, 2 * d + 1), tt)
        p.stamp(7)
        mean, var, s3v, rcp = R(fin, 4), R(fin, 5), R(fin, 6), R(fin, 7)
        p('v_readfirstlane_b32 s25, %s' % R(xf, 0))
        p('v_mov_b32 %s, s25' % R(fin, 0))
        for d in range(8): p('v_pk_add_f32 %s, %s, %s op_sel_hi:[1,0] neg_lo:[0,1] neg_hi:[0,1]' % (R(raw, 2 * d, 2), R(xf, 2 * d, 2), R(fin, 0, 2)))
        c01 = R(u8, 4, 2)
        p('v_pk_add_f32 %s, %s, %s' % (c01, R(raw, 0, 2), R(raw, 2, 2)))
        p('v_pk_mul_f32 %s, %s, %s' % (a01, R(raw, 0, 2), R(raw, 0, 2)))
        p('v_pk_mul_f32 %s, %s, %s' % (b01, R(raw, 0, 2), R(uf, 0, 2)))
        for d in range(1, 8):
            if d >= 2: p('v_pk_add_f32 %s, %s, %s' % (c01, c01, R(raw, 2 * d, 2)))
            p('v_pk_fma_f32 %s, %s, %s, %s' % (a01, R(raw, 2 * d, 2), R(raw, 2 * d, 2), a01))
            p('v_pk_fma_f32 %s, %s, %s, %s' % (b01, R(raw, 2 * d, 2), R(uf, 2 * d, 2), b01))
        p('v_add_f32 %s, %s, %s' % (mean, R(u8, 4), R(u8, 5)))
        p('v_add_f32 %s, %s, %s' % (var, a0, a1)); p('v_add_f32 %s, %s, %s' % (s3v, b0_, b1_))
        for n in (1, 2, 4, 8):
            ror_add(p, mean, n); ror_add(p, var, n); ror_add(p, s3v, n)
        xor16_add(p, mean, a0); xor16_add(p, var, a1); xor16_add(p, s3v, b0_)
        xor32_add(p, mean, a0); xor32_add(p, var, a1); xor32_add(p, s3v, b0_)
        p('v_mul_f32 %s, 0x%x, %s' % (mean, f2u(1.0 / 1024), mean))
        p('v_mul_f32 %s, 0x%x, %s' % (var, f2u(1.0 / 1024), var))
        p('v_fma_f32 %s, -%s, %s, %s' % (var, mean, mean, var))
        p('v_max_f32 %s, 0, %s' % (var, var))
        p('v_fma_f32 %s, -%s, %s, %s' % (s3v, mean, usum, s3v))
        p('v_add_f32 %s, s25, %s' % (mean, mean))
        p('v_add_f32 %s, 0x%x, %s' % (a0, f2u(1e-5), var))
        p('v_rsq_f32 %s, %s' % (a0, a0))
        p('v_fma_f32 %s, %s, %s, %s' % (R(gr, 3), s3v, a0, b0v))
        sd = s3v
        ln_scalars(p, mean, var, sd, rcp)
        p('v_mov_b32 %s, %s' % (R(gr, 1), mean))
        p('v_mov_b32 %s, %s' % (R(gr, 2), sd))
        p('v_ashrrev_i32 %s, 31, %s' % (R(t[8]), R(gr, 3)))
        p('v_or_b32 %s, 0x80000000, %s' % (R(t[8]), R(t[8])))
        p('v_xor_b32 %s, %s, %s' % (R(gr, 0), R(gr, 3), R(t[8])))
        p('v_and_b32 %s, 0xfffff800, %s' % (R(gr, 0), R(gr, 0)))
        p('v_max_u32 %s, 0x800, %s' % (R(gr, 0), R(gr, 0)))
        p('s_sub_u32 s24, 2047, %s' % T_ROW)
        p('v_or_b32 %s, s24, %s' % (R(gr, 0), R(gr, 0)))
        p('v_lshlrev_b32 %s, 4, %s' % (R(t[7]), R(v_w)))
        p('ds_write_b128 %s, %s' % (R(t[7]), R(gr, 0, 4)))
        p('s_waitcnt lgkmcnt(0)')
        p('s_barrier')
        if outlate == 3:
            p('v_and_b32 %s, 7, %s' % (R(t[7]), lane)); p('v_lshlrev_b32 %s, 4, %s' % (R(t[7]), R(t[7])))
            p('ds_read_b32 %s, %s' % (R(u8, 0), R(t[7])))
            for k in (1, 2, 4): ror_add(p, R(u8, 0), k, 'v_max_u32')
            p('v_cmp_eq_u32 vcc, %s, %s' % (R(u8, 0), R(gr, 0)))
            p('s_cmp_lg_u64 vcc, 0'); p('s_cselect_b32 s63, 1, 0')
        p('s_cmp_lg_u32 s3, 0')
        p('s_cbranch_scc1 %s_nk' % name)
        best_of(0)
        fk = 7 if 'k' in fl128 else 4
        p('s_lshl_b32 s24, s2, %d' % fk)
        p('s_add_u32 s24, s24, 0x%x' % WS_KEY2)
        p('s_mov_b64 exec, 1')
        p('buffer_store_dwordx4 %s, %s, s[8:11], s24 offen sc1' % (R(gr, 0, 4), R(t[5])))
        p('s_mov_b64 exec, -1')
        p.label('%s_nk' % name)
        p('s_waitcnt lgkmcnt(0)')
        p.stamp(3)
        def out_rows():
            for hf in range(2):
                X = [R(raw, i) for i in range(8)]
                c1 = [R(raw, 8 + i) for i in range(8)]
                for i in range(8): p('v_sub_f32 %s, %s, %s' % (X[i], R(xf, 8 * hf + i), mean))
                for i in range(0, 8, 2): rb2(p, X[i], X[i + 1], R(t[8]))
                for i in range(8): p('v_mul_f32 %s, %s, %s' % (X[i], X[i], rcp))
                for i in range(0, 8, 2): rb2(p, X[i], X[i + 1], R(t[8]))
                for op, mo_ in (('v_pk_mul_f32', MC1), ('v_pk_add_f32', MSB), ('v_pk_mul_f32', MGB)):
                    for d in range(4): unpack(p, c1[2 * d], c1[2 * d + 1], R(mods, mo_ + 4 * hf + d))
                    for d in range(4): p('%s %s, %s, %s' % (op, R(raw, 2 * d, 2), R(raw, 2 * d, 2), R(raw, 8 + 2 * d, 2)))
                    for i in range(0, 8, 2): rb2(p, X[i], X[i + 1], R(t[8]))
                for d in range(4): p('v_pk_add_f32 %s, %s, %s' % (R(raw, 2 * d, 2), R(raw, 2 * d, 2), R(xf, 8 * hf + 2 * d, 2)))
                for d in range(4): p('v_cvt_pk_bf16_f32 %s, %s, %s' % (R(raw, 16 + 4 * hf + d), X[2 * d], X[2 * d + 1]))
        p('v_lshlrev_b32 %s, 5, %s' % (R(t[0]), R(t[11])))
        p('v_bfe_u32 %s, %s, 4, 2' % (R(t[2]), lane))
        p('v_lshl_add_u32 %s, %s, 3, %s' % (R(t[0]), R(t[2]), R(t[0])))
        p('v_bfe_u32 %s, %s, 6, 2' % (R(t[2]), R(v_tf)))
        p('v_lshl_add_u32 %s, %s, 8, %s' % (R(t[0]), R(t[2]), R(t[0])))
        p('v_lshlrev_b32 %s, 2, %s' % (R(t[2]), lane))
        def winner():
            best_of(256, 4)
            p('v_and_b32 %s, 0x7ff, %s' % (R(u8, 0), R(gr, 0)))
            p('v_sub_u32 %s, 2047, %s' % (R(u8, 0), R(u8, 0)))
            p('v_readfirstlane_b32 %s, %s' % (T_WIN, R(u8, 0)))
            p('s_lshl_b32 %s, %s, 11' % (T_WOFF, T_WIN))
            p('v_rcp_f32 %s, %s' % (R(sl, 3), R(gr, 2)))
            p('s_cmp_lg_u32 %s, %s' % (T_WIN, T_ROW)); p('s_cselect_b32 s23, %s, 0x7ffffff0' % T_ROFF)
        def out_store():
            for hf in range(2):
                p('buffer_store_dwordx4 %s, %s, %s, s23 offen offset:%d sc1' % (R(raw, 16 + 4 * hf, 4), R(v_l16), SR(QX), hf * 1024))
        p('s_cmp_%s_u32 s3, 4' % ('ge' if swapw else 'lt'))
        p('s_cbranch_scc1 %s_dn' % name)
        p.alt_begin()
        if not bfirst: out_rows()
        if outlate == 3:
            p('s_cmp_eq_u32 s63, 0'); p('s_cselect_b32 s23, %s, 0x7ffffff0' % T_ROFF); out_store()
        p('v_lshrrev_b32 %s, 6, %s' % (R(t[12]), R(t[6]))); p('v_lshlrev_b32 %s, 10, %s' % (R(t[12]), R(t[12])))
        p('v_and_b32 %s, 63, %s' % (R(t[7]), R(t[6]))); p('v_add_u32 %s, %s, %s' % (R(t[12]), R(t[12]), R(t[7])))
        p('v_lshlrev_b32 %s, %d, %s' % (R(t[7]), fk - 2, R(t[6])))
        p('s_mov_b32 s26, 0x%x' % WS_KEY2)
        poll('w', lambda: p('buffer_load_dwordx4 %s, %s, s[8:11], s26 offen sc1' % (R(gr, 0, 4), R(t[7]))),
             lambda: p('v_cmp_eq_u32 vcc, 0, %s' % R(gr, 0)), tsleep)
        p('v_mov_b32 %s, %s' % (R(u8, 0), R(gr, 0)))
        for n in (1, 2, 4, 8): ror_add(p, R(u8, 0), n, 'v_max_u32')
        xor16_add(p, R(u8, 0), R(u8, 1), 'v_max_u32'); xor32_add(p, R(u8, 0), R(u8, 1), 'v_max_u32')
        p('v_cmp_eq_u32 vcc, %s, %s' % (R(u8, 0), R(gr, 0)))
        p('v_lshlrev_b32 %s, 4, %s' % (R(t[7]), R(v_w)))
        p('s_and_saveexec_b64 s[26:27], vcc')
        p('ds_write_b128 %s, %s offset:%d' % (R(t[7]), R(gr, 0, 4), 256 if swapw else 192))
        p('s_mov_b64 exec, s[26:27]')
        p('s_waitcnt lgkmcnt(0)')
        p('s_barrier')
        winner()
        p.stamp(4)
        p('s_lshl_b32 s24, %s, 10' % T_KH)
        p('s_add_u32 s24, %s, s24' % T_WOFF)
        aprow('s25', T_WIN)
        p('s_lshl_b32 s26, %s, 14' % T_KH); p('s_add_u32 s25, s25, s26')
        for k in range(NPART):
            p('s_add_u32 s26, s25, 0x%x' % (k * 0x400000))
            p('buffer_load_dword %s, %s, s[8:11], s26 offen sc1' % (R(raw, k), R(t[12])))
        p('buffer_load_dword %s, %s, %s, s24 offen' % (R(sl, 2), R(t[6]), SR(QZ)))
        unpack(p, a0, a1, R(raw, 0)); unpack(p, b0_, b1_, R(raw, 1))
        p('v_pk_add_f32 %s, %s, %s' % (R(x, 0, 2), a01, b01))
        for k in range(2, NPART):
            unpack(p, a0, a1, R(raw, k))
            p('v_pk_add_f32 %s, %s, %s' % (R(x, 0, 2), a01, R(x, 0, 2)))
        unpack(p, a0, a1, R(sl, 2))
        p('v_pk_add_f32 %s, %s, %s' % (R(x, 0, 2), a01, R(x, 0, 2)))
        X = [R(x, 0), R(x, 1)]
        rb2(p, X[0], X[1], a0)
        ln_apply(p, X, 2, R(gr, 1), R(gr, 2), R(sl, 3), [R(sl, 4), R(sl, 5)], [R(sl, 6), R(sl, 7)], R(u8, 0), R(u8, 1))
        rb2(p, X[0], X[1], a0)
        p('v_lshlrev_b32 %s, 1, %s' % (R(t[7]), R(t[6])))
        p('ds_write_b64 %s, %s offset:512' % (R(t[7]), R(x, 0, 2)))
        p('v_lshlrev_b32 %s, 6, %s' % (R(t[7]), R(t[10])))
        p('s_waitcnt lgkmcnt(0)')
        for i in range(4):
            p('ds_read_b128 %s, %s offset:%d' % (R(x, 4 * i, 4), R(t[7]), 512 + i * 16))
        p('s_lshl_b32 s26, %s, 1' % T_MT)
        p('s_add_u32 s26, s26, %s' % T_KH)
        p('s_mul_i32 s26, s26, %d' % (3584 * 4))
        p('s_lshl_b32 s25, %s, 8' % T_STRIP)
        p('s_add_u32 s26, s26, s25')
        p('s_add_u32 s26, s26, 0x%x' % WS_GU2)
        p('s_cmp_lt_u32 s2, 224'); p('s_cselect_b32 s26, s26, 0x7ffffff0')
        p('s_cmp_eq_u32 s3, %d' % (0 if swapw else 4)); p('s_cselect_b32 s26, s26, 0x7ffffff0')
        p('s_mov_b32 s25, s26')
        gemv(w, 16)
        wg_sum(4096)
        p('buffer_store_dword %s, %s, s[8:11], s25 offen sc1' % (R(ac, 0), R(t[2])))
        p.stamp(5)
        if bfirst: out_rows()
        p('s_cmp_lg_u32 %s, %s' % (T_WIN, T_ROW)); p('s_cselect_b32 s23, %s, 0x7ffffff0' % T_ROFF)
        if outlate == 3:
            p('s_cmp_lg_u32 s63, 0'); p('s_cselect_b32 s23, s23, 0x7ffffff0')
        if outlate == 2:
            p('s_barrier'); p('s_barrier')
        out_store()
        p('s_branch %s_end' % name)
        p.alt_next()
        p.label('%s_dn' % name)
        out_rows()
        if outlate == 3:
            p('s_cmp_eq_u32 s63, 0'); p('s_cselect_b32 s23, %s, 0x7ffffff0' % T_ROFF); out_store()
        p('s_barrier')
        winner()
        p('s_add_u32 %s, %s, %s' % (T_WOFF, T_WOFF, T_CBO))
        p('v_lshlrev_b32 %s, 1, %s' % (R(t[8]), lane))
        aprow('s25', T_WIN)
        p('s_lshl_b32 s26, %s, 11' % T_CB); p('s_add_u32 s25, s25, s26')
        p('v_lshrrev_b32 %s, 5, %s' % (R(t[12]), lane)); p('v_lshlrev_b32 %s, 10, %s' % (R(t[12]), R(t[12])))
        p('v_and_b32 %s, 63, %s' % (R(t[7]), R(t[8]))); p('v_add_u32 %s, %s, %s' % (R(t[12]), R(t[12]), R(t[7])))
        for k in range(NPART):
            p('s_add_u32 s26, s25, 0x%x' % (k * 0x400000))
            p('buffer_load_ushort %s, %s, s[8:11], s26 offen sc1' % (R(raw, k), R(t[12])))
        p('buffer_load_ushort %s, %s, %s, %s offen' % (R(raw, 4), R(t[8]), SR(QZ), T_WOFF))
        if not outlate: out_store()
        g = mg
        p('v_min_u32 %s, 223, %s' % (R(t[6]), vid if swapw else R(v_tf)))
        p('v_lshlrev_b32 %s, 2, %s' % (R(t[6]), R(t[6])))
        p('s_mul_i32 s24, %s, %d' % (T_KB, 224 * 4))
        p('s_add_u32 s24, s24, 0x%x' % WS_GU2)
        p('v_mul_u32_u24 %s, 28, %s' % (R(t[7]), R(t[10])))
        p('s_barrier')
        def l1():
            for k in range(4):
                p('s_add_u32 s25, s24, %d' % (k * 3584 * 4))
                p('buffer_load_dword %s, %s, s[8:11], s25 offen sc1' % (R(g, k), R(t[6])))
        def t1():
            p('v_min_u32 %s, %s, %s' % (R(g, 4), R(g, 0), R(g, 1)))
            p('v_min3_u32 %s, %s, %s, %s' % (R(g, 4), R(g, 4), R(g, 2), R(g, 3)))
            p('v_cmp_eq_u32 vcc, 0, %s' % R(g, 4))
        poll('a', l1, t1, 0)
        ga_, ua = R(g, 0), R(g, 2)
        p('v_add_f32 %s, %s, %s' % (ga_, R(g, 0), R(g, 1)))
        p('v_add_f32 %s, %s, %s' % (ua, R(g, 2), R(g, 3)))
        rb2(p, ga_, ua, R(g, 4))
        silu(p, ga_, R(g, 4))
        rb1(p, ga_)
        p('v_mul_f32 %s, %s, %s' % (ga_, ga_, ua))
        rb1(p, ga_)
        p('ds_write_b32 %s, %s offset:8192' % (R(t[4]), ga_))
        p('s_waitcnt lgkmcnt(0)')
        p('s_barrier')
        p.stamp(6)
        for i in range(7): p('ds_read_b32 %s, %s offset:%d' % (R(x, i), R(t[7]), 8192 + 4 * i))
        p('s_lshl_b32 s24, %s, 12' % T_CB)
        p('s_add_u32 s24, s24, 0x%x' % WS_YP2)
        p('s_lshl_b32 s25, %s, 8' % T_KB)
        p('s_add_u32 s25, s25, s24')
        gemv(wd, 7)
        wg_sum(12288)
        if outlate:
            p('s_cmp_eq_u32 s3, %d' % (4 if swapw else 0)); p('s_cselect_b32 s25, s25, 0x7ffffff0')
            p('buffer_store_dword %s, %s, s[8:11], s25 offen sc1' % (R(ac, 0), R(t[2])))
            p('s_cmp_lg_u32 %s, %s' % (T_WIN, T_ROW)); p('s_cselect_b32 s23, %s, 0x7ffffff0' % T_ROFF)
            if outlate == 3:
                p('s_cmp_lg_u32 s63, 0'); p('s_cselect_b32 s23, s23, 0x7ffffff0')
            out_store()
            p('s_cmp_lg_u32 s3, %d' % (4 if swapw else 0))
            p('s_cbranch_scc1 %s_end' % name)
        else:
            p('s_cmp_lg_u32 s3, 0')
            p('s_cbranch_scc1 %s_end' % name)
            p('buffer_store_dword %s, %s, s[8:11], s25 offen sc1' % (R(ac, 0), R(t[2])))
        p('s_cmp_lg_u32 %s, 15' % T_KB)
        p('s_cbranch_scc1 %s_end' % name)
        rsel = R(fin, 2)
        p('v_mov_b32 %s, %s' % (rsel, R(gr, 3)))
        rb1(p, rsel)
        p('v_mul_f32 %s, 0x%x, %s' % (rsel, f2u(-LOG2E), rsel))
        p('v_exp_f32 %s, %s' % (rsel, rsel))
        p('v_add_f32 %s, 1.0, %s' % (rsel, rsel))
        p('v_rcp_f32 %s, %s' % (rsel, rsel))
        rb1(p, rsel)
        x2s = R(fin, 0)
        for k in list(range(NPART)) + [4]: p('v_lshlrev_b32 %s, 16, %s' % (R(raw, k), R(raw, k)))
        p('v_add_f32 %s, %s, %s' % (x2s, R(raw, 0), R(raw, 1)))
        if NPART == 4:
            p('v_add_f32 %s, %s, %s' % (x2s, x2s, R(raw, 2))); p('v_add_f32 %s, %s, %s' % (x2s, x2s, R(raw, 3)))
        p('v_add_f32 %s, %s, %s' % (x2s, R(raw, 4), x2s))
        rb1(p, x2s)
        X = [R(fin, 1), R(fin, 3)]
        p('v_mov_b32 %s, %s' % (X[0], x2s)); p('v_mov_b32 %s, %s' % (X[1], x2s))
        ln_apply(p, X, 2, R(gr, 1), R(gr, 2), R(sl, 3), [R(mg, 5), R(mg, 5)], [R(mg, 6), R(mg, 6)], R(u8, 4), R(u8, 5))
        rb1(p, X[0])
        pp = [R(mu, k) for k in range(16)]
        mn = R(t[6])
        def l2():
            for k in range(15): p('buffer_load_dword %s, %s, s[8:11], s24 offen offset:%d sc1' % (pp[k], R(t[2]), k * 256))
        def t2():
            p('v_min3_u32 %s, %s, %s, %s' % (mn, pp[0], pp[1], pp[2]))
            for k in range(3, 15, 2): p('v_min3_u32 %s, %s, %s, %s' % (mn, mn, pp[k], pp[k + 1]))
            p('v_cmp_eq_u32 vcc, 0, %s' % mn)
        poll('y', l2, t2, 0)
        p.stamp(7)
        p('v_mov_b32 %s, %s' % (pp[15], R(ac, 0)))
        for step in (8, 4, 2, 1):
            for k in range(step): p('v_add_f32 %s, %s, %s' % (pp[k], pp[k], pp[step + k]))
        y = pp[0]
        rb1(p, y)
        p('v_mul_f32 %s, %s, %s' % (y, y, rsel))
        rb1(p, y)
        p('v_add_f32 %s, %s, %s' % (y, y, X[0]))
        rb1(p, y)
        p('v_mul_f32 %s, %s, %s' % (y, y, R(mg, 7)))
        rb1(p, y)
        p('v_add_f32 %s, %s, %s' % (y, y, x2s))
        p('v_cvt_pk_bf16_f32 %s, %s, %s' % (y, y, y))
        p('buffer_store_short %s, %s, %s, %s offen sc1' % (y, R(t[8]), SR(QX), T_WOFF))
        p('s_cmp_lg_u32 %s, 0' % T_CB)
        p('s_cbranch_scc1 %s_end' % name)
        p('s_mov_b32 s26, 0x%x' % WS_EPOCH)
        p('v_mov_b32 %s, s14' % R(t[6]))
        p('s_mov_b64 exec, 1')
        p('buffer_store_dword %s, %s, s[8:11], s26 offen sc1' % (R(t[6]), R(t[5])))
        p('s_mov_b64 exec, -1')
        p.alt_end()
    p('s_cmp_ge_u32 s3, 4')
    p('s_cbranch_scc1 %s_roleB' % name)
    p.alt_begin()
    front_A(); phase1('A'); phase2('A')
    p('s_branch %s_chk' % name)
    p.alt_next()
    p.label('%s_roleB' % name)
    front_B(); phase1('B'); phase2('B')
    p.alt_end()
    p.label('%s_chk' % name)
    if prio_reset: p('s_setprio 0')
    p.stamp(11)
    l0, l1 = R(v_l[0]), R(v_l[1])
    for x, y in zip(xl_red(l0, R(v_t[0]), 'v_add_f32'), xl_red(l1, R(v_t[2]), 'v_add_f32')): p(x); p(y)
    mo = [R(v_t[1]), R(v_t[3])]
    regs = [R(acc[dt], r) for dt in range(4) for r in range(16)]
    p('v_max3_f32 %s, |%s|, |%s|, %s' % (mo[0], regs[0], regs[1], l0))
    p('v_max3_f32 %s, |%s|, |%s|, %s' % (mo[1], regs[2], regs[3], l1))
    for i in range(4, 64, 2): p('v_max3_f32 %s, |%s|, |%s|, %s' % (mo[i // 2 % 2], regs[i], regs[i + 1], mo[i // 2 % 2]))
    p('v_max_f32 %s, %s, %s' % (mo[0], mo[0], mo[1]))
    p('s_mov_b32 s26, 0x%x' % f2u(2.0 ** 120))
    p('v_cmp_ngt_f32 vcc, s26, %s' % mo[0])
    p('v_cmp_u_f32 s[26:27], %s, %s' % (l0, l1))
    p('s_or_b64 vcc, vcc, s[26:27]')
    p('s_cbranch_vccnz %s_slow' % name)
    p.label('%s_epi' % name)
    if stage == 2 and not mlp2:
        p('s_cmp_%s_u32 s3, 4' % ('ge' if swapw else 'lt'))
        p('s_cbranch_scc1 %s_nw15' % name)
        a_, b_ = wloads(False)[15]
        p(a_); p(b_)
        p.label('%s_nw15' % name)
    rl = [R(v_t[1]), R(v_t[3])]
    assert v_t[1][1] % 2 == 0 and v_t[3][1] % 2 == 0
    p('v_rcp_f32 %s, %s' % (rl[0], l0)); p('v_rcp_f32 %s, %s' % (rl[1], l1))
    p('s_lshl_b32 s19, s13, 3'); p('s_add_u32 s19, s19, s3')
    p('s_mul_i32 s20, s19, %d' % (2 * O_STRIDE))
    p('s_lshl_b32 s25, s12, 12')
    p('s_add_u32 s20, s20, s25')
    p('s_add_u32 s20, s20, 0x%x' % WS_O)
    p('s_add_u32 s25, s20, %d' % O_STRIDE)
    for T in range(4):
        for qs in range(2):
            o = S[qs]
            of = o if stage == 1 else qf[qs * 4 + T]
            for b in range(2):
                if opk:
                    for k in range(0, 4, 2): p('v_pk_mul_f32 %s, %s, %s op_sel_hi:[1,0]' % (R(o, 8 + 4 * b + k, 2), R(acc[T], b * 8 + qs * 4 + k, 2), R(v_t[1 + 2 * qs], 0, 2)))
                else:
                    for k in range(4): p('v_mul_f32 %s, %s, %s' % (R(o, 8 + 4 * b + k), R(acc[T], b * 8 + qs * 4 + k), rl[qs]))
            for r in range(0, 8, 2): p('v_cvt_pk_bf16_f32 %s, %s, %s' % (R(of, r // 2), R(o, 8 + r), R(o, 8 + r + 1)))
            p('buffer_store_dwordx4 %s, %s, s[8:11], %s offen offset:%d %s' % (R(of, 0, 4), R(v_l16), 's25' if qs else 's20', T * 1024, ost), 'ost')
    if stage == 1:
        p('s_or_b32 s26, s2, s3')
        p('s_cmp_eq_u32 s26, 0'); p('s_mov_b32 s26, 0x%x' % WS_EPOCH); p('s_cselect_b32 s26, s26, 0x7ffffff0')
        p('v_mov_b32 %s, s14' % R(v_t[0])); p('v_mov_b32 %s, 0' % R(v_t[1]))
        p('s_mov_b64 exec, 1')
        p('buffer_store_dword %s, %s, s[8:11], s26 offen sc1' % (R(v_t[0]), R(v_t[1])))
        p('s_mov_b64 exec, -1')
    else:
        p.stamp(12)
        phase3_and_tail()
    p('s_branch %s_end' % name)

    p.label('%s_slow' % name)
    p.flush()
    p('s_cmp_eq_u32 s15, 0x7777')
    p('s_cbranch_scc1 %s_epi' % name)
    p('s_mov_b32 s15, 0x7777')
    p('v_add_u32 %s, s18, %s' % (R(v_kvoff), R(v_l16)))
    ms, m2s = [R(v_t[0]), R(v_t[1])], [R(v_t[2]), R(v_t[3])]
    p('v_mov_b32 %s, 0xff7fffff' % ms[0]); p('v_mov_b32 %s, 0xff7fffff' % ms[1])
    p('s_mov_b32 s22, 0')
    KF = XR if stage == 1 else fr[:6] + [(S[1][0], S[1][1]), (S[1][0], S[1][1] + 4)]
    p.loop_begin()
    p.label('%s_s1' % name)
    p('s_add_u32 s23, s22, 4096')
    for t in range(8):
        p('buffer_load_dwordx4 %s, %s, s[8:11], %s offen offset:%d sc1' % (R(KF[t], 0, 4), R(v_kvoff), 's22' if t < 4 else 's23', (t % 4) * 1024))
    for t in range(8):
        for m_ in mf_k(0, t, R(KF[t], 0, 4), True): p(m_)
    for r in range(0, 16, 2): p('v_max3_f32 %s, %s, %s, %s' % (ms[(r // 4) % 2], ms[(r // 4) % 2], R(S[0], r), R(S[0], r + 1)))
    p('s_add_u32 s22, s22, 16384')
    p('s_cmp_lt_u32 s22, 0x40000')
    p('s_cbranch_scc1 %s_s1' % name)
    p.loop_end()
    for o in finish_max(ms, m2s): p(o)
    for dt in range(4):
        for r in range(16): p('v_mov_b32 %s, 0' % R(acc[dt], r))
    p('v_mov_b32 %s, 0' % l0); p('v_mov_b32 %s, 0' % l1)
    p('s_mov_b32 s22, 0')
    p.loop_begin()
    p.label('%s_s2' % name)
    p('s_add_u32 s23, s22, 4096')
    for t in range(8):
        p('buffer_load_dwordx4 %s, %s, s[8:11], %s offen offset:%d sc1' % (R(KF[t], 0, 4), R(v_kvoff), 's22' if t < 4 else 's23', (t % 4) * 1024))
    for t in range(8):
        for m_ in mf_k(0, t, R(KF[t], 0, 4), False): p(m_)
    p('s_add_u32 s26, s22, 8192')
    p('s_add_u32 s23, s22, 12288')
    for t in range(8):
        p('buffer_load_dwordx4 %s, %s, s[8:11], %s offen offset:%d sc1' % (R(KF[t], 0, 4), R(v_kvoff), 's26' if t < 4 else 's23', (t % 4) * 1024))
    for o in softmax_ops(0, False, False): p(o)
    for i in range(8):
        for m_ in mf_v(0, i, R(KF[i], 0, 4), False): p(m_)
    p('s_add_u32 s22, s22, 16384')
    p('s_cmp_lt_u32 s22, 0x40000')
    p('s_cbranch_scc1 %s_s2' % name)
    p.loop_end()
    p.flush()
    p('s_branch %s_chk' % name)
    p.label('%s_end' % name)
    p('s_endpgm')
    body = p.emit()
    return body, dict(vgpr=nv, accum=(nv + 3) // 4 * 4, sgpr=102, lds=163840, block=512, grid=256)
```
